```python
import torch

def _softmax(x, axis=-1):
    return torch.softmax(x, dim=axis)
def _gelu(x):
    return torch.nn.functional.gelu(x, approximate="tanh")
def _silu(x):
    return torch.nn.functional.silu(x)
def _sigmoid(x):
    return torch.sigmoid(x)
def _layernorm(x, axis=-1, eps=1e-5):
    m = x.mean(dim=axis, keepdim=True)
    v = x.var(dim=axis, keepdim=True, unbiased=False)
    return (x - m) / torch.sqrt(v + eps)
def _scatter_add(tgt, idx, src, axis=0):
    return tgt.clone().index_add_(axis, idx, src)
def _segment_sum(src, seg, n):
    out = torch.zeros((n,) + src.shape[1:], dtype=src.dtype)
    return out.index_add_(0, seg, src)
def _pad(x, pw):
    flat = tuple(v for pair in reversed(pw) for v in pair)
    return torch.nn.functional.pad(x, flat)

kernel_name = 'parallel_sum__gqa_block_cached__geglu_ffn__decode'

def setup_inputs():

    _w = (lambda a: (lambda t: t.to(torch.bfloat16) if t.is_floating_point() else t)(torch.as_tensor(a)))
    def _A_setup():
        B, Sq, D = 1, 1, 1024
        Hq, Hkv, Sk, Dh = 32, 4, 65536, 128
        assert Hq % Hkv == 0, (Hq, Hkv)
        return {
            "x": _w((lambda *s: torch.randn(*s, dtype=torch.bfloat16) * 0.05)(B, Sq, D)),
            "k_cache": _w((lambda *s: torch.randn(*s, dtype=torch.bfloat16) * 3.2)(B, Hkv, Sk, Dh)),
            "v_cache": _w((lambda *s: torch.randn(*s, dtype=torch.bfloat16) * 1.6)(B, Hkv, Sk, Dh)),
            "wq": _w((lambda *s: torch.randn(*s, dtype=torch.bfloat16) * 3.2)(D, Hq * Dh) * (D ** -0.5)),
            "wo": _w((lambda *s: torch.randn(*s, dtype=torch.bfloat16) * 1.6)(Hq * Dh, D) * ((Hq * Dh) ** -0.5)),
        }
    _A_in = _A_setup()

    def _B_setup():
        B, S, D, F = 1, 1, 1024, 3584
        return {
            "x": _w((lambda *s: torch.randn(*s, dtype=torch.bfloat16) * 0.05)(B, S, D)),
            "w_gate": _w((lambda *s: torch.randn(*s, dtype=torch.bfloat16) * 0.05)(D, F)),
            "w_up": _w((lambda *s: torch.randn(*s, dtype=torch.bfloat16) * 0.05)(D, F)),
            "w_down": _w((lambda *s: torch.randn(*s, dtype=torch.bfloat16) * 0.05)(F, D)),
        }
    _B_in = _B_setup()

    return {
        "A_x": _A_in["x"],
        "A_k_cache": _A_in["k_cache"],
        "A_v_cache": _A_in["v_cache"],
        "A_wq": _A_in["wq"],
        "A_wo": _A_in["wo"],
        "B_x": _B_in["x"],
        "B_w_gate": _B_in["w_gate"],
        "B_w_up": _B_in["w_up"],
        "B_w_down": _B_in["w_down"],
    }

def reference(A_x, A_k_cache, A_v_cache, A_wq, A_wo, B_x, B_w_gate, B_w_up, B_w_down):
    def _A_ref(x, k_cache, v_cache, wq, wo):
        B, Sq, D = x.shape
        Hq, Dh = 32, 128
        Hkv = k_cache.shape[1]
        rep = Hq // Hkv
        q = (lambda x, *d: x.permute(*d))((x @ wq).reshape(B, Sq, Hq, Dh), 0, 2, 1, 3)
        k = (lambda x, n, axis: torch.repeat_interleave(x, n, dim=axis))(k_cache, rep, axis=1)
        v = (lambda x, n, axis: torch.repeat_interleave(x, n, dim=axis))(v_cache, rep, axis=1)
        scores = torch.einsum("bhqd,bhkd->bhqk", q, k) * (Dh ** -0.5)
        p = _softmax(scores, axis=-1)
        o = torch.einsum("bhqk,bhkd->bhqd", p, v)
        return (lambda x, *d: x.permute(*d))(o, 0, 2, 1, 3).reshape(B, Sq, Hq * Dh) @ wo

    def _B_ref(x, w_gate, w_up, w_down):
        return (_gelu(x @ w_gate) * (x @ w_up)) @ w_down

    x = A_x
    xn = _layernorm(x, axis=-1)
    return x + _A_ref(xn, A_k_cache, A_v_cache, A_wq, A_wo) + _B_ref(xn, B_w_gate, B_w_up, B_w_down)
```

```python
import re

_VR = re.compile(r'\bv\[(\d+):(\d+)\]|\bv(\d+)\b')
_SR = re.compile(r'\bs\[(\d+):(\d+)\]|\bs(\d+)\b')

TRANS = ('v_exp_f32', 'v_log_f32', 'v_rcp_f32', 'v_rsq_f32', 'v_sqrt_f32', 'v_sin_f32', 'v_cos_f32')


def vregs(tok):
    out = []
    for m in _VR.finditer(tok):
        if m.group(1) is not None:
            out += list(range(int(m.group(1)), int(m.group(2)) + 1))
        else:
            out.append(int(m.group(3)))
    return out


def sregs(tok):
    out = []
    for m in _SR.finditer(tok):
        if m.group(1) is not None:
            out += list(range(int(m.group(1)), int(m.group(2)) + 1))
        else:
            out.append(int(m.group(3)))
    if re.search(r'\bvcc\b', tok):
        out += [106, 107]
    return out


class Gen:
    def __init__(self):
        self.lines = []
        self.reset_state()
        self.nlabel = 0

    def reset_state(self):
        self.pos = 0
        self.vw = {}
        self.mfma_c = {}
        self.st_rd = {}
        self.sw = {}
        self.mfma_d_range = {}
        self.vm = []
        self.vm_done = 0

    def raw(self, text):
        self.lines.append(text)

    def comment(self, text):
        self.lines.append('    ; ' + text)

    def label(self, name):
        self.fence()
        self.lines.append(name + ':')

    def newlabel(self, base='L'):
        self.nlabel += 1
        return '%s_%d' % (base, self.nlabel)

    def nop(self, n):
        while n > 0:
            k = min(n, 16)
            self.lines.append('    s_nop %d' % (k - 1))
            self.pos += k
            n -= k

    def fence(self):
        need = 0
        for r, (p, k) in self.vw.items():
            d = {'valu': 2, 'trans': 2, 'mfma': 8}[k]
            need = max(need, p + d + 1 - self.pos)
        for r, p in self.mfma_c.items():
            need = max(need, p + 3 + 1 - self.pos)
        for r, p in self.st_rd.items():
            need = max(need, p + 2 + 1 - self.pos)
        for r, p in self.sw.items():
            need = max(need, p + 5 + 1 - self.pos)
        if need > 0:
            self.nop(need)

    def I(self, text):
        text = text.strip()
        sp = text.split(None, 1)
        op = sp[0]
        rest = sp[1] if len(sp) > 1 else ''
        ops = [o.strip() for o in re.sub(r'quad_perm:\[[^\]]*\]', 'quad_perm', rest).split(',')]
        vr, vw, sr, swr = [], [], [], []
        kind = 'salu'
        cread = []
        storedata = []
        is_dpp = '_dpp' in op or 'row_' in rest or 'quad_perm' in rest
        if op.startswith('v_mfma'):
            kind = 'mfma'
            vw = vregs(ops[0])
            vr = vregs(ops[1]) + vregs(ops[2])
            cread = vregs(ops[3])
        elif op.startswith('buffer_load') or op.startswith('global_load'):
            kind = 'vmem'
            vw = vregs(ops[0])
            vr = vregs(ops[1])
            sr = sregs(','.join(ops[2:]))
        elif op.startswith('buffer_store') or op.startswith('buffer_atomic'):
            kind = 'vmem'
            vr = vregs(ops[0]) + vregs(ops[1])
            sr = sregs(','.join(ops[2:]))
            if 'x4' in op or 'x3' in op:
                storedata = vregs(ops[0])
            if op.startswith('buffer_atomic') and 'sc0' in rest:
                vw = vregs(ops[0])
        elif op.startswith('ds_read') or op.startswith('ds_bpermute'):
            kind = 'ds'
            vw = vregs(ops[0])
            vr = vregs(','.join(ops[1:]))
        elif op.startswith('ds_write'):
            kind = 'ds'
            vr = vregs(rest)
        elif op.startswith('v_cmp'):
            kind = 'valu'
            swr = sregs(ops[0])
            vr = vregs(','.join(ops[1:]))
            sr = sregs(','.join(ops[1:]))
        elif op.startswith('v_readlane') or op.startswith('v_readfirstlane'):
            kind = 'readlane'
            swr = sregs(ops[0])
            vr = vregs(ops[1])
        elif op.startswith('v_permlane'):
            kind = 'permlane'
            vr = vregs(rest)
            vw = vregs(rest)
        elif op.startswith('v_'):
            kind = 'trans' if op.replace('_e32', '').replace('_e64', '') in TRANS else 'valu'
            vw = vregs(ops[0])
            vr = vregs(','.join(ops[1:]))
            sr = sregs(','.join(ops[1:]))
            if op.startswith('v_fmac') or op.startswith('v_dot2c'):
                vr += vw
            if op.startswith('v_cndmask') and len(ops) == 3:
                sr += [106, 107]
        need = 0

        def req(p, d):
            nonlocal need
            need = max(need, p + d + 1 - self.pos)

        isvalu = kind in ('valu', 'trans', 'readlane', 'permlane')
        for r in vr:
            if r in self.vw:
                p, k = self.vw[r]
                if k == 'mfma':
                    req(p, 8)
                else:
                    if kind == 'mfma':
                        req(p, 2)
                    elif is_dpp or kind == 'permlane':
                        req(p, 2)
                    elif kind == 'readlane':
                        req(p, 1)
                    elif k == 'trans' and kind == 'valu':
                        req(p, 1)
        for r in cread:
            if r in self.vw:
                p, k = self.vw[r]
                if k == 'mfma':
                    if self.mfma_d_range.get(r) != (ops[3], op):
                        req(p, 8)
                else:
                    req(p, 2)
        for r in vw:
            if r in self.vw:
                p, k = self.vw[r]
                if k == 'mfma' and not (kind == 'mfma' and r in cread and self.mfma_d_range.get(r) == (ops[3], op)):
                    req(p, 8)
            if r in self.mfma_c and kind != 'mfma':
                req(self.mfma_c[r], 3)
            if r in self.st_rd:
                req(self.st_rd[r], 2)
        for r in sr:
            if r in self.sw:
                req(self.sw[r], 5 if kind == 'vmem' else 2)
        if op.startswith('s_cbranch_vcc'):
            for r in (106, 107):
                if r in self.sw:
                    req(self.sw[r], 2)
        if need > 0:
            self.nop(need)
        self.lines.append('    ' + text)
        for r in vw:
            if kind == 'mfma':
                self.vw[r] = (self.pos, 'mfma')
                self.mfma_d_range[r] = (ops[0], op)
            elif kind in ('valu', 'trans', 'permlane'):
                self.vw[r] = (self.pos, 'trans' if kind == 'trans' else 'valu')
            else:
                self.vw.pop(r, None)
        for r in cread:
            self.mfma_c[r] = self.pos
        for r in storedata:
            self.st_rd[r] = self.pos
        for r in swr:
            self.sw[r] = self.pos
        if op == 's_nop':
            self.pos += int(ops[0]) + 1
        else:
            self.pos += 1

    def vm_reset(self):
        self.vm = []
        self.vm_done = 0

    def vmem(self, text, tag=None, window=None):
        out = len(self.vm) - self.vm_done
        if window is not None and out >= window:
            self.I('s_waitcnt vmcnt(%d)' % (window - 1))
            self.vm_done = len(self.vm) - (window - 1)
        assert len(self.vm) - self.vm_done < 63, 'vmcnt overflow'
        self.I(text)
        self.vm.append(tag)

    def vm_wait(self, tag):
        idx = max(i for i, t in enumerate(self.vm) if t == tag)
        if idx < self.vm_done:
            return
        n = len(self.vm) - 1 - idx
        self.I('s_waitcnt vmcnt(%d)' % n)
        self.vm_done = idx + 1

    def vm_wait_all(self):
        self.I('s_waitcnt vmcnt(0)')
        self.vm_done = len(self.vm)

    def text(self):
        return '\n'.join(self.lines) + '\n'
```

```python
import sys
import struct
from dsl import Gen

NAME = 'parallel_sum__gqa_block_cached__geglu_ffn__decode'

P = dict(
    W=10,
    W0=48,
    NT_K='',
    NT_V='',
    NT_W='',
    SLEEP=1,
)
for a in sys.argv[2:]:
    k, v = a.split('=')
    P[k] = int(v) if v.lstrip('-').isdigit() else v


def f32(x):
    return '0x%08x' % struct.unpack('<I', struct.pack('<f', x))[0]


L_XN = 0
L_Q = 2048
L_FLAG = 4096
L_OW = 8192
L_ML = L_OW + 8 * 4224
L_FR = L_ML + 512
LDS_BYTES = L_FR + 8192

WS_QP = 0
WS_AP = 0x100000
WS_ML = 0x200000
WS_GP = 0x300000
WS_FP = 0x400000
WS_SIZE = 0x500000

sWAVE = 3
sKV = 4
sT = 5
sT2 = 6
sCNT = 7
SRD_K, SRD_V, SRD_WQ, SRD_WO, SRD_GU, SRD_WD, SRD_WS, SRD_X, SRD_OUT, SRD_DBG = 32, 36, 40, 44, 48, 52, 56, 60, 64, 68
sSEL0, sSEL1 = 72, 73
sSCALE, sLOG2E = 74, 75
sH = 76
sCB = 77
sG = 78
sA, sB, sC, sD = 80, 81, 82, 83
sE, sF = 84, 85
sEX = 86

vLANE, vN, vJ = 0, 2, 3
vKOFF, vVOFF = 4, 5
vT0, vT1, vT2, vT3, vT4, vT5 = 6, 7, 8, 9, 10, 11
vZERO = 12
vM, vL = 14, 15
QF = 16
SA = 32
VA = 64
KR = 128
OA = 192
PT = 224
PF = 240

SPIN_MAX = 200000


def srd(g, d, ptr, size):
    g.I('s_mov_b32 s%d, s%d' % (d, ptr))
    g.I('s_and_b32 s%d, s%d, 0xffff' % (d + 1, ptr + 1))
    g.I('s_mov_b32 s%d, 0x%x' % (d + 2, size))
    g.I('s_mov_b32 s%d, 0x00020000' % (d + 3))


def vr(a, n=4):
    return 'v[%d:%d]' % (a, a + n - 1)


def sq(d):
    return 's[%d:%d]' % (d, d + 3)


def row_allreduce(g, op, v, tmp=None):
    for r in (1, 2, 4, 8):
        g.I('%s_dpp v%d, v%d, v%d row_ror:%d row_mask:0xf bank_mask:0xf' % (op, v, v, v, r))


def row_allreduce_multi(g, op, vs):
    for r in (1, 2, 4, 8):
        for v in vs:
            g.I('%s_dpp v%d, v%d, v%d row_ror:%d row_mask:0xf bank_mask:0xf' % (op, v, v, v, r))


def xrow_allreduce(g, op, v, t):
    g.I('v_mov_b32 v%d, v%d' % (t, v))
    g.I('v_permlane16_swap_b32 v%d, v%d' % (v, t))
    g.I('%s v%d, v%d, v%d' % (op, v, v, t))
    g.I('v_mov_b32 v%d, v%d' % (t, v))
    g.I('v_permlane32_swap_b32 v%d, v%d' % (v, t))
    g.I('%s v%d, v%d, v%d' % (op, v, v, t))


def bf_round(g, v, t):
    g.I('v_cvt_pk_bf16_f32 v%d, v%d, v%d' % (t, v, v))
    g.I('v_lshlrev_b32 v%d, 16, v%d' % (v, t))


def bf_round2(g, a, b, t):
    g.I('v_cvt_pk_bf16_f32 v%d, v%d, v%d' % (t, a, b))
    g.I('v_lshlrev_b32 v%d, 16, v%d' % (a, t))
    g.I('v_and_b32 v%d, 0xffff0000, v%d' % (b, t))


def tile32(g, R, frag, acc, first, frag_is_A=False, PT=PT):
    def perms(dd):
        t = PT + (dd & 3) * 4
        for q in range(4):
            g.I('v_perm_b32 v%d, v%d, v%d, s%d' % (t + q, R + (2 * q + 1) * 4 + (dd >> 1), R + (2 * q) * 4 + (dd >> 1),
                                                  sSEL1 if dd & 1 else sSEL0))
    perms(0)
    for dd in range(8):
        if dd < 7:
            perms(dd + 1)
        t = PT + (dd & 3) * 4
        c = '0' if first else vr(acc + 4 * dd)
        if frag_is_A:
            g.I('v_mfma_f32_16x16x32_bf16 %s, %s, %s, %s' % (vr(acc + 4 * dd), vr(frag), vr(t), c))
        else:
            g.I('v_mfma_f32_16x16x32_bf16 %s, %s, %s, %s' % (vr(acc + 4 * dd), vr(t), vr(frag), c))


def tile16(g, R, frag, acc):
    def perms(dd):
        t = PT + (dd & 3) * 4
        for q in range(2):
            g.I('v_perm_b32 v%d, v%d, v%d, s%d' % (t + q, R + (2 * q + 1) * 4 + (dd >> 1), R + (2 * q) * 4 + (dd >> 1),
                                                  sSEL1 if dd & 1 else sSEL0))
    perms(0)
    perms(1)
    for dd in range(8):
        if dd < 6:
            perms(dd + 2)
        t = PT + (dd & 3) * 4
        g.I('v_mfma_f32_16x16x16_bf16 %s, %s, %s, 0' % (vr(acc + 4 * dd), vr(frag, 2), vr(t, 2)))


def spin_guard(g, done_label):
    g.I('s_add_u32 s%d, s%d, 1' % (sCNT, sCNT))
    g.I('s_cmp_ge_u32 s%d, %d' % (sCNT, SPIN_MAX))
    g.I('s_cbranch_scc1 %s' % done_label)


def poll_valid(g, loads, regs, tmp):
    lp = g.newlabel('L_poll')
    dn = g.newlabel('L_polld')
    g.label(lp)
    for t in loads:
        g.I(t)
    g.I('s_waitcnt vmcnt(0)')
    rs = list(regs)
    g.I('v_max_u32 v%d, v%d, v%d' % (tmp, rs[0], rs[1]))
    i = 2
    while i < len(rs):
        if i + 1 < len(rs):
            g.I('v_max3_u32 v%d, v%d, v%d, v%d' % (tmp, tmp, rs[i], rs[i + 1]))
            i += 2
        else:
            g.I('v_max_u32 v%d, v%d, v%d' % (tmp, tmp, rs[i]))
            i += 1
    g.I('v_cmp_eq_u32 vcc, -1, v%d' % tmp)
    g.I('s_cbranch_vccz %s' % dn)
    spin_guard(g, dn)
    g.I('s_sleep %d' % P['SLEEP'])
    g.I('s_branch %s' % lp)
    g.label(dn)
    g.vm_reset()


def prologue_wave0(g):
    g.comment('---------------- wave 0 prologue: LN, q-proj slice, clears, sync, Q assembly')
    ntw = P['NT_W']
    g.I('v_lshlrev_b32 v%d, 5, v%d' % (vT0, vLANE))
    g.vmem('buffer_load_dwordx4 %s, v%d, %s, 0 offen' % (vr(16), vT0, sq(SRD_X)), 'x')
    g.vmem('buffer_load_dwordx4 %s, v%d, %s, 0 offen offset:16' % (vr(20), vT0, sq(SRD_X)), 'x')
    g.I('v_lshlrev_b32 v%d, 16, v%d' % (vT1, vJ))
    g.I('v_lshl_add_u32 v%d, v%d, 4, v%d' % (vT1, vN, vT1))
    g.I('s_lshl_b32 s%d, s%d, 20' % (sA, sCB))
    g.I('s_lshl_b32 s%d, s%d, 8' % (sB, sH))
    g.I('s_add_u32 s%d, s%d, s%d' % (sA, sA, sB))
    for T in range(4):
        for e in range(8):
            g.I('s_add_u32 s%d, s%d, 0x%x' % (sT, sA, (32 * T + e) * 8192))
            g.vmem('buffer_load_dwordx4 %s, v%d, %s, s%d offen%s' % (vr(KR + (T * 8 + e) * 4), vT1, sq(SRD_WQ), sT, ntw),
                   'wq%d' % T)
    for i in range(4):
        g.I('v_mov_b32 v%d, -1' % (24 + i))
    g.I('s_lshl_b32 s%d, s2, 12' % sA)
    g.I('s_add_u32 s%d, s%d, 0x%x' % (sA, sA, WS_AP))
    for i in range(4):
        g.vmem('buffer_store_dwordx4 %s, v%d, %s, s%d offen offset:%d sc1' % (vr(24), vVOFF, sq(SRD_WS), sA, i * 1024), 'clr')
    g.I('s_mul_i32 s%d, s%d, 28672' % (sA, sH))
    g.I('s_mul_i32 s%d, s%d, 3584' % (sB, sCB))
    g.I('s_add_u32 s%d, s%d, s%d' % (sA, sA, sB))
    g.I('s_add_u32 s%d, s%d, 0x%x' % (sA, sA, WS_GP))
    for i in range(3):
        g.vmem('buffer_store_dwordx4 %s, v%d, %s, s%d offen offset:%d sc1' % (vr(24), vVOFF, sq(SRD_WS), sA, i * 1024), 'clr')
    g.I('s_mov_b32 exec_lo, -1')
    g.I('s_mov_b32 exec_hi, 0')
    g.vmem('buffer_store_dwordx4 %s, v%d, %s, s%d offen offset:%d sc1' % (vr(24), vVOFF, sq(SRD_WS), sA, 3072), 'clr')
    g.I('s_mov_b64 exec, 0xff')
    g.I('v_lshlrev_b32 v%d, 9, v%d' % (vT2, vLANE))
    g.I('s_lshl_b32 s%d, s%d, 12' % (sA, sG))
    g.I('s_and_b32 s%d, s2, 63' % sB)
    g.I('s_lshl_b32 s%d, s%d, 3' % (sB, sB))
    g.I('s_add_u32 s%d, s%d, s%d' % (sA, sA, sB))
    g.I('s_add_u32 s%d, s%d, 0x%x' % (sA, sA, WS_ML))
    g.vmem('buffer_store_dwordx2 %s, v%d, %s, s%d offen sc1' % (vr(24, 2), vT2, sq(SRD_WS), sA), 'clr')
    g.I('s_mov_b64 exec, -1')
    g.I('s_lshl_b32 s%d, s%d, 15' % (sA, sCB))
    g.I('s_lshl_b32 s%d, s%d, 10' % (sB, sH))
    g.I('s_add_u32 s%d, s%d, s%d' % (sA, sA, sB))
    g.I('s_add_u32 s%d, s%d, 0x%x' % (sA, sA, WS_FP))
    g.vmem('buffer_store_dwordx4 %s, v%d, %s, s%d offen sc1' % (vr(24), vVOFF, sq(SRD_WS), sA), 'clr')
    g.I('ds_write_b32 v%d, v%d offset:%d' % (vZERO, vZERO, L_FLAG))
    g.I('s_waitcnt lgkmcnt(0)')
    g.I('s_barrier')
    g.vm_wait('x')
    X = SA
    for d in range(8):
        g.I('v_lshlrev_b32 v%d, 16, v%d' % (X + 2 * d, 16 + d))
        g.I('v_and_b32 v%d, 0xffff0000, v%d' % (X + 2 * d + 1, 16 + d))
    S = 48
    g.I('v_add_f32 v%d, v%d, v%d' % (S, X, X + 1))
    for i in range(2, 16):
        g.I('v_add_f32 v%d, v%d, v%d' % (S, S, X + i))

    def wave_sum(v):
        row_allreduce(g, 'v_add_f32', v)
        xrow_allreduce(g, 'v_add_f32', v, 49)
    wave_sum(S)
    MEAN = 50
    g.I('v_mul_f32 v%d, %s, v%d' % (MEAN, f32(1.0 / 1024), S))
    D = 51
    g.I('v_mov_b32 v%d, 0' % S)
    for i in range(16):
        g.I('v_sub_f32 v%d, v%d, v%d' % (D, X + i, MEAN))
        g.I('v_fmac_f32 v%d, v%d, v%d' % (S, D, D))
    wave_sum(S)
    VAR = 52
    g.I('v_mul_f32 v%d, %s, v%d' % (VAR, f32(1.0 / 1024), S))
    bf_round(g, MEAN, 53)
    bf_round(g, VAR, 53)
    g.I('v_add_f32 v%d, %s, v%d' % (VAR, f32(1e-5), VAR))
    bf_round(g, VAR, 53)
    SD = 54
    g.I('v_sqrt_f32 v%d, v%d' % (SD, VAR))
    g.I('v_rcp_f32 v%d, v%d' % (55, SD))
    g.I('v_fma_f32 v%d, -v%d, v%d, v%d' % (56, SD, SD, VAR))
    g.I('v_mul_f32 v%d, 0.5, v%d' % (55, 55))
    g.I('v_fmac_f32 v%d, v%d, v%d' % (SD, 56, 55))
    bf_round(g, SD, 53)
    RC = 55
    g.I('v_rcp_f32 v%d, v%d' % (RC, SD))
    for d in range(8):
        a, b = X + 2 * d, X + 2 * d + 1
        g.I('v_sub_f32 v%d, v%d, v%d' % (a, a, MEAN))
        g.I('v_sub_f32 v%d, v%d, v%d' % (b, b, MEAN))
        bf_round2(g, a, b, 53)
        for x in (a, b):
            g.I('v_mul_f32 v%d, v%d, v%d' % (56, x, RC))
            g.I('v_fma_f32 v%d, -v%d, v%d, v%d' % (57, 56, SD, x))
            g.I('v_fma_f32 v%d, v%d, v%d, v%d' % (x, 57, RC, 56))
        g.I('v_cvt_pk_bf16_f32 v%d, v%d, v%d' % (16 + d, a, b))
    g.I('ds_write_b128 v%d, %s offset:%d' % (vT0, vr(16), L_XN))
    g.I('ds_write_b128 v%d, %s offset:%d' % (vT0, vr(20), L_XN + 16))
    g.I('v_lshlrev_b32 v%d, 4, v%d' % (vT2, vJ))
    g.I('s_lshl_b32 s%d, s%d, 8' % (sA, sCB))
    g.I('v_add_u32 v%d, s%d, v%d' % (vT2, sA, vT2))
    g.I('s_waitcnt lgkmcnt(0)')
    for T in range(4):
        g.I('ds_read_b128 %s, v%d offset:%d' % (vr(16 + 4 * T), vT2, L_XN + 64 * T))
    g.I('s_waitcnt lgkmcnt(0)')
    ACC = SA
    for T in range(4):
        g.vm_wait('wq%d' % T)
        tile32(g, KR + T * 32, 16 + 4 * T, ACC, T == 0, frag_is_A=True, PT=VA)
    for dd in range(8):
        g.I('v_mov_b32 v%d, v%d' % (16 + dd, ACC + 4 * dd))
    g.I('v_lshlrev_b32 v%d, 5, v%d' % (vT2, vN))
    g.I('s_lshl_b32 s%d, s%d, 15' % (sA, sG))
    g.I('s_lshl_b32 s%d, s%d, 12' % (sB, sCB))
    g.I('s_add_u32 s%d, s%d, s%d' % (sA, sA, sB))
    g.I('s_and_b32 s%d, s%d, 7' % (sB, sH))
    g.I('s_lshl_b32 s%d, s%d, 9' % (sB, sB))
    g.I('s_add_u32 s%d, s%d, s%d' % (sB, sA, sB))
    g.I('s_mov_b64 exec, 0xffff')
    g.vmem('buffer_store_dwordx4 %s, v%d, %s, s%d offen sc1' % (vr(16), vT2, sq(SRD_WS), sB), 'qp')
    g.vmem('buffer_store_dwordx4 %s, v%d, %s, s%d offen offset:16 sc1' % (vr(20), vT2, sq(SRD_WS), sB), 'qp')
    g.I('s_mov_b64 exec, 1')
    g.I('v_mov_b32 v%d, 1' % vT3)
    g.I('s_lshl_b32 s%d, s%d, 2' % (sB, sG))
    g.vm_wait_all()
    g.vmem('buffer_atomic_add v%d, v%d, %s, s%d offen' % (vT3, vZERO, sq(SRD_DBG), sB), 'at')
    g.I('s_mov_b64 exec, -1')
    lp = g.newlabel('L_qpoll')
    dn = g.newlabel('L_qpolld')
    g.label(lp)
    g.I('buffer_load_dwordx4 %s, v%d, %s, 0 offen sc1' % (vr(16), vZERO, sq(SRD_DBG)))
    g.I('s_waitcnt vmcnt(0)')
    g.I('v_min_u32 v%d, v16, v17' % vT3)
    g.I('v_min3_u32 v%d, v%d, v18, v19' % (vT3, vT3))
    g.I('v_readfirstlane_b32 s%d, v%d' % (sB, vT3))
    g.I('s_nop 3')
    g.I('s_cmp_ge_u32 s%d, 64' % sB)
    g.I('s_cbranch_scc1 %s' % dn)
    spin_guard(g, dn)
    g.I('s_sleep %d' % P['SLEEP'])
    g.I('s_branch %s' % lp)
    g.label(dn)
    g.vm_reset()
    g.I('s_lshl_b32 s%d, s%d, 15' % (sA, sG))
    for ks in range(8):
        g.I('s_add_u32 s%d, s%d, 0x%x' % (sT, sA, WS_QP + ks * 4096))
        for i in range(4):
            g.vmem('buffer_load_dwordx4 %s, v%d, %s, s%d offen offset:%d sc1' % (vr(KR + (ks * 4 + i) * 4), vVOFF, sq(SRD_WS), sT, i * 1024),
                   'q%d' % ks)
    for ks in range(1, 8):
        g.vm_wait('q%d' % ks)
        for r in range(16):
            g.I('v_add_f32 v%d, v%d, v%d' % (KR + r, KR + r, KR + ks * 16 + r))
    g.I('v_lshlrev_b32 v%d, 3, v%d' % (vT2, vLANE))
    for i in range(4):
        g.I('v_cvt_pk_bf16_f32 v%d, v%d, v%d' % (16 + 2 * i, KR + 4 * i, KR + 4 * i + 1))
        g.I('v_cvt_pk_bf16_f32 v%d, v%d, v%d' % (17 + 2 * i, KR + 4 * i + 2, KR + 4 * i + 3))
        g.I('ds_write_b64 v%d, %s offset:%d' % (vT2, vr(16 + 2 * i, 2), L_Q + i * 512))
    g.I('v_mov_b32 v%d, 1' % vT3)
    g.I('s_waitcnt lgkmcnt(0)')
    g.I('ds_write_b32 v%d, v%d offset:%d' % (vZERO, vT3, L_FLAG))


def main_path(g, w0):
    W = P['W0'] if w0 else P['W']
    ntk, ntv, ntw = P['NT_K'], P['NT_V'], P['NT_W']
    g.comment('---------------- main path (wave0=%s)' % w0)

    def kload(t, i):
        if i == 0:
            g.I('s_add_u32 s%d, s%d, 0x%x' % (sT, sKV, t * 4096))
        g.vmem('buffer_load_dwordx4 %s, v%d, %s, s%d offen offset:%d%s' % (vr(KR + (t * 4 + i) * 4), vKOFF, sq(SRD_K), sT, i * 64, ntk),
               'k%d' % t, W)

    def vbase(T):
        return VA + 32 * T if T < 2 else KR + 32 * (T - 2)

    def vload(T, e):
        if e % 4 == 0:
            g.I('s_add_u32 s%d, s%d, 0x%x' % (sT2, sKV, T * 8192 + (e // 4) * 4096))
        g.vmem('buffer_load_dwordx4 %s, v%d, %s, s%d offen offset:%d%s' % (vr(vbase(T) + e * 4), vVOFF, sq(SRD_V), sT2, (e % 4) * 1024, ntv),
               'v%d' % T, W)

    n = 0
    for t in range(8):
        for i in range(4):
            kload(t, i)
            n += 1
            if not w0 and n == min(W, 32):
                g.I('s_barrier')
    for T in range(2):
        for e in range(8):
            vload(T, e)
    if not w0:
        lp = g.newlabel('L_fl')
        dn = g.newlabel('L_fld')
        g.label(lp)
        g.I('ds_read_b32 v%d, v%d offset:%d' % (vT0, vZERO, L_FLAG))
        g.I('s_waitcnt lgkmcnt(0)')
        g.I('v_readfirstlane_b32 s%d, v%d' % (sA, vT0))
        g.I('s_nop 3')
        g.I('s_cmp_eq_u32 s%d, 1' % sA)
        g.I('s_cbranch_scc1 %s' % dn)
        spin_guard(g, dn)
        g.I('s_sleep 1')
        g.I('s_branch %s' % lp)
        g.label(dn)
    g.I('v_and_b32 v%d, 7, v%d' % (vT0, vN))
    g.I('v_lshlrev_b32 v%d, 8, v%d' % (vT0, vT0))
    g.I('v_lshl_add_u32 v%d, v%d, 4, v%d' % (vT0, vJ, vT0))
    for i in range(4):
        g.I('ds_read_b128 %s, v%d offset:%d' % (vr(QF + 4 * i), vT0, L_Q + i * 64))
    g.I('s_waitcnt lgkmcnt(0)')
    for t in range(8):
        g.vm_wait('k%d' % t)
        for i in range(4):
            c = '0' if i == 0 else vr(SA + 4 * t)
            g.I('v_mfma_f32_16x16x32_bf16 %s, %s, %s, %s' % (vr(SA + 4 * t), vr(KR + (t * 4 + i) * 4), vr(QF + 4 * i), c))
        if t == 1:
            for e in range(8):
                vload(2, e)
        if t == 3:
            for e in range(8):
                vload(3, e)
    for r in range(0, 32, 2):
        a, b = SA + r, SA + r + 1
        bf_round2(g, a, b, vT0)
        g.I('v_mul_f32 v%d, s%d, v%d' % (a, sSCALE, a))
        g.I('v_mul_f32 v%d, s%d, v%d' % (b, sSCALE, b))
        bf_round2(g, a, b, vT1)
        if r == 0:
            g.I('v_max_f32 v%d, v%d, v%d' % (vM, a, b))
        else:
            g.I('v_max3_f32 v%d, v%d, v%d, v%d' % (vM, vM, a, b))
    xrow_allreduce(g, 'v_max_f32', vM, vT0)
    for r in range(32):
        a = SA + r
        g.I('v_sub_f32 v%d, v%d, v%d' % (a, a, vM))
        g.I('v_mul_f32 v%d, s%d, v%d' % (a, sLOG2E, a))
        g.I('v_exp_f32 v%d, v%d' % (a, a))
    g.I('v_add_f32 v%d, v%d, v%d' % (vL, SA, SA + 1))
    for r in range(2, 32):
        g.I('v_add_f32 v%d, v%d, v%d' % (vL, vL, SA + r))
    for r in range(0, 32, 2):
        g.I('v_cvt_pk_bf16_f32 v%d, v%d, v%d' % (PF + r // 2, SA + r, SA + r + 1))
    xrow_allreduce(g, 'v_add_f32', vL, vT0)
    GR, WOR, WDR = VA, VA + 32, VA + 48
    vGO, vWOO, vWDO = vT2, vT3, vT4
    g.I('s_mov_b32 s%d, 57344' % sA)
    g.I('v_mul_lo_u32 v%d, v%d, s%d' % (vGO, vJ, sA))
    g.I('v_lshl_add_u32 v%d, v%d, 4, v%d' % (vGO, vN, vGO))
    g.I('v_lshlrev_b32 v%d, 11, v%d' % (vWOO, vJ))
    g.I('v_lshl_add_u32 v%d, v%d, 4, v%d' % (vWOO, vN, vWOO))
    g.I('v_lshlrev_b32 v%d, 13, v%d' % (vWDO, vJ))
    g.I('v_lshl_add_u32 v%d, v%d, 4, v%d' % (vWDO, vN, vWDO))
    for T in range(4):
        g.vm_wait('v%d' % T)
        tile32(g, vbase(T), PF + 4 * T, OA, T == 0, frag_is_A=False)
        if T == 0 and not w0:
            g.I('s_mul_i32 s%d, s%d, %d' % (sA, sH, 32 * 7168))
            g.I('s_and_b32 s%d, s%d, 3' % (sB, sCB))
            g.I('s_mul_i32 s%d, s%d, 1792' % (sB, sB))
            g.I('s_add_u32 s%d, s%d, s%d' % (sA, sA, sB))
            g.I('s_lshl_b32 s%d, s%d, 8' % (sB, sWAVE))
            g.I('s_add_u32 s%d, s%d, s%d' % (sA, sA, sB))
            g.I('s_sub_u32 s%d, s%d, 256' % (sA, sA))
            for e in range(8):
                g.I('s_add_u32 s%d, s%d, %d' % (sT, sA, e * 7168))
                g.vmem('buffer_load_dwordx4 %s, v%d, %s, s%d offen%s' % (vr(GR + 4 * e), vGO, sq(SRD_GU), sT, ntw), 'g', W)
        if T == 1:
            g.I('s_lshl_b32 s%d, s%d, 7' % (sA, sH))
            g.I('s_lshr_b32 s%d, s%d, 1' % (sB, sWAVE))
            g.I('s_lshl_b32 s%d, s%d, 5' % (sB, sB))
            g.I('s_add_u32 s%d, s%d, s%d' % (sA, sA, sB))
            g.I('s_and_b32 s%d, s%d, 1' % (sB, sWAVE))
            g.I('s_lshl_b32 s%d, s%d, 2' % (sB, sB))
            g.I('s_add_u32 s%d, s%d, s%d' % (sA, sA, sB))
            g.I('s_lshl_b32 s%d, s%d, 11' % (sA, sA))
            g.I('s_lshl_b32 s%d, s%d, 8' % (sB, sCB))
            g.I('s_add_u32 s%d, s%d, s%d' % (sA, sA, sB))
            for e in range(4):
                g.I('s_add_u32 s%d, s%d, %d' % (sT, sA, e * 16384))
                g.vmem('buffer_load_dwordx4 %s, v%d, %s, s%d offen%s' % (vr(WOR + 4 * e), vWOO, sq(SRD_WO), sT, ntw), 'wo', W)
            if not w0:
                g.I('s_mul_i32 s%d, s%d, 112' % (sA, sH))
                g.I('s_lshl_b32 s%d, s%d, 4' % (sB, sWAVE))
                g.I('s_add_u32 s%d, s%d, s%d' % (sA, sA, sB))
                g.I('s_sub_u32 s%d, s%d, 16' % (sE, sA))
                g.I('s_lshl_b32 s%d, s%d, 11' % (sA, sE))
                g.I('s_lshl_b32 s%d, s%d, 8' % (sB, sCB))
                g.I('s_add_u32 s%d, s%d, s%d' % (sA, sA, sB))
                for e in range(4):
                    g.I('s_add_u32 s%d, s%d, %d' % (sT, sA, e * 2048))
                    g.vmem('buffer_load_dwordx4 %s, v%d, %s, s%d offen%s' % (vr(WDR + 4 * e), vWDO, sq(SRD_WD), sT, ntw), 'wd', W)
    g.I('s_mul_i32 s%d, s%d, 4224' % (sA, sWAVE))
    g.I('v_mul_u32_u24 v%d, 528, v%d' % (vT0, vN))
    g.I('v_lshl_add_u32 v%d, v%d, 7, v%d' % (vT0, vJ, vT0))
    g.I('v_add_u32 v%d, s%d, v%d' % (vT0, sA, vT0))
    g.I('s_mov_b32 s%d, 0x00ff00ff' % sEX)
    g.I('s_mov_b32 s%d, 0x00ff00ff' % (sEX + 1))
    g.I('s_mov_b64 exec, s[%d:%d]' % (sEX, sEX + 1))
    for dd in range(8):
        g.I('ds_write_b128 v%d, %s offset:%d' % (vT0, vr(OA + 4 * dd), L_OW + dd * 16))
    g.I('s_mov_b64 exec, 0xff')
    g.I('s_lshl_b32 s%d, s%d, 6' % (sA, sWAVE))
    g.I('v_lshlrev_b32 v%d, 3, v%d' % (vT1, vLANE))
    g.I('v_add_u32 v%d, s%d, v%d' % (vT1, sA, vT1))
    g.I('ds_write_b64 v%d, %s offset:%d' % (vT1, vr(vM, 2), L_ML))
    g.I('s_mov_b64 exec, -1')
    g.I('s_waitcnt lgkmcnt(0)')
    g.I('s_barrier')
    CO = OA
    CM = OA + 16
    g.I('s_mul_i32 s%d, s%d, 528' % (sA, sWAVE))
    g.I('v_lshlrev_b32 v%d, 3, v%d' % (vT0, vLANE))
    g.I('v_add_u32 v%d, s%d, v%d' % (vT1, sA, vT0))
    g.I('s_lshl_b32 s%d, s%d, 3' % (sA, sWAVE))
    g.I('v_mov_b32 v%d, s%d' % (vT5, sA))
    for w in range(8):
        g.I('ds_read_b64 %s, v%d offset:%d' % (vr(CM + 2 * w, 2), vT5, L_ML + w * 64))
    for w in range(8):
        g.I('ds_read_b64 %s, v%d offset:%d' % (vr(CO + 2 * w, 2), vT1, L_OW + w * 4224))
    g.I('s_waitcnt lgkmcnt(0)')
    g.I('v_max3_f32 v%d, v%d, v%d, v%d' % (vM, CM, CM + 2, CM + 4))
    g.I('v_max3_f32 v%d, v%d, v%d, v%d' % (vM, vM, CM + 6, CM + 8))
    g.I('v_max3_f32 v%d, v%d, v%d, v%d' % (vM, vM, CM + 10, CM + 12))
    g.I('v_max_f32 v%d, v%d, v%d' % (vM, vM, CM + 14))
    for w in range(8):
        m = CM + 2 * w
        g.I('v_sub_f32 v%d, v%d, v%d' % (m, m, vM))
        g.I('v_mul_f32 v%d, s%d, v%d' % (m, sLOG2E, m))
        g.I('v_exp_f32 v%d, v%d' % (m, m))
    R0, R1 = PT, PT + 1
    for w in range(8):
        m = CM + 2 * w
        if w == 0:
            g.I('v_mul_f32 v%d, v%d, v%d' % (R0, m, CO))
            g.I('v_mul_f32 v%d, v%d, v%d' % (R1, m, CO + 1))
            g.I('v_mul_f32 v%d, v%d, v%d' % (vL, m, m + 1))
        else:
            g.I('v_fmac_f32 v%d, v%d, v%d' % (R0, m, CO + 2 * w))
            g.I('v_fmac_f32 v%d, v%d, v%d' % (R1, m, CO + 2 * w + 1))
            g.I('v_fmac_f32 v%d, v%d, v%d' % (vL, m, m + 1))
    g.I('s_lshl_b32 s%d, s2, 12' % sA)
    g.I('s_lshl_b32 s%d, s%d, 9' % (sB, sWAVE))
    g.I('s_add_u32 s%d, s%d, s%d' % (sA, sA, sB))
    g.I('s_add_u32 s%d, s%d, 0x%x' % (sA, sA, WS_AP))
    g.vmem('buffer_store_dwordx2 %s, v%d, %s, s%d offen sc1' % (vr(R0, 2), vT0, sq(SRD_WS), sA), 'ap')
    g.I('s_lshl_b32 s%d, s%d, 12' % (sA, sG))
    g.I('s_add_u32 s%d, s%d, s%d' % (sA, sA, sB))
    g.I('s_and_b32 s%d, s2, 63' % sB)
    g.I('s_lshl_b32 s%d, s%d, 3' % (sB, sB))
    g.I('s_add_u32 s%d, s%d, s%d' % (sA, sA, sB))
    g.I('s_add_u32 s%d, s%d, 0x%x' % (sA, sA, WS_ML))
    g.I('s_mov_b64 exec, 1')
    g.vmem('buffer_store_dwordx2 %s, v%d, %s, s%d offen sc1' % (vr(vM, 2), vZERO, sq(SRD_WS), sA), 'ml')
    g.I('s_mov_b64 exec, -1')
    GA = KR
    if not w0:
        g.I('v_lshlrev_b32 v%d, 4, v%d' % (vT0, vJ))
        g.I('s_lshl_b32 s%d, s%d, 6' % (sA, sH))
        g.I('v_add_u32 v%d, s%d, v%d' % (vT0, sA, vT0))
        g.I('ds_read_b128 %s, v%d offset:%d' % (vr(QF), vT0, L_XN))
        g.I('s_waitcnt lgkmcnt(0)')
        g.vm_wait('g')
        tile32(g, GR, QF, GA, True, frag_is_A=True)
        for dd in range(8):
            g.I('v_mov_b32 v%d, v%d' % (QF + dd, GA + 4 * dd))
        g.I('s_mul_i32 s%d, s%d, 28672' % (sA, sH))
        g.I('s_mul_i32 s%d, s%d, 3584' % (sB, sCB))
        g.I('s_add_u32 s%d, s%d, s%d' % (sA, sA, sB))
        g.I('s_lshl_b32 s%d, s%d, 9' % (sB, sWAVE))
        g.I('s_add_u32 s%d, s%d, s%d' % (sA, sA, sB))
        g.I('s_add_u32 s%d, s%d, 0x%x' % (sA, sA, WS_GP - 512))
        g.I('v_lshlrev_b32 v%d, 5, v%d' % (vT0, vN))
        g.I('s_mov_b64 exec, 0xffff')
        g.vmem('buffer_store_dwordx4 %s, v%d, %s, s%d offen sc1' % (vr(QF), vT0, sq(SRD_WS), sA), 'gp')
        g.vmem('buffer_store_dwordx4 %s, v%d, %s, s%d offen offset:16 sc1' % (vr(QF + 4), vT0, sq(SRD_WS), sA), 'gp')
        g.I('s_mov_b64 exec, -1')
    MLr = KR + 32
    AD = KR + 40
    g.I('v_lshlrev_b32 v%d, 3, v%d' % (vT0, vN))
    g.I('s_lshl_b32 s%d, s%d, 9' % (sA, sH))
    g.I('s_add_u32 s%d, s%d, 0x%x' % (sA, sA, WS_ML))
    poll_valid(g, ['buffer_load_dwordx2 %s, v%d, %s, s%d offen offset:%d sc1' % (vr(MLr + 2 * i, 2), vT0, sq(SRD_WS), sA, i * 128)
                   for i in range(4)], range(MLr, MLr + 8), vT1)
    g.I('v_lshlrev_b32 v%d, 12, v%d' % (vT0, vN))
    g.I('v_lshl_add_u32 v%d, v%d, 4, v%d' % (vT0, vJ, vT0))
    g.I('s_lshl_b32 s%d, s%d, 18' % (sA, sG))
    g.I('s_and_b32 s%d, s%d, 7' % (sB, sH))
    g.I('s_lshl_b32 s%d, s%d, 9' % (sB, sB))
    g.I('s_add_u32 s%d, s%d, s%d' % (sA, sA, sB))
    g.I('s_lshl_b32 s%d, s%d, 6' % (sB, sWAVE))
    g.I('s_add_u32 s%d, s%d, s%d' % (sA, sA, sB))
    g.I('s_add_u32 s%d, s%d, 0x%x' % (sA, sA, WS_AP))
    g.I('s_add_u32 s%d, s%d, 0x10000' % (sB, sA))
    g.I('s_add_u32 s%d, s%d, 0x20000' % (sC, sA))
    g.I('s_add_u32 s%d, s%d, 0x30000' % (sD, sA))
    poll_valid(g, ['buffer_load_dwordx4 %s, v%d, %s, s%d offen sc1' % (vr(AD + 4 * i), vT0, sq(SRD_WS), (sA, sB, sC, sD)[i])
                   for i in range(4)], range(AD, AD + 16), vT1)
    g.I('v_max3_f32 v%d, v%d, v%d, v%d' % (vM, MLr, MLr + 2, MLr + 4))
    g.I('v_max_f32 v%d, v%d, v%d' % (vM, vM, MLr + 6))
    row_allreduce(g, 'v_max_f32', vM)
    for i in range(4):
        m = MLr + 2 * i
        g.I('v_sub_f32 v%d, v%d, v%d' % (m, m, vM))
        g.I('v_mul_f32 v%d, s%d, v%d' % (m, sLOG2E, m))
        g.I('v_exp_f32 v%d, v%d' % (m, m))
    OC = QF
    for i in range(4):
        m = MLr + 2 * i
        op = 'v_mul_f32' if i == 0 else 'v_fmac_f32'
        g.I('%s v%d, v%d, v%d' % (op, vL, m, m + 1))
        for c in range(4):
            g.I('%s v%d, v%d, v%d' % (op, OC + c, m, AD + 4 * i + c))
    row_allreduce_multi(g, 'v_add_f32', [vL, OC, OC + 1, OC + 2, OC + 3])
    g.I('v_rcp_f32 v%d, v%d' % (vT0, vL))
    for c in range(4):
        x = OC + c
        g.I('v_mul_f32 v%d, v%d, v%d' % (vT1, x, vT0))
        g.I('v_fma_f32 v%d, -v%d, v%d, v%d' % (vT5, vT1, vL, x))
        g.I('v_fma_f32 v%d, v%d, v%d, v%d' % (x, vT5, vT0, vT1))
    OFR = QF + 4
    g.I('v_cvt_pk_bf16_f32 v%d, v%d, v%d' % (OFR, OC, OC + 1))
    g.I('v_cvt_pk_bf16_f32 v%d, v%d, v%d' % (OFR + 1, OC + 2, OC + 3))
    WOA = OA
    tile16(g, WOR, OFR, WOA)
    WDA = KR + 64 - 64
    if not w0:
        HD = KR + 32
        g.I('s_mov_b32 s%d, 28672' % sA)
        g.I('v_mul_lo_u32 v%d, v%d, s%d' % (vT0, vN, sA))
        g.I('v_lshl_add_u32 v%d, v%d, 4, v%d' % (vT0, vJ, vT0))
        g.I('s_lshl_b32 s%d, s%d, 2' % (sA, sE))
        g.I('s_add_u32 s%d, s%d, 0x%x' % (sA, sA, WS_GP))
        g.I('s_add_u32 s%d, s%d, %d' % (sB, sA, 16 * 28672))
        g.I('s_add_u32 s%d, s%d, %d' % (sC, sA, 14336))
        g.I('s_add_u32 s%d, s%d, %d' % (sD, sA, 14336 + 16 * 28672))
        poll_valid(g, ['buffer_load_dwordx4 %s, v%d, %s, s%d offen sc1' % (vr(HD + 4 * i), vT0, sq(SRD_WS), (sA, sB, sC, sD)[i])
                       for i in range(4)], range(HD, HD + 16), vT1)
        GG, UU = HD, HD + 8
        for c in range(4):
            g.I('v_add_f32 v%d, v%d, v%d' % (GG + c, GG + c, GG + 4 + c))
            g.I('v_add_f32 v%d, v%d, v%d' % (UU + c, UU + c, UU + 4 + c))
        row_allreduce_multi(g, 'v_add_f32', [GG + c for c in range(4)] + [UU + c for c in range(4)])
        for c in range(0, 4, 2):
            bf_round2(g, GG + c, GG + c + 1, vT0)
            bf_round2(g, UU + c, UU + c + 1, vT0)
        k0 = 0.7978845608028654
        k1 = 0.044715
        c2 = -2.0 * k0 * 1.4426950408889634
        for c in range(4):
            x = GG + c
            t = GG + 4 + c
            g.I('v_mul_f32 v%d, v%d, v%d' % (t, x, x))
            g.I('v_mul_f32 v%d, v%d, v%d' % (t, t, x))
            g.I('v_mul_f32 v%d, %s, v%d' % (t, f32(k1), t))
            g.I('v_add_f32 v%d, v%d, v%d' % (t, t, x))
            g.I('v_mul_f32 v%d, %s, v%d' % (t, f32(c2), t))
            g.I('v_exp_f32 v%d, v%d' % (t, t))
            g.I('v_add_f32 v%d, 1.0, v%d' % (t, t))
            g.I('v_rcp_f32 v%d, v%d' % (t, t))
            g.I('v_mul_f32 v%d, v%d, v%d' % (x, x, t))
        for c in range(0, 4, 2):
            bf_round2(g, GG + c, GG + c + 1, vT0)
        for c in range(4):
            g.I('v_mul_f32 v%d, v%d, v%d' % (GG + c, GG + c, UU + c))
        HFR = QF + 6
        g.I('v_cvt_pk_bf16_f32 v%d, v%d, v%d' % (HFR, GG, GG + 1))
        g.I('v_cvt_pk_bf16_f32 v%d, v%d, v%d' % (HFR + 1, GG + 2, GG + 3))
        tile16(g, WDR, HFR, WDA)
    F = VA
    for dd in range(8):
        g.I('v_mov_b32 v%d, v%d' % (F + dd, WOA + 4 * dd))
    for dd in range(8):
        if w0:
            g.I('v_mov_b32 v%d, 0' % (F + 8 + dd))
        else:
            g.I('v_mov_b32 v%d, v%d' % (F + 8 + dd, WDA + 4 * dd))
    g.I('s_lshl_b32 s%d, s%d, 10' % (sA, sWAVE))
    g.I('v_lshlrev_b32 v%d, 5, v%d' % (vT0, vN))
    g.I('v_add_u32 v%d, s%d, v%d' % (vT0, sA, vT0))
    g.I('s_mov_b64 exec, 0xffff')
    g.I('ds_write_b128 v%d, %s offset:%d' % (vT0, vr(F), L_FR))
    g.I('ds_write_b128 v%d, %s offset:%d' % (vT0, vr(F + 4), L_FR + 16))
    g.I('ds_write_b128 v%d, %s offset:%d' % (vT0, vr(F + 8), L_FR + 512))
    g.I('ds_write_b128 v%d, %s offset:%d' % (vT0, vr(F + 12), L_FR + 528))
    g.I('s_mov_b64 exec, -1')
    g.I('s_waitcnt lgkmcnt(0)')
    g.I('s_barrier')
    if not w0:
        g.I('s_endpgm')
        return
    g.I('s_lshl_b32 s%d, s%d, 8' % (sF, sCB))
    g.I('s_lshl_b32 s%d, s%d, 3' % (sB, sH))
    g.I('s_add_u32 s%d, s%d, s%d' % (sF, sF, sB))
    XV = QF + 8
    g.vmem('buffer_load_dwordx2 %s, v%d, %s, s%d offen' % (vr(XV, 2), vZERO, sq(SRD_X), sF), 'xv')
    RD = KR
    for w in range(8):
        g.I('ds_read_b128 %s, v%d offset:%d' % (vr(RD + 4 * w), vVOFF, L_FR + w * 1024))
    g.I('s_waitcnt lgkmcnt(0)')
    for w in range(1, 8):
        for c in range(4):
            g.I('v_add_f32 v%d, v%d, v%d' % (RD + c, RD + c, RD + 4 * w + c))
    g.I('s_lshl_b32 s%d, s%d, 15' % (sA, sCB))
    g.I('s_add_u32 s%d, s%d, 0x%x' % (sA, sA, WS_FP))
    g.I('s_lshl_b32 s%d, s%d, 10' % (sB, sH))
    g.I('s_add_u32 s%d, s%d, s%d' % (sB, sA, sB))
    g.vmem('buffer_store_dwordx4 %s, v%d, %s, s%d offen sc1' % (vr(RD), vVOFF, sq(SRD_WS), sB), 'fp')
    g.I('v_and_b32 v%d, 31, v%d' % (vT0, vLANE))
    g.I('v_lshlrev_b32 v%d, 10, v%d' % (vT0, vT0))
    g.I('v_lshrrev_b32 v%d, 5, v%d' % (vT1, vLANE))
    g.I('v_lshl_add_u32 v%d, v%d, 9, v%d' % (vT0, vT1, vT0))
    g.I('s_lshl_b32 s%d, s%d, 4' % (sB, sH))
    g.I('s_add_u32 s%d, s%d, s%d' % (sA, sA, sB))
    FD = KR + 32
    poll_valid(g, ['buffer_load_dwordx4 %s, v%d, %s, s%d offen sc1' % (vr(FD), vT0, sq(SRD_WS), sA)], range(FD, FD + 4), vT1)
    row_allreduce_multi(g, 'v_add_f32', [FD + c for c in range(4)])
    FE = FD + 4
    for c in range(4):
        g.I('v_mov_b32 v%d, v%d' % (FE + c, FD + c))
    for c in range(4):
        g.I('v_permlane16_swap_b32 v%d, v%d' % (FD + c, FE + c))
    for c in range(4):
        g.I('v_add_f32 v%d, v%d, v%d' % (FD + c, FD + c, FE + c))
    for c in range(4):
        g.I('v_mov_b32 v%d, v%d' % (FE + c, FD + c))
    for c in range(4):
        g.I('v_permlane32_swap_b32 v%d, v%d' % (FD + c, FE + c))
    XF = FD + 8
    for d in range(2):
        g.I('v_lshlrev_b32 v%d, 16, v%d' % (XF + 2 * d, XV + d))
        g.I('v_and_b32 v%d, 0xffff0000, v%d' % (XF + 2 * d + 1, XV + d))
    for c in range(0, 4, 2):
        bf_round2(g, FD + c, FD + c + 1, vT0)
        bf_round2(g, FE + c, FE + c + 1, vT0)
    for c in range(4):
        g.I('v_add_f32 v%d, v%d, v%d' % (FD + c, FD + c, XF + c))
    for c in range(0, 4, 2):
        bf_round2(g, FD + c, FD + c + 1, vT0)
    for c in range(4):
        g.I('v_add_f32 v%d, v%d, v%d' % (FD + c, FD + c, FE + c))
    g.I('v_cvt_pk_bf16_f32 v%d, v%d, v%d' % (XF, FD, FD + 1))
    g.I('v_cvt_pk_bf16_f32 v%d, v%d, v%d' % (XF + 1, FD + 2, FD + 3))
    g.I('s_mov_b64 exec, 1')
    g.I('buffer_store_dwordx2 %s, v%d, %s, s%d offen' % (vr(XF, 2), vZERO, sq(SRD_OUT), sF))
    g.I('s_endpgm')


def build():
    g = Gen()
    hdr = open('cdna_kernels/%s.s.ref' % NAME).read().split('\n')
    out = []
    for ln in hdr:
        if ln.startswith('; @launch'):
            out.append('; @launch grid=(256,1,1) block=(512,1,1) lds=%d' % LDS_BYTES)
        elif ln.startswith(';'):
            out.append(ln)
        else:
            break
    out.append('.amdgcn_target "amdgcn-amd-amdhsa--gfx950"')
    out.append('.text')
    out.append('.globl %s_kernel' % NAME)
    out.append('.p2align 8')
    out.append('.type %s_kernel,@function' % NAME)
    out.append('%s_kernel:' % NAME)
    g.I('s_cmp_ge_u32 s2, 256')
    g.I('s_cbranch_scc1 L_end')
    g.I('s_load_dwordx16 s[8:23], s[0:1], 0')
    g.I('s_load_dwordx8 s[24:31], s[0:1], 64')
    g.I('v_lshrrev_b32 v1, 6, v0')
    g.I('v_and_b32 v0, 63, v0')
    g.I('v_readfirstlane_b32 s%d, v1' % sWAVE)
    g.I('v_and_b32 v%d, 15, v0' % vN)
    g.I('v_lshrrev_b32 v%d, 4, v0' % vJ)
    g.I('v_and_b32 v%d, 3, v%d' % (vKOFF, vN))
    g.I('v_lshlrev_b32 v%d, 10, v%d' % (vKOFF, vKOFF))
    g.I('v_lshrrev_b32 v%d, 2, v%d' % (vT0, vN))
    g.I('v_lshl_add_u32 v%d, v%d, 8, v%d' % (vKOFF, vT0, vKOFF))
    g.I('v_lshl_add_u32 v%d, v%d, 4, v%d' % (vKOFF, vJ, vKOFF))
    g.I('v_lshlrev_b32 v%d, 4, v0' % vVOFF)
    g.I('v_mov_b32 v%d, 0' % vZERO)
    g.I('s_lshl_b32 s%d, s2, 18' % sKV)
    g.I('s_lshl_b32 s%d, s%d, 15' % (sT, sWAVE))
    g.I('s_add_u32 s%d, s%d, s%d' % (sKV, sKV, sT))
    g.I('s_lshr_b32 s%d, s2, 3' % sH)
    g.I('s_and_b32 s%d, s2, 7' % sCB)
    g.I('s_lshr_b32 s%d, s2, 6' % sG)
    g.I('s_mov_b32 s%d, 0' % sCNT)
    g.I('s_mov_b32 s%d, 0x05040100' % sSEL0)
    g.I('s_mov_b32 s%d, 0x07060302' % sSEL1)
    g.I('s_mov_b32 s%d, %s' % (sSCALE, f32(128 ** -0.5)))
    g.I('s_mov_b32 s%d, %s' % (sLOG2E, f32(1.4426950408889634)))
    g.I('s_waitcnt lgkmcnt(0)')
    srd(g, SRD_K, 10, 1 << 26)
    srd(g, SRD_V, 12, 1 << 26)
    srd(g, SRD_X, 8, 2048)
    srd(g, SRD_WQ, 14, 1 << 23)
    srd(g, SRD_WO, 16, 1 << 23)
    g.I('s_cmp_lt_u32 s%d, 4' % sCB)
    g.I('s_cselect_b32 s%d, s20, s22' % SRD_GU)
    g.I('s_cselect_b32 s%d, s21, s23' % (SRD_GU + 1))
    g.I('s_and_b32 s%d, s%d, 0xffff' % (SRD_GU + 1, SRD_GU + 1))
    g.I('s_mov_b32 s%d, 0x%x' % (SRD_GU + 2, 1024 * 3584 * 2))
    g.I('s_mov_b32 s%d, 0x00020000' % (SRD_GU + 3))
    srd(g, SRD_WD, 24, 3584 * 1024 * 2)
    srd(g, SRD_OUT, 26, 2048)
    srd(g, SRD_DBG, 28, 256)
    srd(g, SRD_WS, 30, WS_SIZE)
    g.I('s_cmp_eq_u32 s%d, 0' % sWAVE)
    g.I('s_cbranch_scc1 L_wave0')
    g.fence()
    main_path(g, False)
    g.label('L_wave0')
    g.vm_reset()
    prologue_wave0(g)
    main_path(g, True)
    g.label('L_end')
    g.I('s_endpgm')
    out.append(g.text())
    out.append('.section .rodata,"a"')
    out.append('.p2align 6')
    out.append('.amdhsa_kernel %s_kernel' % NAME)
    out.append('  .amdhsa_next_free_vgpr 256')
    out.append('  .amdhsa_next_free_sgpr 102')
    out.append('  .amdhsa_accum_offset 256')
    out.append('  .amdhsa_group_segment_fixed_size 0')
    out.append('  .amdhsa_kernarg_size 96')
    out.append('  .amdhsa_user_sgpr_count 2')
    out.append('  .amdhsa_user_sgpr_kernarg_segment_ptr 1')
    out.append('  .amdhsa_system_sgpr_workgroup_id_x 1')
    out.append('  .amdhsa_float_denorm_mode_32 3')
    out.append('.end_amdhsa_kernel')
    return '\n'.join(out) + '\n'


if __name__ == '__main__':
    dst = sys.argv[1] if len(sys.argv) > 1 else 'cdna_kernels/%s.s' % NAME
    open(dst, 'w').write(build())
    print('wrote', dst)
```

```python
import sys
import struct
from dsl import Gen

NAME = 'parallel_sum__gqa_block_cached__geglu_ffn__decode'

P = dict(
    W=4,
    W0=10,
    WP=16,
    NT_K=' nt',
    NT_V=' nt',
    NT_W=' nt',
    SLEEP=1,
    QSLEEP=4,
    TW=3,
    WT=8,
    KG=16,
    QPOS=6,
    QPOS0=8,
    TSLEEP=4,
    ILV=2,
    QPOLL=' sc1',
)
for a in sys.argv[2:]:
    k, v = a.split('=')
    P[k] = int(v) if v.lstrip('-').isdigit() else v


def f32(x):
    return '0x%08x' % struct.unpack('<I', struct.pack('<f', x))[0]


L_XN = 0
L_Q = 2048
L_FLAG = 4096
L_OW = 8192
L_ML = L_OW + 8 * 4224
L_FR = L_ML + 512
LDS_BYTES = L_FR + 8192

WS_QP = 0
WS_AP = 0x100000
WS_ML = 0x200000
WS_GP = 0x300000
WS_FP = 0x400000
WS_MB = 0x440000
WS_SIZE = 0x500000

sWAVE = 3
sKV = 4
sT = 5
sT2 = 6
sCNT = 7
SRD_K, SRD_V, SRD_WQ, SRD_WO, SRD_GU, SRD_WD, SRD_WS, SRD_X, SRD_OUT, SRD_DBG = 32, 36, 40, 44, 48, 52, 56, 60, 64, 68
sSEL0, sSEL1 = 72, 73
sSCALE, sLOG2E = 74, 75
sH = 76
sCB = 77
sG = 78
sA, sB, sC, sD = 80, 81, 82, 83
sE, sF = 84, 85
sEX = 86

vLANE, vN, vJ = 0, 2, 3
vKOFF, vVOFF = 4, 5
vT0, vT1, vT2, vT3, vT4, vT5 = 6, 7, 8, 9, 10, 11
vZERO = 12
vM, vL = 14, 15
QF = 16
SA = 32
VA = 64
KR = 128
OA = 192
PT = 224
PF = 240

SPIN_MAX = 200000


def srd(g, d, ptr, size):
    g.I('s_mov_b32 s%d, s%d' % (d, ptr))
    g.I('s_and_b32 s%d, s%d, 0xffff' % (d + 1, ptr + 1))
    g.I('s_mov_b32 s%d, 0x%x' % (d + 2, size))
    g.I('s_mov_b32 s%d, 0x00020000' % (d + 3))


def vr(a, n=4):
    return 'v[%d:%d]' % (a, a + n - 1)


def sq(d):
    return 's[%d:%d]' % (d, d + 3)


def row_allreduce(g, op, v, tmp=None):
    for r in (1, 2, 4, 8):
        g.I('%s_dpp v%d, v%d, v%d row_ror:%d row_mask:0xf bank_mask:0xf' % (op, v, v, v, r))


def row_allreduce_multi(g, op, vs):
    for r in (1, 2, 4, 8):
        for v in vs:
            g.I('%s_dpp v%d, v%d, v%d row_ror:%d row_mask:0xf bank_mask:0xf' % (op, v, v, v, r))


def xrow_allreduce(g, op, v, t):
    g.I('v_mov_b32 v%d, v%d' % (t, v))
    g.I('v_permlane16_swap_b32 v%d, v%d' % (v, t))
    g.I('%s v%d, v%d, v%d' % (op, v, v, t))
    g.I('v_mov_b32 v%d, v%d' % (t, v))
    g.I('v_permlane32_swap_b32 v%d, v%d' % (v, t))
    g.I('%s v%d, v%d, v%d' % (op, v, v, t))


def bf_round(g, v, t):
    g.I('v_cvt_pk_bf16_f32 v%d, v%d, v%d' % (t, v, v))
    g.I('v_lshlrev_b32 v%d, 16, v%d' % (v, t))


def bf_round2(g, a, b, t):
    g.I('v_cvt_pk_bf16_f32 v%d, v%d, v%d' % (t, a, b))
    g.I('v_lshlrev_b32 v%d, 16, v%d' % (a, t))
    g.I('v_and_b32 v%d, 0xffff0000, v%d' % (b, t))


def tile32(g, R, frag, acc, first, frag_is_A=False, PT=PT):
    def perms(dd):
        t = PT + (dd & 3) * 4
        for q in range(4):
            g.I('v_perm_b32 v%d, v%d, v%d, s%d' % (t + q, R + (2 * q + 1) * 4 + (dd >> 1), R + (2 * q) * 4 + (dd >> 1),
                                                  sSEL1 if dd & 1 else sSEL0))
    perms(0)
    for dd in range(8):
        if dd < 7:
            perms(dd + 1)
        t = PT + (dd & 3) * 4
        c = '0' if first else vr(acc + 4 * dd)
        if frag_is_A:
            g.I('v_mfma_f32_16x16x32_bf16 %s, %s, %s, %s' % (vr(acc + 4 * dd), vr(frag), vr(t), c))
        else:
            g.I('v_mfma_f32_16x16x32_bf16 %s, %s, %s, %s' % (vr(acc + 4 * dd), vr(t), vr(frag), c))


def tile16(g, R, frag, acc):
    def perms(dd):
        t = PT + (dd & 3) * 4
        for q in range(2):
            g.I('v_perm_b32 v%d, v%d, v%d, s%d' % (t + q, R + (2 * q + 1) * 4 + (dd >> 1), R + (2 * q) * 4 + (dd >> 1),
                                                  sSEL1 if dd & 1 else sSEL0))
    perms(0)
    perms(1)
    for dd in range(8):
        if dd < 6:
            perms(dd + 2)
        t = PT + (dd & 3) * 4
        g.I('v_mfma_f32_16x16x16_bf16 %s, %s, %s, 0' % (vr(acc + 4 * dd), vr(frag, 2), vr(t, 2)))


vST = 13
WS_ST = 0x480000
STAMP_NAMES = []


def stamp(g, name):
    if not P.get('STAMPS'):
        return
    if name not in STAMP_NAMES:
        STAMP_NAMES.append(name)
    k = STAMP_NAMES.index(name)
    g.I('s_memrealtime s[88:89]')
    g.I('s_waitcnt lgkmcnt(0)')
    g.I('v_writelane_b32 v%d, s88, %d' % (vST, k))


def stamp_store(g):
    if not P.get('STAMPS'):
        return
    g.I('s_mov_b64 exec, -1')
    g.I('s_lshl_b32 s88, s2, 11')
    g.I('s_lshl_b32 s89, s%d, 8' % sWAVE)
    g.I('s_add_u32 s88, s88, s89')
    g.I('s_add_u32 s88, s88, 0x%x' % WS_ST)
    g.I('v_lshlrev_b32 v1, 2, v0')
    g.I('s_nop 4')
    g.I('buffer_store_dword v%d, v1, %s, s88 offen' % (vST, sq(SRD_WS)))


def spin_guard(g, done_label):
    g.I('s_add_u32 s%d, s%d, 1' % (sCNT, sCNT))
    g.I('s_cmp_ge_u32 s%d, %d' % (sCNT, SPIN_MAX))
    g.I('s_cbranch_scc1 %s' % done_label)


def poll_valid(g, loads, regs, tmp, sleep=None):
    lp = g.newlabel('L_poll')
    dn = g.newlabel('L_polld')
    g.label(lp)
    for t in loads:
        g.I(t)
    g.I('s_waitcnt vmcnt(0)')
    rs = list(regs)
    g.I('v_max_u32 v%d, v%d, v%d' % (tmp, rs[0], rs[1]))
    i = 2
    while i < len(rs):
        if i + 1 < len(rs):
            g.I('v_max3_u32 v%d, v%d, v%d, v%d' % (tmp, tmp, rs[i], rs[i + 1]))
            i += 2
        else:
            g.I('v_max_u32 v%d, v%d, v%d' % (tmp, tmp, rs[i]))
            i += 1
    g.I('v_cmp_eq_u32 vcc, -1, v%d' % tmp)
    g.I('s_cbranch_vccz %s' % dn)
    spin_guard(g, dn)
    g.I('s_sleep %d' % (P['SLEEP'] if sleep is None else sleep))
    g.I('s_branch %s' % lp)
    g.label(dn)
    g.vm_reset()


def prologue_wave0(g):
    g.comment('---------------- wave 0 prologue: LN, q-proj slice, clears, sync, Q assembly')
    ntw = P['NT_W']
    g.I('v_lshlrev_b32 v%d, 5, v%d' % (vT0, vLANE))
    g.vmem('buffer_load_dwordx4 %s, v%d, %s, 0 offen' % (vr(16), vT0, sq(SRD_X)), 'x')
    g.vmem('buffer_load_dwordx4 %s, v%d, %s, 0 offen offset:16' % (vr(20), vT0, sq(SRD_X)), 'x')
    g.I('v_lshlrev_b32 v%d, 16, v%d' % (vT1, vJ))
    g.I('v_lshl_add_u32 v%d, v%d, 4, v%d' % (vT1, vN, vT1))
    g.I('s_lshl_b32 s%d, s%d, 20' % (sA, sCB))
    g.I('s_lshl_b32 s%d, s%d, 8' % (sB, sH))
    g.I('s_add_u32 s%d, s%d, s%d' % (sA, sA, sB))
    for T in range(4):
        for e in range(8):
            g.I('s_add_u32 s%d, s%d, 0x%x' % (sT, sA, (32 * T + e) * 8192))
            g.vmem('buffer_load_dwordx4 %s, v%d, %s, s%d offen%s' % (vr(KR + (T * 8 + e) * 4), vT1, sq(SRD_WQ), sT, ntw),
                   'wq%d' % T, P['WP'])
    for i in range(4):
        g.I('v_mov_b32 v%d, -1' % (24 + i))
    g.I('v_lshrrev_b32 v%d, 2, v%d' % (vT2, vLANE))
    g.I('v_lshlrev_b32 v%d, 12, v%d' % (vT2, vT2))
    g.I('v_and_b32 v%d, 3, v%d' % (vT3, vLANE))
    g.I('v_lshl_add_u32 v%d, v%d, 4, v%d' % (vT2, vT3, vT2))
    g.I('s_lshl_b32 s%d, s%d, 18' % (sA, sG))
    g.I('s_and_b32 s%d, s2, 63' % sB)
    g.I('s_lshl_b32 s%d, s%d, 6' % (sB, sB))
    g.I('s_add_u32 s%d, s%d, s%d' % (sA, sA, sB))
    for i in range(4):
        g.I('s_add_u32 s%d, s%d, 0x%x' % (sT, sA, WS_AP + i * 65536))
        g.vmem('buffer_store_dwordx4 %s, v%d, %s, s%d offen sc1' % (vr(24), vT2, sq(SRD_WS), sT), 'clr')
    g.I('s_mul_i32 s%d, s%d, 28672' % (sA, sH))
    g.I('s_mul_i32 s%d, s%d, 3584' % (sB, sCB))
    g.I('s_add_u32 s%d, s%d, s%d' % (sA, sA, sB))
    g.I('s_add_u32 s%d, s%d, 0x%x' % (sA, sA, WS_GP))
    for i in range(3):
        g.vmem('buffer_store_dwordx4 %s, v%d, %s, s%d offen offset:%d sc1' % (vr(24), vVOFF, sq(SRD_WS), sA, i * 1024), 'clr')
    g.I('s_mov_b32 exec_lo, -1')
    g.I('s_mov_b32 exec_hi, 0')
    g.vmem('buffer_store_dwordx4 %s, v%d, %s, s%d offen offset:%d sc1' % (vr(24), vVOFF, sq(SRD_WS), sA, 3072), 'clr')
    g.I('s_mov_b64 exec, 0xff')
    g.I('v_lshlrev_b32 v%d, 9, v%d' % (vT2, vLANE))
    g.I('s_lshl_b32 s%d, s%d, 12' % (sA, sG))
    g.I('s_and_b32 s%d, s2, 63' % sB)
    g.I('s_lshl_b32 s%d, s%d, 3' % (sB, sB))
    g.I('s_add_u32 s%d, s%d, s%d' % (sA, sA, sB))
    g.I('s_add_u32 s%d, s%d, 0x%x' % (sA, sA, WS_ML))
    g.vmem('buffer_store_dwordx2 %s, v%d, %s, s%d offen sc1' % (vr(24, 2), vT2, sq(SRD_WS), sA), 'clr')
    g.I('s_mov_b64 exec, -1')
    g.I('s_lshl_b32 s%d, s%d, 15' % (sA, sCB))
    g.I('s_lshl_b32 s%d, s%d, 10' % (sB, sH))
    g.I('s_add_u32 s%d, s%d, s%d' % (sA, sA, sB))
    g.I('s_add_u32 s%d, s%d, 0x%x' % (sA, sA, WS_FP))
    g.vmem('buffer_store_dwordx4 %s, v%d, %s, s%d offen sc1' % (vr(24), vVOFF, sq(SRD_WS), sA), 'clr')
    g.I('s_lshl_b32 s%d, s%d, 7' % (sF, sH))
    g.I('s_add_u32 s%d, s%d, 0x%x' % (sF, sF, WS_MB))
    g.I('s_lshl_b32 s%d, s2, 7' % sA)
    g.I('s_add_u32 s%d, s%d, 0x%x' % (sA, sA, WS_MB + 8192))
    g.I('s_cmp_eq_u32 s%d, 0' % sCB)
    g.I('s_cselect_b32 s%d, s%d, s%d' % (sA, sF, sA))
    g.I('s_mov_b64 exec, 1')
    g.vmem('buffer_store_dword v%d, v%d, %s, s%d offen sc1' % (vZERO, vZERO, sq(SRD_WS), sA), 'clr')
    g.I('s_mov_b64 exec, -1')
    g.I('ds_write_b32 v%d, v%d offset:%d' % (vZERO, vZERO, L_FLAG))
    g.I('s_waitcnt lgkmcnt(0)')
    g.I('s_barrier')
    stamp(g, 'w0_issued')
    g.vm_wait('x')
    X = SA
    for d in range(8):
        g.I('v_lshlrev_b32 v%d, 16, v%d' % (X + 2 * d, 16 + d))
        g.I('v_and_b32 v%d, 0xffff0000, v%d' % (X + 2 * d + 1, 16 + d))
    S = 48
    g.I('v_add_f32 v%d, v%d, v%d' % (S, X, X + 1))
    for i in range(2, 16):
        g.I('v_add_f32 v%d, v%d, v%d' % (S, S, X + i))

    def wave_sum(v):
        row_allreduce(g, 'v_add_f32', v)
        xrow_allreduce(g, 'v_add_f32', v, 49)
    wave_sum(S)
    MEAN = 50
    g.I('v_mul_f32 v%d, %s, v%d' % (MEAN, f32(1.0 / 1024), S))
    D = 51
    g.I('v_mov_b32 v%d, 0' % S)
    for i in range(16):
        g.I('v_sub_f32 v%d, v%d, v%d' % (D, X + i, MEAN))
        g.I('v_fmac_f32 v%d, v%d, v%d' % (S, D, D))
    wave_sum(S)
    VAR = 52
    g.I('v_mul_f32 v%d, %s, v%d' % (VAR, f32(1.0 / 1024), S))
    bf_round(g, MEAN, 53)
    bf_round(g, VAR, 53)
    g.I('v_add_f32 v%d, %s, v%d' % (VAR, f32(1e-5), VAR))
    bf_round(g, VAR, 53)
    SD = 54
    g.I('v_sqrt_f32 v%d, v%d' % (SD, VAR))
    g.I('v_rcp_f32 v%d, v%d' % (55, SD))
    g.I('v_fma_f32 v%d, -v%d, v%d, v%d' % (56, SD, SD, VAR))
    g.I('v_mul_f32 v%d, 0.5, v%d' % (55, 55))
    g.I('v_fmac_f32 v%d, v%d, v%d' % (SD, 56, 55))
    bf_round(g, SD, 53)
    RC = 55
    g.I('v_rcp_f32 v%d, v%d' % (RC, SD))
    for d in range(8):
        a, b = X + 2 * d, X + 2 * d + 1
        g.I('v_sub_f32 v%d, v%d, v%d' % (a, a, MEAN))
        g.I('v_sub_f32 v%d, v%d, v%d' % (b, b, MEAN))
        bf_round2(g, a, b, 53)
        for x in (a, b):
            g.I('v_mul_f32 v%d, v%d, v%d' % (56, x, RC))
            g.I('v_fma_f32 v%d, -v%d, v%d, v%d' % (57, 56, SD, x))
            g.I('v_fma_f32 v%d, v%d, v%d, v%d' % (x, 57, RC, 56))
        g.I('v_cvt_pk_bf16_f32 v%d, v%d, v%d' % (16 + d, a, b))
    g.I('ds_write_b128 v%d, %s offset:%d' % (vT0, vr(16), L_XN))
    g.I('ds_write_b128 v%d, %s offset:%d' % (vT0, vr(20), L_XN + 16))
    g.I('v_lshlrev_b32 v%d, 4, v%d' % (vT2, vJ))
    g.I('s_lshl_b32 s%d, s%d, 8' % (sA, sCB))
    g.I('v_add_u32 v%d, s%d, v%d' % (vT2, sA, vT2))
    g.I('s_waitcnt lgkmcnt(0)')
    for T in range(4):
        g.I('ds_read_b128 %s, v%d offset:%d' % (vr(16 + 4 * T), vT2, L_XN + 64 * T))
    g.vm_wait('clr')
    g.I('v_mov_b32 v%d, 1' % vT3)
    g.I('ds_write_b32 v%d, v%d offset:%d' % (vZERO, vT3, L_FLAG))
    g.I('s_waitcnt lgkmcnt(0)')
    ACC = SA
    for T in range(4):
        g.vm_wait('wq%d' % T)
        tile32(g, KR + T * 32, 16 + 4 * T, ACC, T == 0, frag_is_A=True, PT=VA)
    for dd in range(8):
        g.I('v_mov_b32 v%d, v%d' % (16 + dd, ACC + 4 * dd))
    stamp(g, 'w0_qproj')
    g.I('v_lshlrev_b32 v%d, 5, v%d' % (vT2, vN))
    g.I('s_lshl_b32 s%d, s%d, 15' % (sA, sG))
    g.I('s_lshl_b32 s%d, s%d, 12' % (sB, sCB))
    g.I('s_add_u32 s%d, s%d, s%d' % (sA, sA, sB))
    g.I('s_and_b32 s%d, s%d, 7' % (sB, sH))
    g.I('s_lshl_b32 s%d, s%d, 9' % (sB, sB))
    g.I('s_add_u32 s%d, s%d, s%d' % (sB, sA, sB))
    g.I('s_mov_b64 exec, 0xffff')
    g.vmem('buffer_store_dwordx4 %s, v%d, %s, s%d offen sc1' % (vr(16), vT2, sq(SRD_WS), sB), 'qp')
    g.vmem('buffer_store_dwordx4 %s, v%d, %s, s%d offen offset:16 sc1' % (vr(20), vT2, sq(SRD_WS), sB), 'qp')
    g.I('s_mov_b64 exec, 1')
    g.I('v_mov_b32 v%d, 1' % vT3)
    g.vm_wait_all()
    g.I('buffer_atomic_add v%d, v%d, %s, 0 offen sc0' % (vT3, vZERO, sq(SRD_DBG)))
    g.I('s_waitcnt vmcnt(0)')
    g.I('v_readfirstlane_b32 s%d, v%d' % (sB, vT3))
    g.I('s_mov_b64 exec, -1')
    stamp(g, 'w0_atomic')
    lp = g.newlabel('L_qpoll')
    dn = g.newlabel('L_qpolld')
    g.I('s_and_b32 s%d, s%d, 255' % (sB, sB))
    g.I('s_cmp_lg_u32 s%d, 255' % sB)
    g.I('s_cbranch_scc1 %s' % lp)
    g.I('v_lshlrev_b32 v%d, 7, v%d' % (vT3, vLANE))
    g.I('v_mov_b32 v%d, 1' % vT4)
    g.I('s_mov_b32 s%d, 0x%x' % (sB, WS_MB))
    g.I('s_mov_b32 exec_hi, 0')
    g.I('buffer_store_dword v%d, v%d, %s, s%d offen sc1' % (vT4, vT3, sq(SRD_WS), sB))
    g.I('s_mov_b64 exec, -1')
    g.I('s_branch %s' % dn)
    g.label(lp)
    g.I('buffer_load_dword v16, v%d, %s, s%d offen sc1' % (vZERO, sq(SRD_WS), sF))
    g.I('s_waitcnt vmcnt(0)')
    g.I('v_readfirstlane_b32 s%d, v16' % sB)
    g.I('s_nop 3')
    g.I('s_cmp_eq_u32 s%d, 1' % sB)
    g.I('s_cbranch_scc1 %s' % dn)
    spin_guard(g, dn)
    g.I('s_sleep %d' % P['QSLEEP'])
    g.I('s_branch %s' % lp)
    g.label(dn)
    g.vm_reset()
    stamp(g, 'w0_polled')
    g.I('s_lshl_b32 s%d, s%d, 15' % (sA, sG))
    for ks in range(8):
        g.I('s_add_u32 s%d, s%d, 0x%x' % (sT, sA, WS_QP + ks * 4096))
        for i in range(4):
            g.vmem('buffer_load_dwordx4 %s, v%d, %s, s%d offen offset:%d sc1' % (vr(KR + (ks * 4 + i) * 4), vVOFF, sq(SRD_WS), sT, i * 1024),
                   'q%d' % ks, P['WP'])
    for ks in range(1, 8):
        g.vm_wait('q%d' % ks)
        for r in range(16):
            g.I('v_add_f32 v%d, v%d, v%d' % (KR + r, KR + r, KR + ks * 16 + r))
    g.I('v_lshlrev_b32 v%d, 3, v%d' % (vT2, vLANE))
    for i in range(4):
        g.I('v_cvt_pk_bf16_f32 v%d, v%d, v%d' % (16 + 2 * i, KR + 4 * i, KR + 4 * i + 1))
        g.I('v_cvt_pk_bf16_f32 v%d, v%d, v%d' % (17 + 2 * i, KR + 4 * i + 2, KR + 4 * i + 3))
        g.I('ds_write_b64 v%d, %s offset:%d' % (vT2, vr(16 + 2 * i, 2), L_Q + i * 512))
    g.I('v_mov_b32 v%d, 2' % vT3)
    g.I('s_waitcnt lgkmcnt(0)')
    g.I('ds_write_b32 v%d, v%d offset:%d' % (vZERO, vT3, L_FLAG))


def wait_flag(g, val):
    lp = g.newlabel('L_fl')
    dn = g.newlabel('L_fld')
    g.label(lp)
    g.I('ds_read_b32 v%d, v%d offset:%d' % (vT0, vZERO, L_FLAG))
    g.I('s_waitcnt lgkmcnt(0)')
    g.I('v_readfirstlane_b32 s%d, v%d' % (sA, vT0))
    g.I('s_nop 3')
    g.I('s_cmp_ge_u32 s%d, %d' % (sA, val))
    g.I('s_cbranch_scc1 %s' % dn)
    spin_guard(g, dn)
    g.I('s_sleep 1')
    g.I('s_branch %s' % lp)
    g.label(dn)


def main_path(g, w0):
    W = P['W0'] if w0 else P['W']
    ntk, ntv, ntw = P['NT_K'], P['NT_V'], P['NT_W']
    g.comment('---------------- main path (wave0=%s)' % w0)
    stamp(g, 'main_start')

    def kload(t, i):
        if i == 0:
            koff = {0: t * 4096, 1: ((t >> 1) << 22) + (t & 1) * 4096, 2: t << 21}[P['ILV']]
            g.I('s_add_u32 s%d, s%d, 0x%x' % (sT, sKV, koff))
        g.vmem('buffer_load_dwordx4 %s, v%d, %s, s%d offen offset:%d%s' % (vr(KR + (t * 4 + i) * 4), vKOFF, sq(SRD_K), sT, i * 64, ntk),
               'k%d' % t, W)

    def vbase(T):
        return VA + 32 * T if T < 2 else KR + 32 * (T - 2)

    def vload(T, e):
        if P['ILV'] == 2:
            g.I('s_add_u32 s%d, s%d, 0x%x' % (sT2, sKV, (T * 8 + e) << 19))
            g.vmem('buffer_load_dwordx4 %s, v%d, %s, s%d offen%s' % (vr(vbase(T) + e * 4), vVOFF, sq(SRD_V), sT2, ntv),
                   'v%d' % T, W)
            return
        if e % 4 == 0:
            g.I('s_add_u32 s%d, s%d, 0x%x' % (sT2, sKV, ((T << 22) if P['ILV'] else T * 8192) + (e // 4) * 4096))
        g.vmem('buffer_load_dwordx4 %s, v%d, %s, s%d offen offset:%d%s' % (vr(vbase(T) + e * 4), vVOFF, sq(SRD_V), sT2, (e % 4) * 1024, ntv),
               'v%d' % T, W)

    if not w0:
        GR = VA
        vGO = vT2
        g.I('s_mov_b32 s%d, 57344' % sA)
        g.I('v_mul_lo_u32 v%d, v%d, s%d' % (vGO, vJ, sA))
        g.I('v_lshl_add_u32 v%d, v%d, 4, v%d' % (vGO, vN, vGO))
        g.I('s_mul_i32 s%d, s%d, %d' % (sA, sH, 32 * 7168))
        g.I('s_and_b32 s%d, s%d, 3' % (sB, sCB))
        g.I('s_mul_i32 s%d, s%d, 1792' % (sB, sB))
        g.I('s_add_u32 s%d, s%d, s%d' % (sA, sA, sB))
        g.I('s_lshl_b32 s%d, s%d, 8' % (sB, sWAVE))
        g.I('s_add_u32 s%d, s%d, s%d' % (sA, sA, sB))
        g.I('s_sub_u32 s%d, s%d, 256' % (sA, sA))
        for e in range(8):
            g.I('s_add_u32 s%d, s%d, %d' % (sT, sA, e * 7168))
            g.vmem('buffer_load_dwordx4 %s, v%d, %s, s%d offen%s' % (vr(GR + 4 * e), vGO, sq(SRD_GU), sT, ntw), 'g', W)
            if e == min(W, 8) - 1:
                g.I('s_barrier')
    n = 0
    for t in range(8):
        for i in range(4):
            kload(t, i)
            n += 1
            if not w0 and n == P['KG']:
                wait_flag(g, 1)
                stamp(g, 'xn_ready')
                g.I('v_lshlrev_b32 v%d, 4, v%d' % (vT0, vJ))
                g.I('s_lshl_b32 s%d, s%d, 6' % (sA, sH))
                g.I('v_add_u32 v%d, s%d, v%d' % (vT0, sA, vT0))
                g.I('ds_read_b128 %s, v%d offset:%d' % (vr(QF), vT0, L_XN))
                g.I('s_waitcnt lgkmcnt(0)')
                g.vm_wait('g')
                tile32(g, GR, QF, SA, True, frag_is_A=True, PT=VA + 32)
                for dd in range(8):
                    g.I('v_mov_b32 v%d, v%d' % (QF + 8 + dd, SA + 4 * dd))
                g.I('s_mul_i32 s%d, s%d, 28672' % (sA, sH))
                g.I('s_mul_i32 s%d, s%d, 3584' % (sB, sCB))
                g.I('s_add_u32 s%d, s%d, s%d' % (sA, sA, sB))
                g.I('s_lshl_b32 s%d, s%d, 9' % (sB, sWAVE))
                g.I('s_add_u32 s%d, s%d, s%d' % (sA, sA, sB))
                g.I('s_add_u32 s%d, s%d, 0x%x' % (sA, sA, WS_GP - 512))
                g.I('v_lshlrev_b32 v%d, 5, v%d' % (vT0, vN))
                g.I('s_mov_b64 exec, 0xffff')
                g.vmem('buffer_store_dwordx4 %s, v%d, %s, s%d offen sc1' % (vr(QF + 8), vT0, sq(SRD_WS), sA), 'gp')
                g.vmem('buffer_store_dwordx4 %s, v%d, %s, s%d offen offset:16 sc1' % (vr(QF + 12), vT0, sq(SRD_WS), sA), 'gp')
                g.I('s_mov_b64 exec, -1')
                stamp(g, 'gu_done')
                if i != 3:
                    koff = {0: t * 4096, 1: ((t >> 1) << 22) + (t & 1) * 4096, 2: t << 21}[P['ILV']]
                    g.I('s_add_u32 s%d, s%d, 0x%x' % (sT, sKV, koff))
    pend = [(T, e) for T in range(4) for e in range(8)]

    def issue(nn):
        for _ in range(nn):
            if pend:
                T, e = pend.pop(0)
                vload(T, e)

    def issue_through(T):
        while pend and pend[0][0] <= T:
            issue(1)

    issue(P['QPOS0'] if w0 else P['QPOS'])
    stamp(g, 'kv_issued')
    if not w0:
        wait_flag(g, 2)
    g.I('v_and_b32 v%d, 7, v%d' % (vT0, vN))
    g.I('v_lshlrev_b32 v%d, 8, v%d' % (vT0, vT0))
    g.I('v_lshl_add_u32 v%d, v%d, 4, v%d' % (vT0, vJ, vT0))
    for i in range(4):
        g.I('ds_read_b128 %s, v%d offset:%d' % (vr(QF + 4 * i), vT0, L_Q + i * 64))
    g.I('s_waitcnt lgkmcnt(0)')
    stamp(g, 'q_ready')
    for t in range(8):
        g.vm_wait('k%d' % t)
        for i in range(4):
            c = '0' if i == 0 else vr(SA + 4 * t)
            g.I('v_mfma_f32_16x16x32_bf16 %s, %s, %s, %s' % (vr(SA + 4 * t), vr(KR + (t * 4 + i) * 4), vr(QF + 4 * i), c))
    stamp(g, 'qk_done')
    for r in range(0, 32, 2):
        a, b = SA + r, SA + r + 1
        bf_round2(g, a, b, vT0)
        g.I('v_mul_f32 v%d, s%d, v%d' % (a, sSCALE, a))
        g.I('v_mul_f32 v%d, s%d, v%d' % (b, sSCALE, b))
        bf_round2(g, a, b, vT1)
        if r == 0:
            g.I('v_max_f32 v%d, v%d, v%d' % (vM, a, b))
        else:
            g.I('v_max3_f32 v%d, v%d, v%d, v%d' % (vM, vM, a, b))
        if r % 8 == 6:
            issue(1)
    xrow_allreduce(g, 'v_max_f32', vM, vT0)
    for r in range(32):
        a = SA + r
        g.I('v_sub_f32 v%d, v%d, v%d' % (a, a, vM))
        g.I('v_mul_f32 v%d, s%d, v%d' % (a, sLOG2E, a))
        g.I('v_exp_f32 v%d, v%d' % (a, a))
        if r % 8 == 7:
            issue(1)
    g.I('v_add_f32 v%d, v%d, v%d' % (vL, SA, SA + 1))
    for r in range(2, 32):
        g.I('v_add_f32 v%d, v%d, v%d' % (vL, vL, SA + r))
    for r in range(0, 32, 2):
        g.I('v_cvt_pk_bf16_f32 v%d, v%d, v%d' % (PF + r // 2, SA + r, SA + r + 1))
    xrow_allreduce(g, 'v_add_f32', vL, vT0)
    WOR, WDR = VA + 32, VA + 48
    vWOO, vWDO = vT3, vT4
    g.I('v_lshlrev_b32 v%d, 11, v%d' % (vWOO, vJ))
    g.I('v_lshl_add_u32 v%d, v%d, 4, v%d' % (vWOO, vN, vWOO))
    g.I('v_lshlrev_b32 v%d, 13, v%d' % (vWDO, vJ))
    g.I('v_lshl_add_u32 v%d, v%d, 4, v%d' % (vWDO, vN, vWDO))
    stamp(g, 'sm_done')
    for T in range(4):
        issue_through(min(T + 1, 3))
        g.vm_wait('v%d' % T)
        if T == P['TW']:
            WW = P['WT']
            if not w0:
                g.I('s_mul_i32 s%d, s%d, 112' % (sA, sH))
                g.I('s_lshl_b32 s%d, s%d, 4' % (sB, sWAVE))
                g.I('s_add_u32 s%d, s%d, s%d' % (sA, sA, sB))
                g.I('s_sub_u32 s%d, s%d, 16' % (sE, sA))
                g.I('s_lshl_b32 s%d, s%d, 11' % (sA, sE))
                g.I('s_lshl_b32 s%d, s%d, 8' % (sB, sCB))
                g.I('s_add_u32 s%d, s%d, s%d' % (sA, sA, sB))
                for e in range(4):
                    g.I('s_add_u32 s%d, s%d, %d' % (sT, sA, e * 2048))
                    g.vmem('buffer_load_dwordx4 %s, v%d, %s, s%d offen%s' % (vr(WDR + 4 * e), vWDO, sq(SRD_WD), sT, ntw), 'wd', WW)
            g.I('s_lshl_b32 s%d, s%d, 7' % (sA, sH))
            g.I('s_lshr_b32 s%d, s%d, 1' % (sB, sWAVE))
            g.I('s_lshl_b32 s%d, s%d, 5' % (sB, sB))
            g.I('s_add_u32 s%d, s%d, s%d' % (sA, sA, sB))
            g.I('s_and_b32 s%d, s%d, 1' % (sB, sWAVE))
            g.I('s_lshl_b32 s%d, s%d, 2' % (sB, sB))
            g.I('s_add_u32 s%d, s%d, s%d' % (sA, sA, sB))
            g.I('s_lshl_b32 s%d, s%d, 11' % (sA, sA))
            g.I('s_lshl_b32 s%d, s%d, 8' % (sB, sCB))
            g.I('s_add_u32 s%d, s%d, s%d' % (sA, sA, sB))
            for e in range(4):
                g.I('s_add_u32 s%d, s%d, %d' % (sT, sA, e * 16384))
                g.vmem('buffer_load_dwordx4 %s, v%d, %s, s%d offen%s' % (vr(WOR + 4 * e), vWOO, sq(SRD_WO), sT, ntw), 'wo', WW)
        tile32(g, vbase(T), PF + 4 * T, OA, T == 0, frag_is_A=False)
    stamp(g, 'pv_done')
    g.I('s_mul_i32 s%d, s%d, 4224' % (sA, sWAVE))
    g.I('v_mul_u32_u24 v%d, 528, v%d' % (vT0, vN))
    g.I('v_lshl_add_u32 v%d, v%d, 7, v%d' % (vT0, vJ, vT0))
    g.I('v_add_u32 v%d, s%d, v%d' % (vT0, sA, vT0))
    g.I('s_mov_b32 s%d, 0x00ff00ff' % sEX)
    g.I('s_mov_b32 s%d, 0x00ff00ff' % (sEX + 1))
    g.I('s_mov_b64 exec, s[%d:%d]' % (sEX, sEX + 1))
    for dd in range(8):
        g.I('ds_write_b128 v%d, %s offset:%d' % (vT0, vr(OA + 4 * dd), L_OW + dd * 16))
    g.I('s_mov_b64 exec, 0xff')
    g.I('s_lshl_b32 s%d, s%d, 6' % (sA, sWAVE))
    g.I('v_lshlrev_b32 v%d, 3, v%d' % (vT1, vLANE))
    g.I('v_add_u32 v%d, s%d, v%d' % (vT1, sA, vT1))
    g.I('ds_write_b64 v%d, %s offset:%d' % (vT1, vr(vM, 2), L_ML))
    g.I('s_mov_b64 exec, -1')
    g.I('s_waitcnt lgkmcnt(0)')
    g.I('s_barrier')
    stamp(g, 'b3')
    CO = OA
    CM = OA + 16
    g.I('s_mul_i32 s%d, s%d, 528' % (sA, sWAVE))
    g.I('v_lshlrev_b32 v%d, 3, v%d' % (vT0, vLANE))
    g.I('v_add_u32 v%d, s%d, v%d' % (vT1, sA, vT0))
    g.I('s_lshl_b32 s%d, s%d, 3' % (sA, sWAVE))
    g.I('v_mov_b32 v%d, s%d' % (vT5, sA))
    for w in range(8):
        g.I('ds_read_b64 %s, v%d offset:%d' % (vr(CM + 2 * w, 2), vT5, L_ML + w * 64))
    for w in range(8):
        g.I('ds_read_b64 %s, v%d offset:%d' % (vr(CO + 2 * w, 2), vT1, L_OW + w * 4224))
    g.I('s_waitcnt lgkmcnt(0)')
    g.I('v_max3_f32 v%d, v%d, v%d, v%d' % (vM, CM, CM + 2, CM + 4))
    g.I('v_max3_f32 v%d, v%d, v%d, v%d' % (vM, vM, CM + 6, CM + 8))
    g.I('v_max3_f32 v%d, v%d, v%d, v%d' % (vM, vM, CM + 10, CM + 12))
    g.I('v_max_f32 v%d, v%d, v%d' % (vM, vM, CM + 14))
    for w in range(8):
        m = CM + 2 * w
        g.I('v_sub_f32 v%d, v%d, v%d' % (m, m, vM))
        g.I('v_mul_f32 v%d, s%d, v%d' % (m, sLOG2E, m))
        g.I('v_exp_f32 v%d, v%d' % (m, m))
    R0, R1 = PT, PT + 1
    for w in range(8):
        m = CM + 2 * w
        if w == 0:
            g.I('v_mul_f32 v%d, v%d, v%d' % (R0, m, CO))
            g.I('v_mul_f32 v%d, v%d, v%d' % (R1, m, CO + 1))
            g.I('v_mul_f32 v%d, v%d, v%d' % (vL, m, m + 1))
        else:
            g.I('v_fmac_f32 v%d, v%d, v%d' % (R0, m, CO + 2 * w))
            g.I('v_fmac_f32 v%d, v%d, v%d' % (R1, m, CO + 2 * w + 1))
            g.I('v_fmac_f32 v%d, v%d, v%d' % (vL, m, m + 1))
    g.I('v_lshrrev_b32 v%d, 3, v%d' % (vT0, vLANE))
    g.I('v_lshlrev_b32 v%d, 12, v%d' % (vT0, vT0))
    g.I('v_and_b32 v%d, 7, v%d' % (vT1, vLANE))
    g.I('v_lshl_add_u32 v%d, v%d, 3, v%d' % (vT0, vT1, vT0))
    g.I('s_lshl_b32 s%d, s%d, 18' % (sA, sG))
    g.I('s_lshl_b32 s%d, s%d, 15' % (sB, sWAVE))
    g.I('s_add_u32 s%d, s%d, s%d' % (sA, sA, sB))
    g.I('s_and_b32 s%d, s2, 63' % sB)
    g.I('s_lshl_b32 s%d, s%d, 6' % (sB, sB))
    g.I('s_add_u32 s%d, s%d, s%d' % (sA, sA, sB))
    g.I('s_add_u32 s%d, s%d, 0x%x' % (sA, sA, WS_AP))
    g.vmem('buffer_store_dwordx2 %s, v%d, %s, s%d offen sc1' % (vr(R0, 2), vT0, sq(SRD_WS), sA), 'ap')
    g.I('s_lshl_b32 s%d, s%d, 9' % (sB, sWAVE))
    g.I('s_lshl_b32 s%d, s%d, 12' % (sA, sG))
    g.I('s_add_u32 s%d, s%d, s%d' % (sA, sA, sB))
    g.I('s_and_b32 s%d, s2, 63' % sB)
    g.I('s_lshl_b32 s%d, s%d, 3' % (sB, sB))
    g.I('s_add_u32 s%d, s%d, s%d' % (sA, sA, sB))
    g.I('s_add_u32 s%d, s%d, 0x%x' % (sA, sA, WS_ML))
    g.I('s_mov_b64 exec, 1')
    g.vmem('buffer_store_dwordx2 %s, v%d, %s, s%d offen sc1' % (vr(vM, 2), vZERO, sq(SRD_WS), sA), 'ml')
    g.I('s_mov_b64 exec, -1')
    stamp(g, 'ap_stored')
    WDA = KR
    MLr = KR + 32
    AD = KR + 40
    g.I('s_lshl_b32 s%d, s%d, 9' % (sF, sH))
    g.I('s_add_u32 s%d, s%d, 0x%x' % (sF, sF, WS_ML))
    if not w0:
        HD = KR + 32
        g.I('s_mov_b32 s%d, 28672' % sT)
        g.I('v_mul_lo_u32 v%d, v%d, s%d' % (vT3, vN, sT))
        g.I('v_lshl_add_u32 v%d, v%d, 4, v%d' % (vT3, vJ, vT3))
        g.I('s_lshl_b32 s%d, s%d, 2' % (90, sE))
        g.I('s_add_u32 s%d, s%d, 0x%x' % (90, 90, WS_GP))
        g.I('s_add_u32 s%d, s%d, %d' % (91, 90, 16 * 28672))
        g.I('s_add_u32 s%d, s%d, %d' % (92, 90, 14336))
        g.I('s_add_u32 s%d, s%d, %d' % (93, 90, 14336 + 16 * 28672))
        poll_valid(g, ['buffer_load_dwordx4 %s, v%d, %s, s%d offen sc1' % (vr(HD + 4 * i), vT3, sq(SRD_WS), 90 + i)
                       for i in range(4)], range(HD, HD + 16), vT1)
        GG, UU = HD, HD + 8
        for c in range(4):
            g.I('v_add_f32 v%d, v%d, v%d' % (GG + c, GG + c, GG + 4 + c))
            g.I('v_add_f32 v%d, v%d, v%d' % (UU + c, UU + c, UU + 4 + c))
        row_allreduce_multi(g, 'v_add_f32', [GG + c for c in range(4)] + [UU + c for c in range(4)])
        for c in range(0, 4, 2):
            bf_round2(g, GG + c, GG + c + 1, vT0)
            bf_round2(g, UU + c, UU + c + 1, vT0)
        k0 = 0.7978845608028654
        k1 = 0.044715
        c2 = -2.0 * k0 * 1.4426950408889634
        for c in range(4):
            x = GG + c
            t = GG + 4 + c
            g.I('v_mul_f32 v%d, v%d, v%d' % (t, x, x))
            g.I('v_mul_f32 v%d, v%d, v%d' % (t, t, x))
            g.I('v_mul_f32 v%d, %s, v%d' % (t, f32(k1), t))
            g.I('v_add_f32 v%d, v%d, v%d' % (t, t, x))
            g.I('v_mul_f32 v%d, %s, v%d' % (t, f32(c2), t))
            g.I('v_exp_f32 v%d, v%d' % (t, t))
            g.I('v_add_f32 v%d, 1.0, v%d' % (t, t))
            g.I('v_rcp_f32 v%d, v%d' % (t, t))
            g.I('v_mul_f32 v%d, v%d, v%d' % (x, x, t))
        for c in range(0, 4, 2):
            bf_round2(g, GG + c, GG + c + 1, vT0)
        for c in range(4):
            g.I('v_mul_f32 v%d, v%d, v%d' % (GG + c, GG + c, UU + c))
        HFR = QF + 6
        g.I('v_cvt_pk_bf16_f32 v%d, v%d, v%d' % (HFR, GG, GG + 1))
        g.I('v_cvt_pk_bf16_f32 v%d, v%d, v%d' % (HFR + 1, GG + 2, GG + 3))
        tile16(g, WDR, HFR, WDA)
    else:
        PR = PT
        g.I('v_lshlrev_b32 v%d, 3, v%d' % (vT3, vLANE))
        poll_valid(g, ['buffer_load_dwordx2 %s, v%d, %s, s%d offen sc1' % (vr(PR, 2), vT3, sq(SRD_WS), sF)],
                   range(PR, PR + 2), vT1, sleep=P['TSLEEP'])
    stamp(g, 'pre_b5')
    g.I('s_barrier')
    loads = []
    g.I('v_lshlrev_b32 v%d, 3, v%d' % (vT0, vN))
    loads += ['buffer_load_dwordx2 %s, v%d, %s, s%d offen offset:%d sc1' % (vr(MLr + 2 * i, 2), vT0, sq(SRD_WS), sF, i * 128)
              for i in range(4)]
    g.I('v_lshlrev_b32 v%d, 6, v%d' % (vT2, vN))
    g.I('v_lshl_add_u32 v%d, v%d, 4, v%d' % (vT2, vJ, vT2))
    g.I('s_lshl_b32 s%d, s%d, 15' % (sA, sH))
    g.I('s_lshl_b32 s%d, s%d, 12' % (sB, sWAVE))
    g.I('s_add_u32 s%d, s%d, s%d' % (sA, sA, sB))
    g.I('s_add_u32 s%d, s%d, 0x%x' % (sA, sA, WS_AP))
    loads += ['buffer_load_dwordx4 %s, v%d, %s, s%d offen offset:%d sc1' % (vr(AD + 4 * i), vT2, sq(SRD_WS), sA, i * 1024)
              for i in range(4)]
    poll_valid(g, loads, range(MLr, MLr + 24), vT1)
    stamp(g, 'ml_ok')
    g.I('v_max3_f32 v%d, v%d, v%d, v%d' % (vM, MLr, MLr + 2, MLr + 4))
    g.I('v_max_f32 v%d, v%d, v%d' % (vM, vM, MLr + 6))
    row_allreduce(g, 'v_max_f32', vM)
    for i in range(4):
        m = MLr + 2 * i
        g.I('v_sub_f32 v%d, v%d, v%d' % (m, m, vM))
        g.I('v_mul_f32 v%d, s%d, v%d' % (m, sLOG2E, m))
        g.I('v_exp_f32 v%d, v%d' % (m, m))
    OC = QF
    for i in range(4):
        m = MLr + 2 * i
        op = 'v_mul_f32' if i == 0 else 'v_fmac_f32'
        g.I('%s v%d, v%d, v%d' % (op, vL, m, m + 1))
        for c in range(4):
            g.I('%s v%d, v%d, v%d' % (op, OC + c, m, AD + 4 * i + c))
    row_allreduce_multi(g, 'v_add_f32', [vL, OC, OC + 1, OC + 2, OC + 3])
    g.I('v_rcp_f32 v%d, v%d' % (vT0, vL))
    for c in range(4):
        x = OC + c
        g.I('v_mul_f32 v%d, v%d, v%d' % (vT1, x, vT0))
        g.I('v_fma_f32 v%d, -v%d, v%d, v%d' % (vT5, vT1, vL, x))
        g.I('v_fma_f32 v%d, v%d, v%d, v%d' % (x, vT5, vT0, vT1))
    OFR = QF + 4
    g.I('v_cvt_pk_bf16_f32 v%d, v%d, v%d' % (OFR, OC, OC + 1))
    g.I('v_cvt_pk_bf16_f32 v%d, v%d, v%d' % (OFR + 1, OC + 2, OC + 3))
    WOA = OA
    tile16(g, WOR, OFR, WOA)
    stamp(g, 'wo_done')
    stamp(g, 'wd_done')
    F = VA
    for dd in range(8):
        g.I('v_mov_b32 v%d, v%d' % (F + dd, WOA + 4 * dd))
    for dd in range(8):
        if w0:
            g.I('v_mov_b32 v%d, 0' % (F + 8 + dd))
        else:
            g.I('v_mov_b32 v%d, v%d' % (F + 8 + dd, WDA + 4 * dd))
    g.I('s_lshl_b32 s%d, s%d, 10' % (sA, sWAVE))
    g.I('v_lshlrev_b32 v%d, 5, v%d' % (vT0, vN))
    g.I('v_add_u32 v%d, s%d, v%d' % (vT0, sA, vT0))
    g.I('s_mov_b64 exec, 0xffff')
    g.I('ds_write_b128 v%d, %s offset:%d' % (vT0, vr(F), L_FR))
    g.I('ds_write_b128 v%d, %s offset:%d' % (vT0, vr(F + 4), L_FR + 16))
    g.I('ds_write_b128 v%d, %s offset:%d' % (vT0, vr(F + 8), L_FR + 512))
    g.I('ds_write_b128 v%d, %s offset:%d' % (vT0, vr(F + 12), L_FR + 528))
    g.I('s_mov_b64 exec, -1')
    g.I('s_waitcnt lgkmcnt(0)')
    g.I('s_barrier')
    stamp(g, 'b4')
    if not w0:
        stamp_store(g)
        g.I('s_endpgm')
        return
    g.I('s_lshl_b32 s%d, s%d, 8' % (sF, sCB))
    g.I('s_lshl_b32 s%d, s%d, 3' % (sB, sH))
    g.I('s_add_u32 s%d, s%d, s%d' % (sF, sF, sB))
    XV = QF + 8
    g.vmem('buffer_load_dwordx2 %s, v%d, %s, s%d offen' % (vr(XV, 2), vZERO, sq(SRD_X), sF), 'xv')
    RD = KR
    for w in range(8):
        g.I('ds_read_b128 %s, v%d offset:%d' % (vr(RD + 4 * w), vVOFF, L_FR + w * 1024))
    g.I('s_waitcnt lgkmcnt(0)')
    for w in range(1, 8):
        for c in range(4):
            g.I('v_add_f32 v%d, v%d, v%d' % (RD + c, RD + c, RD + 4 * w + c))
    g.I('s_lshl_b32 s%d, s%d, 15' % (sA, sCB))
    g.I('s_add_u32 s%d, s%d, 0x%x' % (sA, sA, WS_FP))
    g.I('s_lshl_b32 s%d, s%d, 10' % (sB, sH))
    g.I('s_add_u32 s%d, s%d, s%d' % (sB, sA, sB))
    g.vmem('buffer_store_dwordx4 %s, v%d, %s, s%d offen sc1' % (vr(RD), vVOFF, sq(SRD_WS), sB), 'fp')
    g.I('v_and_b32 v%d, 31, v%d' % (vT0, vLANE))
    g.I('v_lshlrev_b32 v%d, 10, v%d' % (vT0, vT0))
    g.I('v_lshrrev_b32 v%d, 5, v%d' % (vT1, vLANE))
    g.I('v_lshl_add_u32 v%d, v%d, 9, v%d' % (vT0, vT1, vT0))
    g.I('s_lshl_b32 s%d, s%d, 4' % (sB, sH))
    g.I('s_add_u32 s%d, s%d, s%d' % (sA, sA, sB))
    FD = KR + 32
    poll_valid(g, ['buffer_load_dwordx4 %s, v%d, %s, s%d offen sc1' % (vr(FD), vT0, sq(SRD_WS), sA)], range(FD, FD + 4), vT1)
    row_allreduce_multi(g, 'v_add_f32', [FD + c for c in range(4)])
    FE = FD + 4
    for c in range(4):
        g.I('v_mov_b32 v%d, v%d' % (FE + c, FD + c))
    for c in range(4):
        g.I('v_permlane16_swap_b32 v%d, v%d' % (FD + c, FE + c))
    for c in range(4):
        g.I('v_add_f32 v%d, v%d, v%d' % (FD + c, FD + c, FE + c))
    for c in range(4):
        g.I('v_mov_b32 v%d, v%d' % (FE + c, FD + c))
    for c in range(4):
        g.I('v_permlane32_swap_b32 v%d, v%d' % (FD + c, FE + c))
    XF = FD + 8
    for d in range(2):
        g.I('v_lshlrev_b32 v%d, 16, v%d' % (XF + 2 * d, XV + d))
        g.I('v_and_b32 v%d, 0xffff0000, v%d' % (XF + 2 * d + 1, XV + d))
    for c in range(0, 4, 2):
        bf_round2(g, FD + c, FD + c + 1, vT0)
        bf_round2(g, FE + c, FE + c + 1, vT0)
    for c in range(4):
        g.I('v_add_f32 v%d, v%d, v%d' % (FD + c, FD + c, XF + c))
    for c in range(0, 4, 2):
        bf_round2(g, FD + c, FD + c + 1, vT0)
    for c in range(4):
        g.I('v_add_f32 v%d, v%d, v%d' % (FD + c, FD + c, FE + c))
    g.I('v_cvt_pk_bf16_f32 v%d, v%d, v%d' % (XF, FD, FD + 1))
    g.I('v_cvt_pk_bf16_f32 v%d, v%d, v%d' % (XF + 1, FD + 2, FD + 3))
    g.I('s_mov_b64 exec, 1')
    g.I('buffer_store_dwordx2 %s, v%d, %s, s%d offen' % (vr(XF, 2), vZERO, sq(SRD_OUT), sF))
    stamp(g, 'end')
    stamp_store(g)
    g.I('s_endpgm')


def build():
    g = Gen()
    hdr = open('cdna_kernels/%s.s.ref' % NAME).read().split('\n')
    out = []
    for ln in hdr:
        if ln.startswith('; @launch'):
            out.append('; @launch grid=(256,1,1) block=(512,1,1) lds=%d' % LDS_BYTES)
        elif ln.startswith(';'):
            out.append(ln)
        else:
            break
    out.append('.amdgcn_target "amdgcn-amd-amdhsa--gfx950"')
    out.append('.text')
    out.append('.globl %s_kernel' % NAME)
    out.append('.p2align 8')
    out.append('.type %s_kernel,@function' % NAME)
    out.append('%s_kernel:' % NAME)
    g.I('s_cmp_ge_u32 s2, 256')
    g.I('s_cbranch_scc1 L_end')
    g.I('s_load_dwordx16 s[8:23], s[0:1], 0')
    g.I('s_load_dwordx8 s[24:31], s[0:1], 64')
    g.I('v_lshrrev_b32 v1, 6, v0')
    g.I('v_and_b32 v0, 63, v0')
    g.I('v_readfirstlane_b32 s%d, v1' % sWAVE)
    g.I('v_and_b32 v%d, 15, v0' % vN)
    g.I('v_lshrrev_b32 v%d, 4, v0' % vJ)
    g.I('v_and_b32 v%d, 3, v%d' % (vKOFF, vN))
    g.I('v_lshlrev_b32 v%d, %d, v%d' % (vKOFF, 19 if P['ILV'] == 2 else 10, vKOFF))
    g.I('v_lshrrev_b32 v%d, 2, v%d' % (vT0, vN))
    g.I('v_lshl_add_u32 v%d, v%d, 8, v%d' % (vKOFF, vT0, vKOFF))
    g.I('v_lshl_add_u32 v%d, v%d, 4, v%d' % (vKOFF, vJ, vKOFF))
    g.I('v_lshlrev_b32 v%d, 4, v0' % vVOFF)
    g.I('v_mov_b32 v%d, 0' % vZERO)
    if P['ILV']:
        sh = 3 if P['ILV'] == 2 else 0
        g.I('s_lshr_b32 s%d, s2, 6' % sKV)
        g.I('s_lshl_b32 s%d, s%d, 24' % (sKV, sKV))
        g.I('s_and_b32 s%d, s2, 63' % sT)
        g.I('s_lshl_b32 s%d, s%d, %d' % (sT, sT, 16 - sh))
        g.I('s_add_u32 s%d, s%d, s%d' % (sKV, sKV, sT))
        g.I('s_lshl_b32 s%d, s%d, %d' % (sT, sWAVE, 13 - sh))
        g.I('s_add_u32 s%d, s%d, s%d' % (sKV, sKV, sT))
    else:
        g.I('s_lshl_b32 s%d, s2, 18' % sKV)
        g.I('s_lshl_b32 s%d, s%d, 15' % (sT, sWAVE))
        g.I('s_add_u32 s%d, s%d, s%d' % (sKV, sKV, sT))
    g.I('s_lshr_b32 s%d, s2, 3' % sH)
    g.I('s_and_b32 s%d, s2, 7' % sCB)
    g.I('s_lshr_b32 s%d, s2, 6' % sG)
    g.I('s_mov_b32 s%d, 0' % sCNT)
    g.I('s_mov_b32 s%d, 0x05040100' % sSEL0)
    g.I('s_mov_b32 s%d, 0x07060302' % sSEL1)
    g.I('s_mov_b32 s%d, %s' % (sSCALE, f32(128 ** -0.5)))
    g.I('s_mov_b32 s%d, %s' % (sLOG2E, f32(1.4426950408889634)))
    g.I('s_waitcnt lgkmcnt(0)')
    srd(g, SRD_K, 10, 1 << 26)
    srd(g, SRD_V, 12, 1 << 26)
    srd(g, SRD_X, 8, 2048)
    srd(g, SRD_WQ, 14, 1 << 23)
    srd(g, SRD_WO, 16, 1 << 23)
    g.I('s_cmp_lt_u32 s%d, 4' % sCB)
    g.I('s_cselect_b32 s%d, s20, s22' % SRD_GU)
    g.I('s_cselect_b32 s%d, s21, s23' % (SRD_GU + 1))
    g.I('s_and_b32 s%d, s%d, 0xffff' % (SRD_GU + 1, SRD_GU + 1))
    g.I('s_mov_b32 s%d, 0x%x' % (SRD_GU + 2, 1024 * 3584 * 2))
    g.I('s_mov_b32 s%d, 0x00020000' % (SRD_GU + 3))
    srd(g, SRD_WD, 24, 3584 * 1024 * 2)
    srd(g, SRD_OUT, 26, 2048)
    srd(g, SRD_DBG, 28, 256)
    srd(g, SRD_WS, 30, WS_SIZE)
    g.I('v_mov_b32 v%d, 0' % vST)
    stamp(g, 'entry')
    g.I('s_cmp_eq_u32 s%d, 0' % sWAVE)
    g.I('s_cbranch_scc1 L_wave0')
    g.fence()
    main_path(g, False)
    g.label('L_wave0')
    g.vm_reset()
    prologue_wave0(g)
    main_path(g, True)
    g.label('L_end')
    g.I('s_endpgm')
    out.append(g.text())
    out.append('.section .rodata,"a"')
    out.append('.p2align 6')
    out.append('.amdhsa_kernel %s_kernel' % NAME)
    out.append('  .amdhsa_next_free_vgpr 256')
    out.append('  .amdhsa_next_free_sgpr 102')
    out.append('  .amdhsa_accum_offset 256')
    out.append('  .amdhsa_group_segment_fixed_size 0')
    out.append('  .amdhsa_kernarg_size 96')
    out.append('  .amdhsa_user_sgpr_count 2')
    out.append('  .amdhsa_user_sgpr_kernarg_segment_ptr 1')
    out.append('  .amdhsa_system_sgpr_workgroup_id_x 1')
    out.append('  .amdhsa_float_denorm_mode_32 3')
    out.append('.end_amdhsa_kernel')
    return '\n'.join(out) + '\n'


if __name__ == '__main__':
    dst = sys.argv[1] if len(sys.argv) > 1 else 'cdna_kernels/%s.s' % NAME
    open(dst, 'w').write(build())
    print('wrote', dst)
    if P.get('STAMPS'):
        open(dst + '.stamps', 'w').write('\n'.join(STAMP_NAMES))
```

```python
import sys
import struct
from dsl import Gen

NAME = 'parallel_sum__gqa_block_cached__geglu_ffn__decode'

P = dict(
    W=4,
    W0=10,
    WP=16,
    NT_K='',
    NT_V=' nt',
    NT_W=' nt',
    SLEEP=1,
    QSLEEP=4,
    TW=3,
    WT=8,
    KG=16,
    REMAP=1,
    PLAIN=0,
    WV=0,
    WVT=2,
    QPOS=6,
    QPOS0=8,
    TSLEEP=4,
    ILV=2,
    QPOLL=' sc1',
)
for a in sys.argv[2:]:
    k, v = a.split('=')
    P[k] = int(v) if v.lstrip('-').isdigit() else v


def f32(x):
    return '0x%08x' % struct.unpack('<I', struct.pack('<f', x))[0]


L_XN = 0
L_Q = 2048
L_FLAG = 4096
L_OW = 8192
L_ML = L_OW + 8 * 4224
L_FR = L_ML + 512
LDS_BYTES = L_FR + 8192

WS_QP = 0
WS_AP = 0x100000
WS_ML = 0x200000
WS_GP = 0x300000
WS_FP = 0x400000
WS_MB = 0x440000
WS_SIZE = 0x500000

sWAVE = 3
sKV = 4
sT = 5
sT2 = 6
sCNT = 7
SRD_K, SRD_V, SRD_WQ, SRD_WO, SRD_GU, SRD_WD, SRD_WS, SRD_X, SRD_OUT, SRD_DBG = 32, 36, 40, 44, 48, 52, 56, 60, 64, 68
sSEL0, sSEL1 = 72, 73
sSCALE, sLOG2E = 74, 75
sH = 76
sCB = 77
sG = 78
sA, sB, sC, sD = 80, 81, 82, 83
sE, sF = 84, 85
sEX = 86

vLANE, vN, vJ = 0, 2, 3
vKOFF, vVOFF = 4, 5
vT0, vT1, vT2, vT3, vT4, vT5 = 6, 7, 8, 9, 10, 11
vZERO = 12
vM, vL = 14, 15
QF = 16
SA = 32
VA = 64
KR = 128
OA = 192
PT = 224
PF = 240

SPIN_MAX = 200000


def srd(g, d, ptr, size):
    g.I('s_mov_b32 s%d, s%d' % (d, ptr))
    g.I('s_and_b32 s%d, s%d, 0xffff' % (d + 1, ptr + 1))
    g.I('s_mov_b32 s%d, 0x%x' % (d + 2, size))
    g.I('s_mov_b32 s%d, 0x00020000' % (d + 3))


def vr(a, n=4):
    return 'v[%d:%d]' % (a, a + n - 1)


def sq(d):
    return 's[%d:%d]' % (d, d + 3)


def row_allreduce(g, op, v, tmp=None):
    for r in (1, 2, 4, 8):
        g.I('%s_dpp v%d, v%d, v%d row_ror:%d row_mask:0xf bank_mask:0xf' % (op, v, v, v, r))


def row_allreduce_multi(g, op, vs):
    for r in (1, 2, 4, 8):
        for v in vs:
            g.I('%s_dpp v%d, v%d, v%d row_ror:%d row_mask:0xf bank_mask:0xf' % (op, v, v, v, r))


def xrow_allreduce(g, op, v, t):
    g.I('v_mov_b32 v%d, v%d' % (t, v))
    g.I('v_permlane16_swap_b32 v%d, v%d' % (v, t))
    g.I('%s v%d, v%d, v%d' % (op, v, v, t))
    g.I('v_mov_b32 v%d, v%d' % (t, v))
    g.I('v_permlane32_swap_b32 v%d, v%d' % (v, t))
    g.I('%s v%d, v%d, v%d' % (op, v, v, t))


def bf_round(g, v, t):
    g.I('v_cvt_pk_bf16_f32 v%d, v%d, v%d' % (t, v, v))
    g.I('v_lshlrev_b32 v%d, 16, v%d' % (v, t))


def bf_round2(g, a, b, t):
    g.I('v_cvt_pk_bf16_f32 v%d, v%d, v%d' % (t, a, b))
    g.I('v_lshlrev_b32 v%d, 16, v%d' % (a, t))
    g.I('v_and_b32 v%d, 0xffff0000, v%d' % (b, t))


def tile32(g, R, frag, acc, first, frag_is_A=False, PT=PT):
    def perms(dd):
        t = PT + (dd & 3) * 4
        for q in range(4):
            g.I('v_perm_b32 v%d, v%d, v%d, s%d' % (t + q, R + (2 * q + 1) * 4 + (dd >> 1), R + (2 * q) * 4 + (dd >> 1),
                                                  sSEL1 if dd & 1 else sSEL0))
    perms(0)
    for dd in range(8):
        if dd < 7:
            perms(dd + 1)
        t = PT + (dd & 3) * 4
        c = '0' if first else vr(acc + 4 * dd)
        if frag_is_A:
            g.I('v_mfma_f32_16x16x32_bf16 %s, %s, %s, %s' % (vr(acc + 4 * dd), vr(frag), vr(t), c))
        else:
            g.I('v_mfma_f32_16x16x32_bf16 %s, %s, %s, %s' % (vr(acc + 4 * dd), vr(t), vr(frag), c))


def tile16(g, R, frag, acc):
    def perms(dd):
        t = PT + (dd & 3) * 4
        for q in range(2):
            g.I('v_perm_b32 v%d, v%d, v%d, s%d' % (t + q, R + (2 * q + 1) * 4 + (dd >> 1), R + (2 * q) * 4 + (dd >> 1),
                                                  sSEL1 if dd & 1 else sSEL0))
    perms(0)
    perms(1)
    for dd in range(8):
        if dd < 6:
            perms(dd + 2)
        t = PT + (dd & 3) * 4
        g.I('v_mfma_f32_16x16x16_bf16 %s, %s, %s, 0' % (vr(acc + 4 * dd), vr(frag, 2), vr(t, 2)))


vST = 13
WS_ST = 0x480000
STAMP_NAMES = []


def stamp(g, name):
    if not P.get('STAMPS'):
        return
    if name not in STAMP_NAMES:
        STAMP_NAMES.append(name)
    k = STAMP_NAMES.index(name)
    g.I('s_memrealtime s[88:89]')
    g.I('s_waitcnt lgkmcnt(0)')
    g.I('v_writelane_b32 v%d, s88, %d' % (vST, k))


def stamp_store(g):
    if not P.get('STAMPS'):
        return
    g.I('s_mov_b64 exec, -1')
    g.I('s_lshl_b32 s88, s2, 11')
    g.I('s_lshl_b32 s89, s%d, 8' % sWAVE)
    g.I('s_add_u32 s88, s88, s89')
    g.I('s_add_u32 s88, s88, 0x%x' % WS_ST)
    g.I('v_lshlrev_b32 v1, 2, v0')
    g.I('s_nop 4')
    g.I('buffer_store_dword v%d, v1, %s, s88 offen' % (vST, sq(SRD_WS)))


def spin_guard(g, done_label):
    g.I('s_add_u32 s%d, s%d, 1' % (sCNT, sCNT))
    g.I('s_cmp_ge_u32 s%d, %d' % (sCNT, SPIN_MAX))
    g.I('s_cbranch_scc1 %s' % done_label)


def poll_valid(g, loads, regs, tmp, sleep=None, plain_first=False):
    lp = g.newlabel('L_poll')
    dn = g.newlabel('L_polld')

    def check():
        g.I('s_waitcnt vmcnt(0)')
        rs = list(regs)
        g.I('v_max_u32 v%d, v%d, v%d' % (tmp, rs[0], rs[1]))
        i = 2
        while i < len(rs):
            if i + 1 < len(rs):
                g.I('v_max3_u32 v%d, v%d, v%d, v%d' % (tmp, tmp, rs[i], rs[i + 1]))
                i += 2
            else:
                g.I('v_max_u32 v%d, v%d, v%d' % (tmp, tmp, rs[i]))
                i += 1
        g.I('v_cmp_eq_u32 vcc, -1, v%d' % tmp)
        g.I('s_cbranch_vccz %s' % dn)
    if plain_first and P['PLAIN']:
        for t in loads:
            g.I(t.replace(' sc1', ''))
        check()
    g.label(lp)
    for t in loads:
        g.I(t)
    check()
    spin_guard(g, dn)
    g.I('s_sleep %d' % (P['SLEEP'] if sleep is None else sleep))
    g.I('s_branch %s' % lp)
    g.label(dn)
    g.vm_reset()


def prologue_wave0(g):
    g.comment('---------------- wave 0 prologue: LN, q-proj slice, clears, sync, Q assembly')
    ntw = P['NT_W']
    g.I('v_lshlrev_b32 v%d, 5, v%d' % (vT0, vLANE))
    g.vmem('buffer_load_dwordx4 %s, v%d, %s, 0 offen' % (vr(16), vT0, sq(SRD_X)), 'x')
    g.vmem('buffer_load_dwordx4 %s, v%d, %s, 0 offen offset:16' % (vr(20), vT0, sq(SRD_X)), 'x')
    g.I('v_lshlrev_b32 v%d, 16, v%d' % (vT1, vJ))
    g.I('v_lshl_add_u32 v%d, v%d, 4, v%d' % (vT1, vN, vT1))
    g.I('s_lshl_b32 s%d, s%d, 20' % (sA, sCB))
    g.I('s_lshl_b32 s%d, s%d, 8' % (sB, sH))
    g.I('s_add_u32 s%d, s%d, s%d' % (sA, sA, sB))
    for T in range(4):
        for e in range(8):
            g.I('s_add_u32 s%d, s%d, 0x%x' % (sT, sA, (32 * T + e) * 8192))
            g.vmem('buffer_load_dwordx4 %s, v%d, %s, s%d offen%s' % (vr(KR + (T * 8 + e) * 4), vT1, sq(SRD_WQ), sT, ntw),
                   'wq%d' % T, P['WP'])
    for i in range(4):
        g.I('v_mov_b32 v%d, -1' % (24 + i))
    g.I('v_lshrrev_b32 v%d, 2, v%d' % (vT2, vLANE))
    g.I('v_lshlrev_b32 v%d, 12, v%d' % (vT2, vT2))
    g.I('v_and_b32 v%d, 3, v%d' % (vT3, vLANE))
    g.I('v_lshl_add_u32 v%d, v%d, 4, v%d' % (vT2, vT3, vT2))
    g.I('s_lshl_b32 s%d, s%d, 18' % (sA, sG))
    g.I('s_and_b32 s%d, s2, 63' % sB)
    g.I('s_lshl_b32 s%d, s%d, 6' % (sB, sB))
    g.I('s_add_u32 s%d, s%d, s%d' % (sA, sA, sB))
    for i in range(4):
        g.I('s_add_u32 s%d, s%d, 0x%x' % (sT, sA, WS_AP + i * 65536))
        g.vmem('buffer_store_dwordx4 %s, v%d, %s, s%d offen sc1' % (vr(24), vT2, sq(SRD_WS), sT), 'clr')
    g.I('s_mul_i32 s%d, s%d, 28672' % (sA, sH))
    g.I('s_mul_i32 s%d, s%d, 3584' % (sB, sCB))
    g.I('s_add_u32 s%d, s%d, s%d' % (sA, sA, sB))
    g.I('s_add_u32 s%d, s%d, 0x%x' % (sA, sA, WS_GP))
    for i in range(3):
        g.vmem('buffer_store_dwordx4 %s, v%d, %s, s%d offen offset:%d sc1' % (vr(24), vVOFF, sq(SRD_WS), sA, i * 1024), 'clr')
    g.I('s_mov_b32 exec_lo, -1')
    g.I('s_mov_b32 exec_hi, 0')
    g.vmem('buffer_store_dwordx4 %s, v%d, %s, s%d offen offset:%d sc1' % (vr(24), vVOFF, sq(SRD_WS), sA, 3072), 'clr')
    g.I('s_mov_b64 exec, 0xff')
    g.I('v_lshlrev_b32 v%d, 9, v%d' % (vT2, vLANE))
    g.I('s_lshl_b32 s%d, s%d, 12' % (sA, sG))
    g.I('s_and_b32 s%d, s2, 63' % sB)
    g.I('s_lshl_b32 s%d, s%d, 3' % (sB, sB))
    g.I('s_add_u32 s%d, s%d, s%d' % (sA, sA, sB))
    g.I('s_add_u32 s%d, s%d, 0x%x' % (sA, sA, WS_ML))
    g.vmem('buffer_store_dwordx2 %s, v%d, %s, s%d offen sc1' % (vr(24, 2), vT2, sq(SRD_WS), sA), 'clr')
    g.I('s_mov_b64 exec, -1')
    g.I('s_lshl_b32 s%d, s%d, 15' % (sA, sCB))
    g.I('s_lshl_b32 s%d, s%d, 10' % (sB, sH))
    g.I('s_add_u32 s%d, s%d, s%d' % (sA, sA, sB))
    g.I('s_add_u32 s%d, s%d, 0x%x' % (sA, sA, WS_FP))
    g.vmem('buffer_store_dwordx4 %s, v%d, %s, s%d offen sc1' % (vr(24), vVOFF, sq(SRD_WS), sA), 'clr')
    g.I('s_lshl_b32 s%d, s%d, 7' % (sF, sH))
    g.I('s_add_u32 s%d, s%d, 0x%x' % (sF, sF, WS_MB))
    g.I('s_lshl_b32 s%d, s2, 7' % sA)
    g.I('s_add_u32 s%d, s%d, 0x%x' % (sA, sA, WS_MB + 8192))
    g.I('s_cmp_eq_u32 s%d, 0' % sCB)
    g.I('s_cselect_b32 s%d, s%d, s%d' % (sA, sF, sA))
    g.I('s_mov_b64 exec, 1')
    g.vmem('buffer_store_dword v%d, v%d, %s, s%d offen sc1' % (vZERO, vZERO, sq(SRD_WS), sA), 'clr')
    g.I('s_mov_b64 exec, -1')
    g.I('ds_write_b32 v%d, v%d offset:%d' % (vZERO, vZERO, L_FLAG))
    g.I('s_waitcnt lgkmcnt(0)')
    g.I('s_barrier')
    stamp(g, 'w0_issued')
    g.vm_wait('x')
    X = SA
    for d in range(8):
        g.I('v_lshlrev_b32 v%d, 16, v%d' % (X + 2 * d, 16 + d))
        g.I('v_and_b32 v%d, 0xffff0000, v%d' % (X + 2 * d + 1, 16 + d))
    S = 48
    g.I('v_add_f32 v%d, v%d, v%d' % (S, X, X + 1))
    for i in range(2, 16):
        g.I('v_add_f32 v%d, v%d, v%d' % (S, S, X + i))

    def wave_sum(v):
        row_allreduce(g, 'v_add_f32', v)
        xrow_allreduce(g, 'v_add_f32', v, 49)
    wave_sum(S)
    MEAN = 50
    g.I('v_mul_f32 v%d, %s, v%d' % (MEAN, f32(1.0 / 1024), S))
    D = 51
    g.I('v_mov_b32 v%d, 0' % S)
    for i in range(16):
        g.I('v_sub_f32 v%d, v%d, v%d' % (D, X + i, MEAN))
        g.I('v_fmac_f32 v%d, v%d, v%d' % (S, D, D))
    wave_sum(S)
    VAR = 52
    g.I('v_mul_f32 v%d, %s, v%d' % (VAR, f32(1.0 / 1024), S))
    bf_round(g, MEAN, 53)
    bf_round(g, VAR, 53)
    g.I('v_add_f32 v%d, %s, v%d' % (VAR, f32(1e-5), VAR))
    bf_round(g, VAR, 53)
    SD = 54
    g.I('v_sqrt_f32 v%d, v%d' % (SD, VAR))
    g.I('v_rcp_f32 v%d, v%d' % (55, SD))
    g.I('v_fma_f32 v%d, -v%d, v%d, v%d' % (56, SD, SD, VAR))
    g.I('v_mul_f32 v%d, 0.5, v%d' % (55, 55))
    g.I('v_fmac_f32 v%d, v%d, v%d' % (SD, 56, 55))
    bf_round(g, SD, 53)
    RC = 55
    g.I('v_rcp_f32 v%d, v%d' % (RC, SD))
    for d in range(8):
        a, b = X + 2 * d, X + 2 * d + 1
        g.I('v_sub_f32 v%d, v%d, v%d' % (a, a, MEAN))
        g.I('v_sub_f32 v%d, v%d, v%d' % (b, b, MEAN))
        bf_round2(g, a, b, 53)
        for x in (a, b):
            g.I('v_mul_f32 v%d, v%d, v%d' % (56, x, RC))
            g.I('v_fma_f32 v%d, -v%d, v%d, v%d' % (57, 56, SD, x))
            g.I('v_fma_f32 v%d, v%d, v%d, v%d' % (x, 57, RC, 56))
        g.I('v_cvt_pk_bf16_f32 v%d, v%d, v%d' % (16 + d, a, b))
    g.I('ds_write_b128 v%d, %s offset:%d' % (vT0, vr(16), L_XN))
    g.I('ds_write_b128 v%d, %s offset:%d' % (vT0, vr(20), L_XN + 16))
    g.I('v_lshlrev_b32 v%d, 4, v%d' % (vT2, vJ))
    g.I('s_lshl_b32 s%d, s%d, 8' % (sA, sCB))
    g.I('v_add_u32 v%d, s%d, v%d' % (vT2, sA, vT2))
    g.I('s_waitcnt lgkmcnt(0)')
    for T in range(4):
        g.I('ds_read_b128 %s, v%d offset:%d' % (vr(16 + 4 * T), vT2, L_XN + 64 * T))
    g.vm_wait('clr')
    g.I('v_mov_b32 v%d, 1' % vT3)
    g.I('ds_write_b32 v%d, v%d offset:%d' % (vZERO, vT3, L_FLAG))
    g.I('s_waitcnt lgkmcnt(0)')
    ACC = SA
    for T in range(4):
        g.vm_wait('wq%d' % T)
        tile32(g, KR + T * 32, 16 + 4 * T, ACC, T == 0, frag_is_A=True, PT=VA)
    for dd in range(8):
        g.I('v_mov_b32 v%d, v%d' % (16 + dd, ACC + 4 * dd))
    stamp(g, 'w0_qproj')
    g.I('v_lshlrev_b32 v%d, 5, v%d' % (vT2, vN))
    g.I('s_lshl_b32 s%d, s%d, 15' % (sA, sG))
    g.I('s_lshl_b32 s%d, s%d, 12' % (sB, sCB))
    g.I('s_add_u32 s%d, s%d, s%d' % (sA, sA, sB))
    g.I('s_and_b32 s%d, s%d, 7' % (sB, sH))
    g.I('s_lshl_b32 s%d, s%d, 9' % (sB, sB))
    g.I('s_add_u32 s%d, s%d, s%d' % (sB, sA, sB))
    g.I('s_mov_b64 exec, 0xffff')
    g.vmem('buffer_store_dwordx4 %s, v%d, %s, s%d offen sc1' % (vr(16), vT2, sq(SRD_WS), sB), 'qp')
    g.vmem('buffer_store_dwordx4 %s, v%d, %s, s%d offen offset:16 sc1' % (vr(20), vT2, sq(SRD_WS), sB), 'qp')
    g.I('s_mov_b64 exec, 1')
    g.I('v_mov_b32 v%d, 1' % vT3)
    g.vm_wait_all()
    g.I('buffer_atomic_add v%d, v%d, %s, 0 offen sc0' % (vT3, vZERO, sq(SRD_DBG)))
    g.I('s_waitcnt vmcnt(0)')
    g.I('v_readfirstlane_b32 s%d, v%d' % (sB, vT3))
    g.I('s_mov_b64 exec, -1')
    stamp(g, 'w0_atomic')
    lp = g.newlabel('L_qpoll')
    dn = g.newlabel('L_qpolld')
    g.I('s_and_b32 s%d, s%d, 255' % (sB, sB))
    g.I('s_cmp_lg_u32 s%d, 255' % sB)
    g.I('s_cbranch_scc1 %s' % lp)
    g.I('v_lshlrev_b32 v%d, 7, v%d' % (vT3, vLANE))
    g.I('v_mov_b32 v%d, 1' % vT4)
    g.I('s_mov_b32 s%d, 0x%x' % (sB, WS_MB))
    g.I('s_mov_b32 exec_hi, 0')
    g.I('buffer_store_dword v%d, v%d, %s, s%d offen sc1' % (vT4, vT3, sq(SRD_WS), sB))
    g.I('s_mov_b64 exec, -1')
    g.I('s_branch %s' % dn)
    g.label(lp)
    g.I('buffer_load_dword v16, v%d, %s, s%d offen sc1' % (vZERO, sq(SRD_WS), sF))
    g.I('s_waitcnt vmcnt(0)')
    g.I('v_readfirstlane_b32 s%d, v16' % sB)
    g.I('s_nop 3')
    g.I('s_cmp_eq_u32 s%d, 1' % sB)
    g.I('s_cbranch_scc1 %s' % dn)
    spin_guard(g, dn)
    g.I('s_sleep %d' % P['QSLEEP'])
    g.I('s_branch %s' % lp)
    g.label(dn)
    g.vm_reset()
    stamp(g, 'w0_polled')
    g.I('s_lshl_b32 s%d, s%d, 15' % (sA, sG))
    for ks in range(8):
        g.I('s_add_u32 s%d, s%d, 0x%x' % (sT, sA, WS_QP + ks * 4096))
        for i in range(4):
            g.vmem('buffer_load_dwordx4 %s, v%d, %s, s%d offen offset:%d%s' % (vr(KR + (ks * 4 + i) * 4), vVOFF, sq(SRD_WS), sT, i * 1024, '' if P['PLAIN'] else ' sc1'),
                   'q%d' % ks, P['WP'])
    for ks in range(1, 8):
        g.vm_wait('q%d' % ks)
        for r in range(16):
            g.I('v_add_f32 v%d, v%d, v%d' % (KR + r, KR + r, KR + ks * 16 + r))
    g.I('v_lshlrev_b32 v%d, 3, v%d' % (vT2, vLANE))
    for i in range(4):
        g.I('v_cvt_pk_bf16_f32 v%d, v%d, v%d' % (16 + 2 * i, KR + 4 * i, KR + 4 * i + 1))
        g.I('v_cvt_pk_bf16_f32 v%d, v%d, v%d' % (17 + 2 * i, KR + 4 * i + 2, KR + 4 * i + 3))
        g.I('ds_write_b64 v%d, %s offset:%d' % (vT2, vr(16 + 2 * i, 2), L_Q + i * 512))
    g.I('v_mov_b32 v%d, 2' % vT3)
    g.I('s_waitcnt lgkmcnt(0)')
    g.I('ds_write_b32 v%d, v%d offset:%d' % (vZERO, vT3, L_FLAG))


def wait_flag(g, val):
    lp = g.newlabel('L_fl')
    dn = g.newlabel('L_fld')
    g.label(lp)
    g.I('ds_read_b32 v%d, v%d offset:%d' % (vT0, vZERO, L_FLAG))
    g.I('s_waitcnt lgkmcnt(0)')
    g.I('v_readfirstlane_b32 s%d, v%d' % (sA, vT0))
    g.I('s_nop 3')
    g.I('s_cmp_ge_u32 s%d, %d' % (sA, val))
    g.I('s_cbranch_scc1 %s' % dn)
    spin_guard(g, dn)
    g.I('s_sleep 1')
    g.I('s_branch %s' % lp)
    g.label(dn)


def main_path(g, w0):
    W = P['W0'] if w0 else P['W']
    ntk, ntv, ntw = P['NT_K'], P['NT_V'], P['NT_W']
    g.comment('---------------- main path (wave0=%s)' % w0)
    stamp(g, 'main_start')

    def kload(t, i):
        if i == 0:
            koff = {0: t * 4096, 1: ((t >> 1) << 22) + (t & 1) * 4096, 2: t << 21}[P['ILV']]
            g.I('s_add_u32 s%d, s%d, 0x%x' % (sT, sKV, koff))
        g.vmem('buffer_load_dwordx4 %s, v%d, %s, s%d offen offset:%d%s' % (vr(KR + (t * 4 + i) * 4), vKOFF, sq(SRD_K), sT, i * 64, ntk),
               'k%d' % t, W)

    def vbase(T):
        return VA + 32 * T if T < 2 else KR + 32 * (T - 2)

    def vload(T, e):
        if P['ILV'] == 2:
            g.I('s_add_u32 s%d, s%d, 0x%x' % (sT2, sKV, (T * 8 + e) << 19))
            g.vmem('buffer_load_dwordx4 %s, v%d, %s, s%d offen%s' % (vr(vbase(T) + e * 4), vVOFF, sq(SRD_V), sT2, ntv),
                   'v%d' % T, P['WV'] if (P['WV'] and not w0 and T >= P['WVT']) else W)
            return
        if e % 4 == 0:
            g.I('s_add_u32 s%d, s%d, 0x%x' % (sT2, sKV, ((T << 22) if P['ILV'] else T * 8192) + (e // 4) * 4096))
        g.vmem('buffer_load_dwordx4 %s, v%d, %s, s%d offen offset:%d%s' % (vr(vbase(T) + e * 4), vVOFF, sq(SRD_V), sT2, (e % 4) * 1024, ntv),
               'v%d' % T, W)

    if not w0:
        GR = VA
        vGO = vT2
        g.I('s_mov_b32 s%d, 57344' % sA)
        g.I('v_mul_lo_u32 v%d, v%d, s%d' % (vGO, vJ, sA))
        g.I('v_lshl_add_u32 v%d, v%d, 4, v%d' % (vGO, vN, vGO))
        g.I('s_mul_i32 s%d, s%d, %d' % (sA, sH, 32 * 7168))
        g.I('s_and_b32 s%d, s%d, 3' % (sB, sCB))
        g.I('s_mul_i32 s%d, s%d, 1792' % (sB, sB))
        g.I('s_add_u32 s%d, s%d, s%d' % (sA, sA, sB))
        g.I('s_lshl_b32 s%d, s%d, 8' % (sB, sWAVE))
        g.I('s_add_u32 s%d, s%d, s%d' % (sA, sA, sB))
        g.I('s_sub_u32 s%d, s%d, 256' % (sA, sA))
        for e in range(8):
            g.I('s_add_u32 s%d, s%d, %d' % (sT, sA, e * 7168))
            g.vmem('buffer_load_dwordx4 %s, v%d, %s, s%d offen%s' % (vr(GR + 4 * e), vGO, sq(SRD_GU), sT, ntw), 'g', W)
            if e == min(W, 8) - 1:
                g.I('s_barrier')
    n = 0
    for t in range(8):
        for i in range(4):
            kload(t, i)
            n += 1
            if not w0 and n == P['KG']:
                wait_flag(g, 1)
                stamp(g, 'xn_ready')
                g.I('v_lshlrev_b32 v%d, 4, v%d' % (vT0, vJ))
                g.I('s_lshl_b32 s%d, s%d, 6' % (sA, sH))
                g.I('v_add_u32 v%d, s%d, v%d' % (vT0, sA, vT0))
                g.I('ds_read_b128 %s, v%d offset:%d' % (vr(QF), vT0, L_XN))
                g.I('s_waitcnt lgkmcnt(0)')
                g.vm_wait('g')
                tile32(g, GR, QF, SA, True, frag_is_A=True, PT=VA + 32)
                for dd in range(8):
                    g.I('v_mov_b32 v%d, v%d' % (QF + 8 + dd, SA + 4 * dd))
                g.I('s_mul_i32 s%d, s%d, 28672' % (sA, sH))
                g.I('s_mul_i32 s%d, s%d, 3584' % (sB, sCB))
                g.I('s_add_u32 s%d, s%d, s%d' % (sA, sA, sB))
                g.I('s_lshl_b32 s%d, s%d, 9' % (sB, sWAVE))
                g.I('s_add_u32 s%d, s%d, s%d' % (sA, sA, sB))
                g.I('s_add_u32 s%d, s%d, 0x%x' % (sA, sA, WS_GP - 512))
                g.I('v_lshlrev_b32 v%d, 5, v%d' % (vT0, vN))
                g.I('s_mov_b64 exec, 0xffff')
                g.vmem('buffer_store_dwordx4 %s, v%d, %s, s%d offen sc1' % (vr(QF + 8), vT0, sq(SRD_WS), sA), 'gp')
                g.vmem('buffer_store_dwordx4 %s, v%d, %s, s%d offen offset:16 sc1' % (vr(QF + 12), vT0, sq(SRD_WS), sA), 'gp')
                g.I('s_mov_b64 exec, -1')
                stamp(g, 'gu_done')
                if i != 3:
                    koff = {0: t * 4096, 1: ((t >> 1) << 22) + (t & 1) * 4096, 2: t << 21}[P['ILV']]
                    g.I('s_add_u32 s%d, s%d, 0x%x' % (sT, sKV, koff))
    pend = [(T, e) for T in range(4) for e in range(8)]

    def issue(nn):
        for _ in range(nn):
            if pend:
                T, e = pend.pop(0)
                vload(T, e)

    def issue_through(T):
        while pend and pend[0][0] <= T:
            issue(1)

    issue(P['QPOS0'] if w0 else P['QPOS'])
    stamp(g, 'kv_issued')
    if not w0:
        wait_flag(g, 2)
    g.I('v_and_b32 v%d, 7, v%d' % (vT0, vN))
    g.I('v_lshlrev_b32 v%d, 8, v%d' % (vT0, vT0))
    g.I('v_lshl_add_u32 v%d, v%d, 4, v%d' % (vT0, vJ, vT0))
    for i in range(4):
        g.I('ds_read_b128 %s, v%d offset:%d' % (vr(QF + 4 * i), vT0, L_Q + i * 64))
    g.I('s_waitcnt lgkmcnt(0)')
    stamp(g, 'q_ready')
    for t in range(8):
        g.vm_wait('k%d' % t)
        for i in range(4):
            c = '0' if i == 0 else vr(SA + 4 * t)
            g.I('v_mfma_f32_16x16x32_bf16 %s, %s, %s, %s' % (vr(SA + 4 * t), vr(KR + (t * 4 + i) * 4), vr(QF + 4 * i), c))
    stamp(g, 'qk_done')
    for r in range(0, 32, 2):
        a, b = SA + r, SA + r + 1
        bf_round2(g, a, b, vT0)
        g.I('v_mul_f32 v%d, s%d, v%d' % (a, sSCALE, a))
        g.I('v_mul_f32 v%d, s%d, v%d' % (b, sSCALE, b))
        bf_round2(g, a, b, vT1)
        if r == 0:
            g.I('v_max_f32 v%d, v%d, v%d' % (vM, a, b))
        else:
            g.I('v_max3_f32 v%d, v%d, v%d, v%d' % (vM, vM, a, b))
        if r % 8 == 6:
            issue(1)
    xrow_allreduce(g, 'v_max_f32', vM, vT0)
    for r in range(32):
        a = SA + r
        g.I('v_sub_f32 v%d, v%d, v%d' % (a, a, vM))
        g.I('v_mul_f32 v%d, s%d, v%d' % (a, sLOG2E, a))
        g.I('v_exp_f32 v%d, v%d' % (a, a))
        if r % 8 == 7:
            issue(1)
    g.I('v_add_f32 v%d, v%d, v%d' % (vL, SA, SA + 1))
    for r in range(2, 32):
        g.I('v_add_f32 v%d, v%d, v%d' % (vL, vL, SA + r))
    for r in range(0, 32, 2):
        g.I('v_cvt_pk_bf16_f32 v%d, v%d, v%d' % (PF + r // 2, SA + r, SA + r + 1))
    xrow_allreduce(g, 'v_add_f32', vL, vT0)
    WOR, WDR = VA + 32, VA + 48
    vWOO, vWDO = vT3, vT4
    g.I('v_lshlrev_b32 v%d, 11, v%d' % (vWOO, vJ))
    g.I('v_lshl_add_u32 v%d, v%d, 4, v%d' % (vWOO, vN, vWOO))
    g.I('v_lshlrev_b32 v%d, 13, v%d' % (vWDO, vJ))
    g.I('v_lshl_add_u32 v%d, v%d, 4, v%d' % (vWDO, vN, vWDO))
    stamp(g, 'sm_done')
    for T in range(4):
        issue_through(min(T + 1, 3))
        g.vm_wait('v%d' % T)
        if T == P['TW']:
            WW = P['WT']
            if not w0:
                g.I('s_mul_i32 s%d, s%d, 112' % (sA, sH))
                g.I('s_lshl_b32 s%d, s%d, 4' % (sB, sWAVE))
                g.I('s_add_u32 s%d, s%d, s%d' % (sA, sA, sB))
                g.I('s_sub_u32 s%d, s%d, 16' % (sE, sA))
                g.I('s_lshl_b32 s%d, s%d, 11' % (sA, sE))
                g.I('s_lshl_b32 s%d, s%d, 8' % (sB, sCB))
                g.I('s_add_u32 s%d, s%d, s%d' % (sA, sA, sB))
                for e in range(4):
                    g.I('s_add_u32 s%d, s%d, %d' % (sT, sA, e * 2048))
                    g.vmem('buffer_load_dwordx4 %s, v%d, %s, s%d offen%s' % (vr(WDR + 4 * e), vWDO, sq(SRD_WD), sT, ntw), 'wd', WW)
            g.I('s_lshl_b32 s%d, s%d, 7' % (sA, sH))
            g.I('s_lshr_b32 s%d, s%d, 1' % (sB, sWAVE))
            g.I('s_lshl_b32 s%d, s%d, 5' % (sB, sB))
            g.I('s_add_u32 s%d, s%d, s%d' % (sA, sA, sB))
            g.I('s_and_b32 s%d, s%d, 1' % (sB, sWAVE))
            g.I('s_lshl_b32 s%d, s%d, 2' % (sB, sB))
            g.I('s_add_u32 s%d, s%d, s%d' % (sA, sA, sB))
            g.I('s_lshl_b32 s%d, s%d, 11' % (sA, sA))
            g.I('s_lshl_b32 s%d, s%d, 8' % (sB, sCB))
            g.I('s_add_u32 s%d, s%d, s%d' % (sA, sA, sB))
            for e in range(4):
                g.I('s_add_u32 s%d, s%d, %d' % (sT, sA, e * 16384))
                g.vmem('buffer_load_dwordx4 %s, v%d, %s, s%d offen%s' % (vr(WOR + 4 * e), vWOO, sq(SRD_WO), sT, ntw), 'wo', WW)
        tile32(g, vbase(T), PF + 4 * T, OA, T == 0, frag_is_A=False)
    stamp(g, 'pv_done')
    g.I('s_mul_i32 s%d, s%d, 4224' % (sA, sWAVE))
    g.I('v_mul_u32_u24 v%d, 528, v%d' % (vT0, vN))
    g.I('v_lshl_add_u32 v%d, v%d, 7, v%d' % (vT0, vJ, vT0))
    g.I('v_add_u32 v%d, s%d, v%d' % (vT0, sA, vT0))
    g.I('s_mov_b32 s%d, 0x00ff00ff' % sEX)
    g.I('s_mov_b32 s%d, 0x00ff00ff' % (sEX + 1))
    g.I('s_mov_b64 exec, s[%d:%d]' % (sEX, sEX + 1))
    for dd in range(8):
        g.I('ds_write_b128 v%d, %s offset:%d' % (vT0, vr(OA + 4 * dd), L_OW + dd * 16))
    g.I('s_mov_b64 exec, 0xff')
    g.I('s_lshl_b32 s%d, s%d, 6' % (sA, sWAVE))
    g.I('v_lshlrev_b32 v%d, 3, v%d' % (vT1, vLANE))
    g.I('v_add_u32 v%d, s%d, v%d' % (vT1, sA, vT1))
    g.I('ds_write_b64 v%d, %s offset:%d' % (vT1, vr(vM, 2), L_ML))
    g.I('s_mov_b64 exec, -1')
    g.I('s_waitcnt lgkmcnt(0)')
    g.I('s_barrier')
    stamp(g, 'b3')
    CO = OA
    CM = OA + 16
    g.I('s_mul_i32 s%d, s%d, 528' % (sA, sWAVE))
    g.I('v_lshlrev_b32 v%d, 3, v%d' % (vT0, vLANE))
    g.I('v_add_u32 v%d, s%d, v%d' % (vT1, sA, vT0))
    g.I('s_lshl_b32 s%d, s%d, 3' % (sA, sWAVE))
    g.I('v_mov_b32 v%d, s%d' % (vT5, sA))
    for w in range(8):
        g.I('ds_read_b64 %s, v%d offset:%d' % (vr(CM + 2 * w, 2), vT5, L_ML + w * 64))
    for w in range(8):
        g.I('ds_read_b64 %s, v%d offset:%d' % (vr(CO + 2 * w, 2), vT1, L_OW + w * 4224))
    g.I('s_waitcnt lgkmcnt(0)')
    g.I('v_max3_f32 v%d, v%d, v%d, v%d' % (vM, CM, CM + 2, CM + 4))
    g.I('v_max3_f32 v%d, v%d, v%d, v%d' % (vM, vM, CM + 6, CM + 8))
    g.I('v_max3_f32 v%d, v%d, v%d, v%d' % (vM, vM, CM + 10, CM + 12))
    g.I('v_max_f32 v%d, v%d, v%d' % (vM, vM, CM + 14))
    for w in range(8):
        m = CM + 2 * w
        g.I('v_sub_f32 v%d, v%d, v%d' % (m, m, vM))
        g.I('v_mul_f32 v%d, s%d, v%d' % (m, sLOG2E, m))
        g.I('v_exp_f32 v%d, v%d' % (m, m))
    R0, R1 = PT, PT + 1
    for w in range(8):
        m = CM + 2 * w
        if w == 0:
            g.I('v_mul_f32 v%d, v%d, v%d' % (R0, m, CO))
            g.I('v_mul_f32 v%d, v%d, v%d' % (R1, m, CO + 1))
            g.I('v_mul_f32 v%d, v%d, v%d' % (vL, m, m + 1))
        else:
            g.I('v_fmac_f32 v%d, v%d, v%d' % (R0, m, CO + 2 * w))
            g.I('v_fmac_f32 v%d, v%d, v%d' % (R1, m, CO + 2 * w + 1))
            g.I('v_fmac_f32 v%d, v%d, v%d' % (vL, m, m + 1))
    g.I('v_lshrrev_b32 v%d, 3, v%d' % (vT0, vLANE))
    g.I('v_lshlrev_b32 v%d, 12, v%d' % (vT0, vT0))
    g.I('v_and_b32 v%d, 7, v%d' % (vT1, vLANE))
    g.I('v_lshl_add_u32 v%d, v%d, 3, v%d' % (vT0, vT1, vT0))
    g.I('s_lshl_b32 s%d, s%d, 18' % (sA, sG))
    g.I('s_lshl_b32 s%d, s%d, 15' % (sB, sWAVE))
    g.I('s_add_u32 s%d, s%d, s%d' % (sA, sA, sB))
    g.I('s_and_b32 s%d, s2, 63' % sB)
    g.I('s_lshl_b32 s%d, s%d, 6' % (sB, sB))
    g.I('s_add_u32 s%d, s%d, s%d' % (sA, sA, sB))
    g.I('s_add_u32 s%d, s%d, 0x%x' % (sA, sA, WS_AP))
    g.vmem('buffer_store_dwordx2 %s, v%d, %s, s%d offen sc1' % (vr(R0, 2), vT0, sq(SRD_WS), sA), 'ap')
    g.I('s_lshl_b32 s%d, s%d, 9' % (sB, sWAVE))
    g.I('s_lshl_b32 s%d, s%d, 12' % (sA, sG))
    g.I('s_add_u32 s%d, s%d, s%d' % (sA, sA, sB))
    g.I('s_and_b32 s%d, s2, 63' % sB)
    g.I('s_lshl_b32 s%d, s%d, 3' % (sB, sB))
    g.I('s_add_u32 s%d, s%d, s%d' % (sA, sA, sB))
    g.I('s_add_u32 s%d, s%d, 0x%x' % (sA, sA, WS_ML))
    g.I('s_mov_b64 exec, 1')
    g.vmem('buffer_store_dwordx2 %s, v%d, %s, s%d offen sc1' % (vr(vM, 2), vZERO, sq(SRD_WS), sA), 'ml')
    g.I('s_mov_b64 exec, -1')
    stamp(g, 'ap_stored')
    WDA = KR
    MLr = KR + 32
    AD = KR + 40
    g.I('s_lshl_b32 s%d, s%d, 9' % (sF, sH))
    g.I('s_add_u32 s%d, s%d, 0x%x' % (sF, sF, WS_ML))
    if not w0:
        HD = KR + 32
        g.I('s_mov_b32 s%d, 28672' % sT)
        g.I('v_mul_lo_u32 v%d, v%d, s%d' % (vT3, vN, sT))
        g.I('v_lshl_add_u32 v%d, v%d, 4, v%d' % (vT3, vJ, vT3))
        g.I('s_lshl_b32 s%d, s%d, 2' % (90, sE))
        g.I('s_add_u32 s%d, s%d, 0x%x' % (90, 90, WS_GP))
        g.I('s_add_u32 s%d, s%d, %d' % (91, 90, 16 * 28672))
        g.I('s_add_u32 s%d, s%d, %d' % (92, 90, 14336))
        g.I('s_add_u32 s%d, s%d, %d' % (93, 90, 14336 + 16 * 28672))
        poll_valid(g, ['buffer_load_dwordx4 %s, v%d, %s, s%d offen sc1' % (vr(HD + 4 * i), vT3, sq(SRD_WS), 90 + i)
                       for i in range(4)], range(HD, HD + 16), vT1, plain_first=True)
        GG, UU = HD, HD + 8
        for c in range(4):
            g.I('v_add_f32 v%d, v%d, v%d' % (GG + c, GG + c, GG + 4 + c))
            g.I('v_add_f32 v%d, v%d, v%d' % (UU + c, UU + c, UU + 4 + c))
        row_allreduce_multi(g, 'v_add_f32', [GG + c for c in range(4)] + [UU + c for c in range(4)])
        for c in range(0, 4, 2):
            bf_round2(g, GG + c, GG + c + 1, vT0)
            bf_round2(g, UU + c, UU + c + 1, vT0)
        k0 = 0.7978845608028654
        k1 = 0.044715
        c2 = -2.0 * k0 * 1.4426950408889634
        for c in range(4):
            x = GG + c
            t = GG + 4 + c
            g.I('v_mul_f32 v%d, v%d, v%d' % (t, x, x))
            g.I('v_mul_f32 v%d, v%d, v%d' % (t, t, x))
            g.I('v_mul_f32 v%d, %s, v%d' % (t, f32(k1), t))
            g.I('v_add_f32 v%d, v%d, v%d' % (t, t, x))
            g.I('v_mul_f32 v%d, %s, v%d' % (t, f32(c2), t))
            g.I('v_exp_f32 v%d, v%d' % (t, t))
            g.I('v_add_f32 v%d, 1.0, v%d' % (t, t))
            g.I('v_rcp_f32 v%d, v%d' % (t, t))
            g.I('v_mul_f32 v%d, v%d, v%d' % (x, x, t))
        for c in range(0, 4, 2):
            bf_round2(g, GG + c, GG + c + 1, vT0)
        for c in range(4):
            g.I('v_mul_f32 v%d, v%d, v%d' % (GG + c, GG + c, UU + c))
        HFR = QF + 6
        g.I('v_cvt_pk_bf16_f32 v%d, v%d, v%d' % (HFR, GG, GG + 1))
        g.I('v_cvt_pk_bf16_f32 v%d, v%d, v%d' % (HFR + 1, GG + 2, GG + 3))
        tile16(g, WDR, HFR, WDA)
    else:
        PR = PT
        g.I('v_lshlrev_b32 v%d, 3, v%d' % (vT3, vLANE))
        poll_valid(g, ['buffer_load_dwordx2 %s, v%d, %s, s%d offen sc1' % (vr(PR, 2), vT3, sq(SRD_WS), sF)],
                   range(PR, PR + 2), vT1, sleep=P['TSLEEP'])
    stamp(g, 'pre_b5')
    g.I('s_barrier')
    loads = []
    g.I('v_lshlrev_b32 v%d, 3, v%d' % (vT0, vN))
    loads += ['buffer_load_dwordx2 %s, v%d, %s, s%d offen offset:%d sc1' % (vr(MLr + 2 * i, 2), vT0, sq(SRD_WS), sF, i * 128)
              for i in range(4)]
    g.I('v_lshlrev_b32 v%d, 6, v%d' % (vT2, vN))
    g.I('v_lshl_add_u32 v%d, v%d, 4, v%d' % (vT2, vJ, vT2))
    g.I('s_lshl_b32 s%d, s%d, 15' % (sA, sH))
    g.I('s_lshl_b32 s%d, s%d, 12' % (sB, sWAVE))
    g.I('s_add_u32 s%d, s%d, s%d' % (sA, sA, sB))
    g.I('s_add_u32 s%d, s%d, 0x%x' % (sA, sA, WS_AP))
    loads += ['buffer_load_dwordx4 %s, v%d, %s, s%d offen offset:%d sc1' % (vr(AD + 4 * i), vT2, sq(SRD_WS), sA, i * 1024)
              for i in range(4)]
    poll_valid(g, loads, range(MLr, MLr + 24), vT1, plain_first=True)
    stamp(g, 'ml_ok')
    g.I('v_max3_f32 v%d, v%d, v%d, v%d' % (vM, MLr, MLr + 2, MLr + 4))
    g.I('v_max_f32 v%d, v%d, v%d' % (vM, vM, MLr + 6))
    row_allreduce(g, 'v_max_f32', vM)
    for i in range(4):
        m = MLr + 2 * i
        g.I('v_sub_f32 v%d, v%d, v%d' % (m, m, vM))
        g.I('v_mul_f32 v%d, s%d, v%d' % (m, sLOG2E, m))
        g.I('v_exp_f32 v%d, v%d' % (m, m))
    OC = QF
    for i in range(4):
        m = MLr + 2 * i
        op = 'v_mul_f32' if i == 0 else 'v_fmac_f32'
        g.I('%s v%d, v%d, v%d' % (op, vL, m, m + 1))
        for c in range(4):
            g.I('%s v%d, v%d, v%d' % (op, OC + c, m, AD + 4 * i + c))
    row_allreduce_multi(g, 'v_add_f32', [vL, OC, OC + 1, OC + 2, OC + 3])
    g.I('v_rcp_f32 v%d, v%d' % (vT0, vL))
    for c in range(4):
        x = OC + c
        g.I('v_mul_f32 v%d, v%d, v%d' % (vT1, x, vT0))
        g.I('v_fma_f32 v%d, -v%d, v%d, v%d' % (vT5, vT1, vL, x))
        g.I('v_fma_f32 v%d, v%d, v%d, v%d' % (x, vT5, vT0, vT1))
    OFR = QF + 4
    g.I('v_cvt_pk_bf16_f32 v%d, v%d, v%d' % (OFR, OC, OC + 1))
    g.I('v_cvt_pk_bf16_f32 v%d, v%d, v%d' % (OFR + 1, OC + 2, OC + 3))
    WOA = OA
    tile16(g, WOR, OFR, WOA)
    stamp(g, 'wo_done')
    stamp(g, 'wd_done')
    F = VA
    for dd in range(8):
        g.I('v_mov_b32 v%d, v%d' % (F + dd, WOA + 4 * dd))
    for dd in range(8):
        if w0:
            g.I('v_mov_b32 v%d, 0' % (F + 8 + dd))
        else:
            g.I('v_mov_b32 v%d, v%d' % (F + 8 + dd, WDA + 4 * dd))
    g.I('s_lshl_b32 s%d, s%d, 10' % (sA, sWAVE))
    g.I('v_lshlrev_b32 v%d, 5, v%d' % (vT0, vN))
    g.I('v_add_u32 v%d, s%d, v%d' % (vT0, sA, vT0))
    g.I('s_mov_b64 exec, 0xffff')
    g.I('ds_write_b128 v%d, %s offset:%d' % (vT0, vr(F), L_FR))
    g.I('ds_write_b128 v%d, %s offset:%d' % (vT0, vr(F + 4), L_FR + 16))
    g.I('ds_write_b128 v%d, %s offset:%d' % (vT0, vr(F + 8), L_FR + 512))
    g.I('ds_write_b128 v%d, %s offset:%d' % (vT0, vr(F + 12), L_FR + 528))
    g.I('s_mov_b64 exec, -1')
    g.I('s_waitcnt lgkmcnt(0)')
    g.I('s_barrier')
    stamp(g, 'b4')
    if not w0:
        stamp_store(g)
        g.I('s_endpgm')
        return
    g.I('s_lshl_b32 s%d, s%d, 8' % (sF, sCB))
    g.I('s_lshl_b32 s%d, s%d, 3' % (sB, sH))
    g.I('s_add_u32 s%d, s%d, s%d' % (sF, sF, sB))
    XV = QF + 8
    g.vmem('buffer_load_dwordx2 %s, v%d, %s, s%d offen' % (vr(XV, 2), vZERO, sq(SRD_X), sF), 'xv')
    RD = KR
    for w in range(8):
        g.I('ds_read_b128 %s, v%d offset:%d' % (vr(RD + 4 * w), vVOFF, L_FR + w * 1024))
    g.I('s_waitcnt lgkmcnt(0)')
    for w in range(1, 8):
        for c in range(4):
            g.I('v_add_f32 v%d, v%d, v%d' % (RD + c, RD + c, RD + 4 * w + c))
    g.I('s_lshl_b32 s%d, s%d, 15' % (sA, sCB))
    g.I('s_add_u32 s%d, s%d, 0x%x' % (sA, sA, WS_FP))
    g.I('s_lshl_b32 s%d, s%d, 10' % (sB, sH))
    g.I('s_add_u32 s%d, s%d, s%d' % (sB, sA, sB))
    g.vmem('buffer_store_dwordx4 %s, v%d, %s, s%d offen sc1' % (vr(RD), vVOFF, sq(SRD_WS), sB), 'fp')
    g.I('v_and_b32 v%d, 31, v%d' % (vT0, vLANE))
    g.I('v_lshlrev_b32 v%d, 10, v%d' % (vT0, vT0))
    g.I('v_lshrrev_b32 v%d, 5, v%d' % (vT1, vLANE))
    g.I('v_lshl_add_u32 v%d, v%d, 9, v%d' % (vT0, vT1, vT0))
    g.I('s_lshl_b32 s%d, s%d, 4' % (sB, sH))
    g.I('s_add_u32 s%d, s%d, s%d' % (sA, sA, sB))
    FD = KR + 32
    poll_valid(g, ['buffer_load_dwordx4 %s, v%d, %s, s%d offen sc1' % (vr(FD), vT0, sq(SRD_WS), sA)], range(FD, FD + 4), vT1)
    row_allreduce_multi(g, 'v_add_f32', [FD + c for c in range(4)])
    FE = FD + 4
    for c in range(4):
        g.I('v_mov_b32 v%d, v%d' % (FE + c, FD + c))
    for c in range(4):
        g.I('v_permlane16_swap_b32 v%d, v%d' % (FD + c, FE + c))
    for c in range(4):
        g.I('v_add_f32 v%d, v%d, v%d' % (FD + c, FD + c, FE + c))
    for c in range(4):
        g.I('v_mov_b32 v%d, v%d' % (FE + c, FD + c))
    for c in range(4):
        g.I('v_permlane32_swap_b32 v%d, v%d' % (FD + c, FE + c))
    XF = FD + 8
    for d in range(2):
        g.I('v_lshlrev_b32 v%d, 16, v%d' % (XF + 2 * d, XV + d))
        g.I('v_and_b32 v%d, 0xffff0000, v%d' % (XF + 2 * d + 1, XV + d))
    for c in range(0, 4, 2):
        bf_round2(g, FD + c, FD + c + 1, vT0)
        bf_round2(g, FE + c, FE + c + 1, vT0)
    for c in range(4):
        g.I('v_add_f32 v%d, v%d, v%d' % (FD + c, FD + c, XF + c))
    for c in range(0, 4, 2):
        bf_round2(g, FD + c, FD + c + 1, vT0)
    for c in range(4):
        g.I('v_add_f32 v%d, v%d, v%d' % (FD + c, FD + c, FE + c))
    g.I('v_cvt_pk_bf16_f32 v%d, v%d, v%d' % (XF, FD, FD + 1))
    g.I('v_cvt_pk_bf16_f32 v%d, v%d, v%d' % (XF + 1, FD + 2, FD + 3))
    g.I('s_mov_b64 exec, 1')
    g.I('buffer_store_dwordx2 %s, v%d, %s, s%d offen' % (vr(XF, 2), vZERO, sq(SRD_OUT), sF))
    stamp(g, 'end')
    stamp_store(g)
    g.I('s_endpgm')


def build():
    g = Gen()
    hdr = open('cdna_kernels/%s.s.ref' % NAME).read().split('\n')
    out = []
    for ln in hdr:
        if ln.startswith('; @launch'):
            out.append('; @launch grid=(256,1,1) block=(512,1,1) lds=%d' % LDS_BYTES)
        elif ln.startswith(';'):
            out.append(ln)
        else:
            break
    out.append('.amdgcn_target "amdgcn-amd-amdhsa--gfx950"')
    out.append('.text')
    out.append('.globl %s_kernel' % NAME)
    out.append('.p2align 8')
    out.append('.type %s_kernel,@function' % NAME)
    out.append('%s_kernel:' % NAME)
    g.I('s_cmp_ge_u32 s2, 256')
    g.I('s_cbranch_scc1 L_end')
    g.I('s_load_dwordx16 s[8:23], s[0:1], 0')
    g.I('s_load_dwordx8 s[24:31], s[0:1], 64')
    if P['REMAP']:
        g.I('s_and_b32 s%d, s2, 7' % sT)
        g.I('s_lshl_b32 s%d, s%d, 5' % (sT, sT))
        g.I('s_lshr_b32 s2, s2, 3')
        g.I('s_add_u32 s2, s2, s%d' % sT)
    g.I('v_lshrrev_b32 v1, 6, v0')
    g.I('v_and_b32 v0, 63, v0')
    g.I('v_readfirstlane_b32 s%d, v1' % sWAVE)
    g.I('v_and_b32 v%d, 15, v0' % vN)
    g.I('v_lshrrev_b32 v%d, 4, v0' % vJ)
    g.I('v_and_b32 v%d, 3, v%d' % (vKOFF, vN))
    g.I('v_lshlrev_b32 v%d, %d, v%d' % (vKOFF, 19 if P['ILV'] == 2 else 10, vKOFF))
    g.I('v_lshrrev_b32 v%d, 2, v%d' % (vT0, vN))
    g.I('v_lshl_add_u32 v%d, v%d, 8, v%d' % (vKOFF, vT0, vKOFF))
    g.I('v_lshl_add_u32 v%d, v%d, 4, v%d' % (vKOFF, vJ, vKOFF))
    g.I('v_lshlrev_b32 v%d, 4, v0' % vVOFF)
    g.I('v_mov_b32 v%d, 0' % vZERO)
    if P['ILV']:
        sh = 3 if P['ILV'] == 2 else 0
        g.I('s_lshr_b32 s%d, s2, 6' % sKV)
        g.I('s_lshl_b32 s%d, s%d, 24' % (sKV, sKV))
        g.I('s_and_b32 s%d, s2, 63' % sT)
        g.I('s_lshl_b32 s%d, s%d, %d' % (sT, sT, 16 - sh))
        g.I('s_add_u32 s%d, s%d, s%d' % (sKV, sKV, sT))
        g.I('s_lshl_b32 s%d, s%d, %d' % (sT, sWAVE, 13 - sh))
        g.I('s_add_u32 s%d, s%d, s%d' % (sKV, sKV, sT))
    else:
        g.I('s_lshl_b32 s%d, s2, 18' % sKV)
        g.I('s_lshl_b32 s%d, s%d, 15' % (sT, sWAVE))
        g.I('s_add_u32 s%d, s%d, s%d' % (sKV, sKV, sT))
    g.I('s_lshr_b32 s%d, s2, 3' % sH)
    g.I('s_and_b32 s%d, s2, 7' % sCB)
    g.I('s_lshr_b32 s%d, s2, 6' % sG)
    g.I('s_mov_b32 s%d, 0' % sCNT)
    g.I('s_mov_b32 s%d, 0x05040100' % sSEL0)
    g.I('s_mov_b32 s%d, 0x07060302' % sSEL1)
    g.I('s_mov_b32 s%d, %s' % (sSCALE, f32(128 ** -0.5)))
    g.I('s_mov_b32 s%d, %s' % (sLOG2E, f32(1.4426950408889634)))
    g.I('s_waitcnt lgkmcnt(0)')
    srd(g, SRD_K, 10, 1 << 26)
    srd(g, SRD_V, 12, 1 << 26)
    srd(g, SRD_X, 8, 2048)
    srd(g, SRD_WQ, 14, 1 << 23)
    srd(g, SRD_WO, 16, 1 << 23)
    g.I('s_cmp_lt_u32 s%d, 4' % sCB)
    g.I('s_cselect_b32 s%d, s20, s22' % SRD_GU)
    g.I('s_cselect_b32 s%d, s21, s23' % (SRD_GU + 1))
    g.I('s_and_b32 s%d, s%d, 0xffff' % (SRD_GU + 1, SRD_GU + 1))
    g.I('s_mov_b32 s%d, 0x%x' % (SRD_GU + 2, 1024 * 3584 * 2))
    g.I('s_mov_b32 s%d, 0x00020000' % (SRD_GU + 3))
    srd(g, SRD_WD, 24, 3584 * 1024 * 2)
    srd(g, SRD_OUT, 26, 2048)
    srd(g, SRD_DBG, 28, 256)
    srd(g, SRD_WS, 30, WS_SIZE)
    g.I('v_mov_b32 v%d, 0' % vST)
    stamp(g, 'entry')
    g.I('s_cmp_eq_u32 s%d, 0' % sWAVE)
    g.I('s_cbranch_scc1 L_wave0')
    g.fence()
    main_path(g, False)
    g.label('L_wave0')
    g.vm_reset()
    prologue_wave0(g)
    main_path(g, True)
    g.label('L_end')
    g.I('s_endpgm')
    out.append(g.text())
    out.append('.section .rodata,"a"')
    out.append('.p2align 6')
    out.append('.amdhsa_kernel %s_kernel' % NAME)
    out.append('  .amdhsa_next_free_vgpr 256')
    out.append('  .amdhsa_next_free_sgpr 102')
    out.append('  .amdhsa_accum_offset 256')
    out.append('  .amdhsa_group_segment_fixed_size 0')
    out.append('  .amdhsa_kernarg_size 96')
    out.append('  .amdhsa_user_sgpr_count 2')
    out.append('  .amdhsa_user_sgpr_kernarg_segment_ptr 1')
    out.append('  .amdhsa_system_sgpr_workgroup_id_x 1')
    out.append('  .amdhsa_float_denorm_mode_32 3')
    out.append('.end_amdhsa_kernel')
    return '\n'.join(out) + '\n'


if __name__ == '__main__':
    dst = sys.argv[1] if len(sys.argv) > 1 else 'cdna_kernels/%s.s' % NAME
    open(dst, 'w').write(build())
    print('wrote', dst)
    if P.get('STAMPS'):
        open(dst + '.stamps', 'w').write('\n'.join(STAMP_NAMES))
```

```python
import sys
import struct
from dsl import Gen

NAME = 'parallel_sum__gqa_block_cached__geglu_ffn__decode'

P = dict(
    W=4,
    W0=10,
    WP=16,
    NT_K='',
    NT_V=' nt',
    NT_W=' nt',
    SLEEP=1,
    QSLEEP=4,
    TW=3,
    WT=8,
    KG=16,
    REMAP=1,
    PLAIN=0,
    WV=0,
    WVT=2,
    QPOS=6,
    QPOS0=8,
    TSLEEP=4,
    ILV=2,
    QPOLL=' sc1',
)
for a in sys.argv[2:]:
    k, v = a.split('=')
    P[k] = int(v) if v.lstrip('-').isdigit() else v


def f32(x):
    return '0x%08x' % struct.unpack('<I', struct.pack('<f', x))[0]


L_XN = 0
L_Q = 2048
L_FLAG = 4096
L_OW = 8192
L_ML = L_OW + 8 * 4224
L_FR = L_ML + 512
LDS_BYTES = L_FR + 8192

WS_QP = 0
WS_AP = 0x100000
WS_ML = 0x200000
WS_GP = 0x300000
WS_FP = 0x400000
WS_MB = 0x440000
WS_SIZE = 0x500000

sWAVE = 3
sKV = 4
sT = 5
sT2 = 6
sCNT = 7
SRD_K, SRD_V, SRD_WQ, SRD_WO, SRD_GU, SRD_WD, SRD_WS, SRD_X, SRD_OUT, SRD_DBG = 32, 36, 40, 44, 48, 52, 56, 60, 64, 68
sSEL0, sSEL1 = 72, 73
sSCALE, sLOG2E = 74, 75
sH = 76
sCB = 77
sG = 78
sA, sB, sC, sD = 80, 81, 82, 83
sE, sF = 84, 85
sEX = 86

vLANE, vN, vJ = 0, 2, 3
vKOFF, vVOFF = 4, 5
vT0, vT1, vT2, vT3, vT4, vT5 = 6, 7, 8, 9, 10, 11
vZERO = 12
vM, vL = 14, 15
QF = 16
SA = 32
VA = 64
KR = 128
OA = 192
PT = 224
PF = 240

SPIN_MAX = 200000


def srd(g, d, ptr, size):
    g.I('s_mov_b32 s%d, s%d' % (d, ptr))
    g.I('s_and_b32 s%d, s%d, 0xffff' % (d + 1, ptr + 1))
    g.I('s_mov_b32 s%d, 0x%x' % (d + 2, size))
    g.I('s_mov_b32 s%d, 0x00020000' % (d + 3))


def vr(a, n=4):
    return 'v[%d:%d]' % (a, a + n - 1)


def sq(d):
    return 's[%d:%d]' % (d, d + 3)


def row_allreduce(g, op, v, tmp=None):
    for r in (1, 2, 4, 8):
        g.I('%s_dpp v%d, v%d, v%d row_ror:%d row_mask:0xf bank_mask:0xf' % (op, v, v, v, r))


def row_allreduce_multi(g, op, vs):
    for r in (1, 2, 4, 8):
        for v in vs:
            g.I('%s_dpp v%d, v%d, v%d row_ror:%d row_mask:0xf bank_mask:0xf' % (op, v, v, v, r))


def xrow_allreduce(g, op, v, t):
    g.I('v_mov_b32 v%d, v%d' % (t, v))
    g.I('v_permlane16_swap_b32 v%d, v%d' % (v, t))
    g.I('%s v%d, v%d, v%d' % (op, v, v, t))
    g.I('v_mov_b32 v%d, v%d' % (t, v))
    g.I('v_permlane32_swap_b32 v%d, v%d' % (v, t))
    g.I('%s v%d, v%d, v%d' % (op, v, v, t))


def bf_round(g, v, t):
    g.I('v_cvt_pk_bf16_f32 v%d, v%d, v%d' % (t, v, v))
    g.I('v_lshlrev_b32 v%d, 16, v%d' % (v, t))


def bf_round2(g, a, b, t):
    g.I('v_cvt_pk_bf16_f32 v%d, v%d, v%d' % (t, a, b))
    g.I('v_lshlrev_b32 v%d, 16, v%d' % (a, t))
    g.I('v_and_b32 v%d, 0xffff0000, v%d' % (b, t))


def tile32(g, R, frag, acc, first, frag_is_A=False, PT=PT):
    def perms(dd):
        t = PT + (dd & 3) * 4
        for q in range(4):
            g.I('v_perm_b32 v%d, v%d, v%d, s%d' % (t + q, R + (2 * q + 1) * 4 + (dd >> 1), R + (2 * q) * 4 + (dd >> 1),
                                                  sSEL1 if dd & 1 else sSEL0))
    perms(0)
    for dd in range(8):
        if dd < 7:
            perms(dd + 1)
        t = PT + (dd & 3) * 4
        c = '0' if first else vr(acc + 4 * dd)
        if frag_is_A:
            g.I('v_mfma_f32_16x16x32_bf16 %s, %s, %s, %s' % (vr(acc + 4 * dd), vr(frag), vr(t), c))
        else:
            g.I('v_mfma_f32_16x16x32_bf16 %s, %s, %s, %s' % (vr(acc + 4 * dd), vr(t), vr(frag), c))


def tile16(g, R, frag, acc):
    def perms(dd):
        t = PT + (dd & 3) * 4
        for q in range(2):
            g.I('v_perm_b32 v%d, v%d, v%d, s%d' % (t + q, R + (2 * q + 1) * 4 + (dd >> 1), R + (2 * q) * 4 + (dd >> 1),
                                                  sSEL1 if dd & 1 else sSEL0))
    perms(0)
    perms(1)
    for dd in range(8):
        if dd < 6:
            perms(dd + 2)
        t = PT + (dd & 3) * 4
        g.I('v_mfma_f32_16x16x16_bf16 %s, %s, %s, 0' % (vr(acc + 4 * dd), vr(frag, 2), vr(t, 2)))


vST = 13
WS_ST = 0x480000
STAMP_NAMES = []


DBG_NAMES = ['entry', 'w0_issued', 'w0_qproj', 'w0_atomic', 'w0_polled', 'main_start', 'q_ready', 'sm_done', 'pv_done', 'b3', 'pre_b5', 'ml_ok', 'b4', 'end']


def stamp(g, name):
    if P.get('DBGST'):
        if name in DBG_NAMES:
            g.I('s_memrealtime s[88:89]')
            g.I('s_waitcnt lgkmcnt(0)')
            g.I('v_writelane_b32 v%d, s88, %d' % (vST, 1 + DBG_NAMES.index(name)))
        return
    if not P.get('STAMPS'):
        return
    if name not in STAMP_NAMES:
        STAMP_NAMES.append(name)
    k = STAMP_NAMES.index(name)
    g.I('s_memrealtime s[88:89]')
    g.I('s_waitcnt lgkmcnt(0)')
    g.I('v_writelane_b32 v%d, s88, %d' % (vST, k))


def stamp_store(g, final=False):
    if P.get('DBGST'):
        if final:
            lb = g.newlabel('L_dbg')
            g.I('s_mov_b64 exec, 1')
            g.I('v_mov_b32 v1, s88')
            g.I('buffer_atomic_umax v1, v%d, %s, 0 offen offset:60' % (vZERO, sq(SRD_DBG)))
            g.I('s_cmp_lg_u32 s2, %d' % P.get('DBGWG', 0))
            g.I('s_cbranch_scc1 %s' % lb)
            g.I('s_mov_b64 exec, 0x7ffe')
            g.I('v_lshlrev_b32 v1, 2, v0')
            g.I('s_nop 4')
            g.I('buffer_store_dword v%d, v1, %s, 0 offen' % (vST, sq(SRD_DBG)))
            g.label(lb)
        return
    if not P.get('STAMPS'):
        return
    g.I('s_mov_b64 exec, -1')
    g.I('s_lshl_b32 s88, s2, 11')
    g.I('s_lshl_b32 s89, s%d, 8' % sWAVE)
    g.I('s_add_u32 s88, s88, s89')
    g.I('s_add_u32 s88, s88, 0x%x' % WS_ST)
    g.I('v_lshlrev_b32 v1, 2, v0')
    g.I('s_nop 4')
    g.I('buffer_store_dword v%d, v1, %s, s88 offen' % (vST, sq(SRD_WS)))


def spin_guard(g, done_label):
    g.I('s_add_u32 s%d, s%d, 1' % (sCNT, sCNT))
    g.I('s_cmp_ge_u32 s%d, %d' % (sCNT, SPIN_MAX))
    g.I('s_cbranch_scc1 %s' % done_label)


def poll_valid(g, loads, regs, tmp, sleep=None, plain_first=False):
    lp = g.newlabel('L_poll')
    dn = g.newlabel('L_polld')

    def check():
        g.I('s_waitcnt vmcnt(0)')
        rs = list(regs)
        g.I('v_max_u32 v%d, v%d, v%d' % (tmp, rs[0], rs[1]))
        i = 2
        while i < len(rs):
            if i + 1 < len(rs):
                g.I('v_max3_u32 v%d, v%d, v%d, v%d' % (tmp, tmp, rs[i], rs[i + 1]))
                i += 2
            else:
                g.I('v_max_u32 v%d, v%d, v%d' % (tmp, tmp, rs[i]))
                i += 1
        g.I('v_cmp_eq_u32 vcc, -1, v%d' % tmp)
        g.I('s_cbranch_vccz %s' % dn)
    if plain_first and P['PLAIN']:
        for t in loads:
            g.I(t.replace(' sc1', ''))
        check()
    g.label(lp)
    for t in loads:
        g.I(t)
    check()
    spin_guard(g, dn)
    g.I('s_sleep %d' % (P['SLEEP'] if sleep is None else sleep))
    g.I('s_branch %s' % lp)
    g.label(dn)
    g.vm_reset()


def prologue_wave0(g):
    g.comment('---------------- wave 0 prologue: LN, q-proj slice, clears, sync, Q assembly')
    ntw = P['NT_W']
    g.I('v_lshlrev_b32 v%d, 5, v%d' % (vT0, vLANE))
    g.vmem('buffer_load_dwordx4 %s, v%d, %s, 0 offen' % (vr(16), vT0, sq(SRD_X)), 'x')
    g.vmem('buffer_load_dwordx4 %s, v%d, %s, 0 offen offset:16' % (vr(20), vT0, sq(SRD_X)), 'x')
    g.I('v_lshlrev_b32 v%d, 16, v%d' % (vT1, vJ))
    g.I('v_lshl_add_u32 v%d, v%d, 4, v%d' % (vT1, vN, vT1))
    g.I('s_lshl_b32 s%d, s%d, 20' % (sA, sCB))
    g.I('s_lshl_b32 s%d, s%d, 8' % (sB, sH))
    g.I('s_add_u32 s%d, s%d, s%d' % (sA, sA, sB))
    for T in range(4):
        for e in range(8):
            g.I('s_add_u32 s%d, s%d, 0x%x' % (sT, sA, (32 * T + e) * 8192))
            g.vmem('buffer_load_dwordx4 %s, v%d, %s, s%d offen%s' % (vr(KR + (T * 8 + e) * 4), vT1, sq(SRD_WQ), sT, ntw),
                   'wq%d' % T, P['WP'])
    for i in range(4):
        g.I('v_mov_b32 v%d, -1' % (24 + i))
    g.I('v_lshrrev_b32 v%d, 2, v%d' % (vT2, vLANE))
    g.I('v_lshlrev_b32 v%d, 12, v%d' % (vT2, vT2))
    g.I('v_and_b32 v%d, 3, v%d' % (vT3, vLANE))
    g.I('v_lshl_add_u32 v%d, v%d, 4, v%d' % (vT2, vT3, vT2))
    g.I('s_lshl_b32 s%d, s%d, 18' % (sA, sG))
    g.I('s_and_b32 s%d, s2, 63' % sB)
    g.I('s_lshl_b32 s%d, s%d, 6' % (sB, sB))
    g.I('s_add_u32 s%d, s%d, s%d' % (sA, sA, sB))
    for i in range(4):
        g.I('s_add_u32 s%d, s%d, 0x%x' % (sT, sA, WS_AP + i * 65536))
        g.vmem('buffer_store_dwordx4 %s, v%d, %s, s%d offen sc1' % (vr(24), vT2, sq(SRD_WS), sT), 'clr')
    g.I('s_mul_i32 s%d, s%d, 28672' % (sA, sH))
    g.I('s_mul_i32 s%d, s%d, 3584' % (sB, sCB))
    g.I('s_add_u32 s%d, s%d, s%d' % (sA, sA, sB))
    g.I('s_add_u32 s%d, s%d, 0x%x' % (sA, sA, WS_GP))
    for i in range(3):
        g.vmem('buffer_store_dwordx4 %s, v%d, %s, s%d offen offset:%d sc1' % (vr(24), vVOFF, sq(SRD_WS), sA, i * 1024), 'clr')
    g.I('s_mov_b32 exec_lo, -1')
    g.I('s_mov_b32 exec_hi, 0')
    g.vmem('buffer_store_dwordx4 %s, v%d, %s, s%d offen offset:%d sc1' % (vr(24), vVOFF, sq(SRD_WS), sA, 3072), 'clr')
    g.I('s_mov_b64 exec, 0xff')
    g.I('v_lshlrev_b32 v%d, 9, v%d' % (vT2, vLANE))
    g.I('s_lshl_b32 s%d, s%d, 12' % (sA, sG))
    g.I('s_and_b32 s%d, s2, 63' % sB)
    g.I('s_lshl_b32 s%d, s%d, 3' % (sB, sB))
    g.I('s_add_u32 s%d, s%d, s%d' % (sA, sA, sB))
    g.I('s_add_u32 s%d, s%d, 0x%x' % (sA, sA, WS_ML))
    g.vmem('buffer_store_dwordx2 %s, v%d, %s, s%d offen sc1' % (vr(24, 2), vT2, sq(SRD_WS), sA), 'clr')
    g.I('s_mov_b64 exec, -1')
    g.I('s_lshl_b32 s%d, s%d, 15' % (sA, sCB))
    g.I('s_lshl_b32 s%d, s%d, 10' % (sB, sH))
    g.I('s_add_u32 s%d, s%d, s%d' % (sA, sA, sB))
    g.I('s_add_u32 s%d, s%d, 0x%x' % (sA, sA, WS_FP))
    g.vmem('buffer_store_dwordx4 %s, v%d, %s, s%d offen sc1' % (vr(24), vVOFF, sq(SRD_WS), sA), 'clr')
    g.I('s_lshl_b32 s%d, s%d, 7' % (sF, sH))
    g.I('s_add_u32 s%d, s%d, 0x%x' % (sF, sF, WS_MB))
    g.I('s_lshl_b32 s%d, s2, 7' % sA)
    g.I('s_add_u32 s%d, s%d, 0x%x' % (sA, sA, WS_MB + 8192))
    g.I('s_cmp_eq_u32 s%d, 0' % sCB)
    g.I('s_cselect_b32 s%d, s%d, s%d' % (sA, sF, sA))
    g.I('s_mov_b64 exec, 1')
    g.vmem('buffer_store_dword v%d, v%d, %s, s%d offen sc1' % (vZERO, vZERO, sq(SRD_WS), sA), 'clr')
    g.I('s_mov_b64 exec, -1')
    g.I('ds_write_b32 v%d, v%d offset:%d' % (vZERO, vZERO, L_FLAG))
    g.I('s_waitcnt lgkmcnt(0)')
    g.I('s_barrier')
    stamp(g, 'w0_issued')
    g.vm_wait('x')
    X = SA
    for d in range(8):
        g.I('v_lshlrev_b32 v%d, 16, v%d' % (X + 2 * d, 16 + d))
        g.I('v_and_b32 v%d, 0xffff0000, v%d' % (X + 2 * d + 1, 16 + d))
    S = 48
    g.I('v_add_f32 v%d, v%d, v%d' % (S, X, X + 1))
    for i in range(2, 16):
        g.I('v_add_f32 v%d, v%d, v%d' % (S, S, X + i))

    def wave_sum(v):
        row_allreduce(g, 'v_add_f32', v)
        xrow_allreduce(g, 'v_add_f32', v, 49)
    wave_sum(S)
    MEAN = 50
    g.I('v_mul_f32 v%d, %s, v%d' % (MEAN, f32(1.0 / 1024), S))
    D = 51
    g.I('v_mov_b32 v%d, 0' % S)
    for i in range(16):
        g.I('v_sub_f32 v%d, v%d, v%d' % (D, X + i, MEAN))
        g.I('v_fmac_f32 v%d, v%d, v%d' % (S, D, D))
    wave_sum(S)
    VAR = 52
    g.I('v_mul_f32 v%d, %s, v%d' % (VAR, f32(1.0 / 1024), S))
    bf_round(g, MEAN, 53)
    bf_round(g, VAR, 53)
    g.I('v_add_f32 v%d, %s, v%d' % (VAR, f32(1e-5), VAR))
    bf_round(g, VAR, 53)
    SD = 54
    g.I('v_sqrt_f32 v%d, v%d' % (SD, VAR))
    g.I('v_rcp_f32 v%d, v%d' % (55, SD))
    g.I('v_fma_f32 v%d, -v%d, v%d, v%d' % (56, SD, SD, VAR))
    g.I('v_mul_f32 v%d, 0.5, v%d' % (55, 55))
    g.I('v_fmac_f32 v%d, v%d, v%d' % (SD, 56, 55))
    bf_round(g, SD, 53)
    RC = 55
    g.I('v_rcp_f32 v%d, v%d' % (RC, SD))
    for d in range(8):
        a, b = X + 2 * d, X + 2 * d + 1
        g.I('v_sub_f32 v%d, v%d, v%d' % (a, a, MEAN))
        g.I('v_sub_f32 v%d, v%d, v%d' % (b, b, MEAN))
        bf_round2(g, a, b, 53)
        for x in (a, b):
            g.I('v_mul_f32 v%d, v%d, v%d' % (56, x, RC))
            g.I('v_fma_f32 v%d, -v%d, v%d, v%d' % (57, 56, SD, x))
            g.I('v_fma_f32 v%d, v%d, v%d, v%d' % (x, 57, RC, 56))
        g.I('v_cvt_pk_bf16_f32 v%d, v%d, v%d' % (16 + d, a, b))
    g.I('ds_write_b128 v%d, %s offset:%d' % (vT0, vr(16), L_XN))
    g.I('ds_write_b128 v%d, %s offset:%d' % (vT0, vr(20), L_XN + 16))
    g.I('v_lshlrev_b32 v%d, 4, v%d' % (vT2, vJ))
    g.I('s_lshl_b32 s%d, s%d, 8' % (sA, sCB))
    g.I('v_add_u32 v%d, s%d, v%d' % (vT2, sA, vT2))
    g.I('s_waitcnt lgkmcnt(0)')
    for T in range(4):
        g.I('ds_read_b128 %s, v%d offset:%d' % (vr(16 + 4 * T), vT2, L_XN + 64 * T))
    g.vm_wait('clr')
    g.I('v_mov_b32 v%d, 1' % vT3)
    g.I('ds_write_b32 v%d, v%d offset:%d' % (vZERO, vT3, L_FLAG))
    g.I('s_waitcnt lgkmcnt(0)')
    ACC = SA
    for T in range(4):
        g.vm_wait('wq%d' % T)
        tile32(g, KR + T * 32, 16 + 4 * T, ACC, T == 0, frag_is_A=True, PT=VA)
    for dd in range(8):
        g.I('v_mov_b32 v%d, v%d' % (16 + dd, ACC + 4 * dd))
    stamp(g, 'w0_qproj')
    g.I('v_lshlrev_b32 v%d, 5, v%d' % (vT2, vN))
    g.I('s_lshl_b32 s%d, s%d, 15' % (sA, sG))
    g.I('s_lshl_b32 s%d, s%d, 12' % (sB, sCB))
    g.I('s_add_u32 s%d, s%d, s%d' % (sA, sA, sB))
    g.I('s_and_b32 s%d, s%d, 7' % (sB, sH))
    g.I('s_lshl_b32 s%d, s%d, 9' % (sB, sB))
    g.I('s_add_u32 s%d, s%d, s%d' % (sB, sA, sB))
    g.I('s_mov_b64 exec, 0xffff')
    g.vmem('buffer_store_dwordx4 %s, v%d, %s, s%d offen sc1' % (vr(16), vT2, sq(SRD_WS), sB), 'qp')
    g.vmem('buffer_store_dwordx4 %s, v%d, %s, s%d offen offset:16 sc1' % (vr(20), vT2, sq(SRD_WS), sB), 'qp')
    g.I('s_mov_b64 exec, 1')
    g.I('v_mov_b32 v%d, 1' % vT3)
    g.vm_wait_all()
    g.I('buffer_atomic_add v%d, v%d, %s, 0 offen sc0' % (vT3, vZERO, sq(SRD_DBG)))
    g.I('s_waitcnt vmcnt(0)')
    g.I('v_readfirstlane_b32 s%d, v%d' % (sB, vT3))
    g.I('s_mov_b64 exec, -1')
    stamp(g, 'w0_atomic')
    lp = g.newlabel('L_qpoll')
    dn = g.newlabel('L_qpolld')
    g.I('s_and_b32 s%d, s%d, 255' % (sB, sB))
    g.I('s_cmp_lg_u32 s%d, 255' % sB)
    g.I('s_cbranch_scc1 %s' % lp)
    g.I('v_lshlrev_b32 v%d, 7, v%d' % (vT3, vLANE))
    g.I('v_mov_b32 v%d, 1' % vT4)
    g.I('s_mov_b32 s%d, 0x%x' % (sB, WS_MB))
    g.I('s_mov_b32 exec_hi, 0')
    g.I('buffer_store_dword v%d, v%d, %s, s%d offen sc1' % (vT4, vT3, sq(SRD_WS), sB))
    g.I('s_mov_b64 exec, -1')
    g.I('s_branch %s' % dn)
    g.label(lp)
    g.I('buffer_load_dword v16, v%d, %s, s%d offen sc1' % (vZERO, sq(SRD_WS), sF))
    g.I('s_waitcnt vmcnt(0)')
    g.I('v_readfirstlane_b32 s%d, v16' % sB)
    g.I('s_nop 3')
    g.I('s_cmp_eq_u32 s%d, 1' % sB)
    g.I('s_cbranch_scc1 %s' % dn)
    spin_guard(g, dn)
    g.I('s_sleep %d' % P['QSLEEP'])
    g.I('s_branch %s' % lp)
    g.label(dn)
    g.vm_reset()
    stamp(g, 'w0_polled')
    g.I('s_lshl_b32 s%d, s%d, 15' % (sA, sG))
    for ks in range(8):
        g.I('s_add_u32 s%d, s%d, 0x%x' % (sT, sA, WS_QP + ks * 4096))
        for i in range(4):
            g.vmem('buffer_load_dwordx4 %s, v%d, %s, s%d offen offset:%d%s' % (vr(KR + (ks * 4 + i) * 4), vVOFF, sq(SRD_WS), sT, i * 1024, '' if P['PLAIN'] else ' sc1'),
                   'q%d' % ks, P['WP'])
    for ks in range(1, 8):
        g.vm_wait('q%d' % ks)
        for r in range(16):
            g.I('v_add_f32 v%d, v%d, v%d' % (KR + r, KR + r, KR + ks * 16 + r))
    g.I('v_lshlrev_b32 v%d, 3, v%d' % (vT2, vLANE))
    for i in range(4):
        g.I('v_cvt_pk_bf16_f32 v%d, v%d, v%d' % (16 + 2 * i, KR + 4 * i, KR + 4 * i + 1))
        g.I('v_cvt_pk_bf16_f32 v%d, v%d, v%d' % (17 + 2 * i, KR + 4 * i + 2, KR + 4 * i + 3))
        g.I('ds_write_b64 v%d, %s offset:%d' % (vT2, vr(16 + 2 * i, 2), L_Q + i * 512))
    g.I('v_mov_b32 v%d, 2' % vT3)
    g.I('s_waitcnt lgkmcnt(0)')
    g.I('ds_write_b32 v%d, v%d offset:%d' % (vZERO, vT3, L_FLAG))


def wait_flag(g, val):
    lp = g.newlabel('L_fl')
    dn = g.newlabel('L_fld')
    g.label(lp)
    g.I('ds_read_b32 v%d, v%d offset:%d' % (vT0, vZERO, L_FLAG))
    g.I('s_waitcnt lgkmcnt(0)')
    g.I('v_readfirstlane_b32 s%d, v%d' % (sA, vT0))
    g.I('s_nop 3')
    g.I('s_cmp_ge_u32 s%d, %d' % (sA, val))
    g.I('s_cbranch_scc1 %s' % dn)
    spin_guard(g, dn)
    g.I('s_sleep 1')
    g.I('s_branch %s' % lp)
    g.label(dn)


def main_path(g, w0):
    W = P['W0'] if w0 else P['W']
    ntk, ntv, ntw = P['NT_K'], P['NT_V'], P['NT_W']
    g.comment('---------------- main path (wave0=%s)' % w0)
    stamp(g, 'main_start')

    def kload(t, i):
        if i == 0:
            koff = {0: t * 4096, 1: ((t >> 1) << 22) + (t & 1) * 4096, 2: t << 21}[P['ILV']]
            g.I('s_add_u32 s%d, s%d, 0x%x' % (sT, sKV, koff))
        g.vmem('buffer_load_dwordx4 %s, v%d, %s, s%d offen offset:%d%s' % (vr(KR + (t * 4 + i) * 4), vKOFF, sq(SRD_K), sT, i * 64, ntk),
               'k%d' % t, W)

    def vbase(T):
        return VA + 32 * T if T < 2 else KR + 32 * (T - 2)

    def vload(T, e):
        if P['ILV'] == 2:
            g.I('s_add_u32 s%d, s%d, 0x%x' % (sT2, sKV, (T * 8 + e) << 19))
            g.vmem('buffer_load_dwordx4 %s, v%d, %s, s%d offen%s' % (vr(vbase(T) + e * 4), vVOFF, sq(SRD_V), sT2, ntv),
                   'v%d' % T, P['WV'] if (P['WV'] and not w0 and T >= P['WVT']) else W)
            return
        if e % 4 == 0:
            g.I('s_add_u32 s%d, s%d, 0x%x' % (sT2, sKV, ((T << 22) if P['ILV'] else T * 8192) + (e // 4) * 4096))
        g.vmem('buffer_load_dwordx4 %s, v%d, %s, s%d offen offset:%d%s' % (vr(vbase(T) + e * 4), vVOFF, sq(SRD_V), sT2, (e % 4) * 1024, ntv),
               'v%d' % T, W)

    if not w0:
        GR = VA
        vGO = vT2
        g.I('s_mov_b32 s%d, 57344' % sA)
        g.I('v_mul_lo_u32 v%d, v%d, s%d' % (vGO, vJ, sA))
        g.I('v_lshl_add_u32 v%d, v%d, 4, v%d' % (vGO, vN, vGO))
        g.I('s_mul_i32 s%d, s%d, %d' % (sA, sH, 32 * 7168))
        g.I('s_and_b32 s%d, s%d, 3' % (sB, sCB))
        g.I('s_mul_i32 s%d, s%d, 1792' % (sB, sB))
        g.I('s_add_u32 s%d, s%d, s%d' % (sA, sA, sB))
        g.I('s_lshl_b32 s%d, s%d, 8' % (sB, sWAVE))
        g.I('s_add_u32 s%d, s%d, s%d' % (sA, sA, sB))
        g.I('s_sub_u32 s%d, s%d, 256' % (sA, sA))
        for e in range(8):
            g.I('s_add_u32 s%d, s%d, %d' % (sT, sA, e * 7168))
            g.vmem('buffer_load_dwordx4 %s, v%d, %s, s%d offen%s' % (vr(GR + 4 * e), vGO, sq(SRD_GU), sT, ntw), 'g', W)
            if e == min(W, 8) - 1:
                g.I('s_barrier')
    n = 0
    for t in range(8):
        for i in range(4):
            kload(t, i)
            n += 1
            if not w0 and n == P['KG']:
                wait_flag(g, 1)
                stamp(g, 'xn_ready')
                g.I('v_lshlrev_b32 v%d, 4, v%d' % (vT0, vJ))
                g.I('s_lshl_b32 s%d, s%d, 6' % (sA, sH))
                g.I('v_add_u32 v%d, s%d, v%d' % (vT0, sA, vT0))
                g.I('ds_read_b128 %s, v%d offset:%d' % (vr(QF), vT0, L_XN))
                g.I('s_waitcnt lgkmcnt(0)')
                g.vm_wait('g')
                tile32(g, GR, QF, SA, True, frag_is_A=True, PT=VA + 32)
                for dd in range(8):
                    g.I('v_mov_b32 v%d, v%d' % (QF + 8 + dd, SA + 4 * dd))
                g.I('s_mul_i32 s%d, s%d, 28672' % (sA, sH))
                g.I('s_mul_i32 s%d, s%d, 3584' % (sB, sCB))
                g.I('s_add_u32 s%d, s%d, s%d' % (sA, sA, sB))
                g.I('s_lshl_b32 s%d, s%d, 9' % (sB, sWAVE))
                g.I('s_add_u32 s%d, s%d, s%d' % (sA, sA, sB))
                g.I('s_add_u32 s%d, s%d, 0x%x' % (sA, sA, WS_GP - 512))
                g.I('v_lshlrev_b32 v%d, 5, v%d' % (vT0, vN))
                g.I('s_mov_b64 exec, 0xffff')
                g.vmem('buffer_store_dwordx4 %s, v%d, %s, s%d offen sc1' % (vr(QF + 8), vT0, sq(SRD_WS), sA), 'gp')
                g.vmem('buffer_store_dwordx4 %s, v%d, %s, s%d offen offset:16 sc1' % (vr(QF + 12), vT0, sq(SRD_WS), sA), 'gp')
                g.I('s_mov_b64 exec, -1')
                stamp(g, 'gu_done')
                if i != 3:
                    koff = {0: t * 4096, 1: ((t >> 1) << 22) + (t & 1) * 4096, 2: t << 21}[P['ILV']]
                    g.I('s_add_u32 s%d, s%d, 0x%x' % (sT, sKV, koff))
    pend = [(T, e) for T in range(4) for e in range(8)]

    def issue(nn):
        for _ in range(nn):
            if pend:
                T, e = pend.pop(0)
                vload(T, e)

    def issue_through(T):
        while pend and pend[0][0] <= T:
            issue(1)

    issue(P['QPOS0'] if w0 else P['QPOS'])
    stamp(g, 'kv_issued')
    if not w0:
        wait_flag(g, 2)
    g.I('v_and_b32 v%d, 7, v%d' % (vT0, vN))
    g.I('v_lshlrev_b32 v%d, 8, v%d' % (vT0, vT0))
    g.I('v_lshl_add_u32 v%d, v%d, 4, v%d' % (vT0, vJ, vT0))
    for i in range(4):
        g.I('ds_read_b128 %s, v%d offset:%d' % (vr(QF + 4 * i), vT0, L_Q + i * 64))
    g.I('s_waitcnt lgkmcnt(0)')
    stamp(g, 'q_ready')
    for t in range(8):
        g.vm_wait('k%d' % t)
        for i in range(4):
            c = '0' if i == 0 else vr(SA + 4 * t)
            g.I('v_mfma_f32_16x16x32_bf16 %s, %s, %s, %s' % (vr(SA + 4 * t), vr(KR + (t * 4 + i) * 4), vr(QF + 4 * i), c))
    stamp(g, 'qk_done')
    for r in range(0, 32, 2):
        a, b = SA + r, SA + r + 1
        bf_round2(g, a, b, vT0)
        g.I('v_mul_f32 v%d, s%d, v%d' % (a, sSCALE, a))
        g.I('v_mul_f32 v%d, s%d, v%d' % (b, sSCALE, b))
        bf_round2(g, a, b, vT1)
        if r == 0:
            g.I('v_max_f32 v%d, v%d, v%d' % (vM, a, b))
        else:
            g.I('v_max3_f32 v%d, v%d, v%d, v%d' % (vM, vM, a, b))
        if r % 8 == 6:
            issue(1)
    xrow_allreduce(g, 'v_max_f32', vM, vT0)
    for r in range(32):
        a = SA + r
        g.I('v_sub_f32 v%d, v%d, v%d' % (a, a, vM))
        g.I('v_mul_f32 v%d, s%d, v%d' % (a, sLOG2E, a))
        g.I('v_exp_f32 v%d, v%d' % (a, a))
        if r % 8 == 7:
            issue(1)
    g.I('v_add_f32 v%d, v%d, v%d' % (vL, SA, SA + 1))
    for r in range(2, 32):
        g.I('v_add_f32 v%d, v%d, v%d' % (vL, vL, SA + r))
    for r in range(0, 32, 2):
        g.I('v_cvt_pk_bf16_f32 v%d, v%d, v%d' % (PF + r // 2, SA + r, SA + r + 1))
    xrow_allreduce(g, 'v_add_f32', vL, vT0)
    WOR, WDR = VA + 32, VA + 48
    vWOO, vWDO = vT3, vT4
    g.I('v_lshlrev_b32 v%d, 11, v%d' % (vWOO, vJ))
    g.I('v_lshl_add_u32 v%d, v%d, 4, v%d' % (vWOO, vN, vWOO))
    g.I('v_lshlrev_b32 v%d, 13, v%d' % (vWDO, vJ))
    g.I('v_lshl_add_u32 v%d, v%d, 4, v%d' % (vWDO, vN, vWDO))
    stamp(g, 'sm_done')
    for T in range(4):
        issue_through(min(T + 1, 3))
        g.vm_wait('v%d' % T)
        if T == P['TW']:
            WW = P['WT']
            if not w0:
                g.I('s_mul_i32 s%d, s%d, 112' % (sA, sH))
                g.I('s_lshl_b32 s%d, s%d, 4' % (sB, sWAVE))
                g.I('s_add_u32 s%d, s%d, s%d' % (sA, sA, sB))
                g.I('s_sub_u32 s%d, s%d, 16' % (sE, sA))
                g.I('s_lshl_b32 s%d, s%d, 11' % (sA, sE))
                g.I('s_lshl_b32 s%d, s%d, 8' % (sB, sCB))
                g.I('s_add_u32 s%d, s%d, s%d' % (sA, sA, sB))
                for e in range(4):
                    g.I('s_add_u32 s%d, s%d, %d' % (sT, sA, e * 2048))
                    g.vmem('buffer_load_dwordx4 %s, v%d, %s, s%d offen%s' % (vr(WDR + 4 * e), vWDO, sq(SRD_WD), sT, ntw), 'wd', WW)
            g.I('s_lshl_b32 s%d, s%d, 7' % (sA, sH))
            g.I('s_lshr_b32 s%d, s%d, 1' % (sB, sWAVE))
            g.I('s_lshl_b32 s%d, s%d, 5' % (sB, sB))
            g.I('s_add_u32 s%d, s%d, s%d' % (sA, sA, sB))
            g.I('s_and_b32 s%d, s%d, 1' % (sB, sWAVE))
            g.I('s_lshl_b32 s%d, s%d, 2' % (sB, sB))
            g.I('s_add_u32 s%d, s%d, s%d' % (sA, sA, sB))
            g.I('s_lshl_b32 s%d, s%d, 11' % (sA, sA))
            g.I('s_lshl_b32 s%d, s%d, 8' % (sB, sCB))
            g.I('s_add_u32 s%d, s%d, s%d' % (sA, sA, sB))
            for e in range(4):
                g.I('s_add_u32 s%d, s%d, %d' % (sT, sA, e * 16384))
                g.vmem('buffer_load_dwordx4 %s, v%d, %s, s%d offen%s' % (vr(WOR + 4 * e), vWOO, sq(SRD_WO), sT, ntw), 'wo', WW)
        tile32(g, vbase(T), PF + 4 * T, OA, T == 0, frag_is_A=False)
    stamp(g, 'pv_done')
    g.I('s_mul_i32 s%d, s%d, 4224' % (sA, sWAVE))
    g.I('v_mul_u32_u24 v%d, 528, v%d' % (vT0, vN))
    g.I('v_lshl_add_u32 v%d, v%d, 7, v%d' % (vT0, vJ, vT0))
    g.I('v_add_u32 v%d, s%d, v%d' % (vT0, sA, vT0))
    g.I('s_mov_b32 s%d, 0x00ff00ff' % sEX)
    g.I('s_mov_b32 s%d, 0x00ff00ff' % (sEX + 1))
    g.I('s_mov_b64 exec, s[%d:%d]' % (sEX, sEX + 1))
    for dd in range(8):
        g.I('ds_write_b128 v%d, %s offset:%d' % (vT0, vr(OA + 4 * dd), L_OW + dd * 16))
    g.I('s_mov_b64 exec, 0xff')
    g.I('s_lshl_b32 s%d, s%d, 6' % (sA, sWAVE))
    g.I('v_lshlrev_b32 v%d, 3, v%d' % (vT1, vLANE))
    g.I('v_add_u32 v%d, s%d, v%d' % (vT1, sA, vT1))
    g.I('ds_write_b64 v%d, %s offset:%d' % (vT1, vr(vM, 2), L_ML))
    g.I('s_mov_b64 exec, -1')
    g.I('s_waitcnt lgkmcnt(0)')
    g.I('s_barrier')
    stamp(g, 'b3')
    CO = OA
    CM = OA + 16
    g.I('s_mul_i32 s%d, s%d, 528' % (sA, sWAVE))
    g.I('v_lshlrev_b32 v%d, 3, v%d' % (vT0, vLANE))
    g.I('v_add_u32 v%d, s%d, v%d' % (vT1, sA, vT0))
    g.I('s_lshl_b32 s%d, s%d, 3' % (sA, sWAVE))
    g.I('v_mov_b32 v%d, s%d' % (vT5, sA))
    for w in range(8):
        g.I('ds_read_b64 %s, v%d offset:%d' % (vr(CM + 2 * w, 2), vT5, L_ML + w * 64))
    for w in range(8):
        g.I('ds_read_b64 %s, v%d offset:%d' % (vr(CO + 2 * w, 2), vT1, L_OW + w * 4224))
    g.I('s_waitcnt lgkmcnt(0)')
    g.I('v_max3_f32 v%d, v%d, v%d, v%d' % (vM, CM, CM + 2, CM + 4))
    g.I('v_max3_f32 v%d, v%d, v%d, v%d' % (vM, vM, CM + 6, CM + 8))
    g.I('v_max3_f32 v%d, v%d, v%d, v%d' % (vM, vM, CM + 10, CM + 12))
    g.I('v_max_f32 v%d, v%d, v%d' % (vM, vM, CM + 14))
    for w in range(8):
        m = CM + 2 * w
        g.I('v_sub_f32 v%d, v%d, v%d' % (m, m, vM))
        g.I('v_mul_f32 v%d, s%d, v%d' % (m, sLOG2E, m))
        g.I('v_exp_f32 v%d, v%d' % (m, m))
    R0, R1 = PT, PT + 1
    for w in range(8):
        m = CM + 2 * w
        if w == 0:
            g.I('v_mul_f32 v%d, v%d, v%d' % (R0, m, CO))
            g.I('v_mul_f32 v%d, v%d, v%d' % (R1, m, CO + 1))
            g.I('v_mul_f32 v%d, v%d, v%d' % (vL, m, m + 1))
        else:
            g.I('v_fmac_f32 v%d, v%d, v%d' % (R0, m, CO + 2 * w))
            g.I('v_fmac_f32 v%d, v%d, v%d' % (R1, m, CO + 2 * w + 1))
            g.I('v_fmac_f32 v%d, v%d, v%d' % (vL, m, m + 1))
    g.I('v_lshrrev_b32 v%d, 3, v%d' % (vT0, vLANE))
    g.I('v_lshlrev_b32 v%d, 12, v%d' % (vT0, vT0))
    g.I('v_and_b32 v%d, 7, v%d' % (vT1, vLANE))
    g.I('v_lshl_add_u32 v%d, v%d, 3, v%d' % (vT0, vT1, vT0))
    g.I('s_lshl_b32 s%d, s%d, 18' % (sA, sG))
    g.I('s_lshl_b32 s%d, s%d, 15' % (sB, sWAVE))
    g.I('s_add_u32 s%d, s%d, s%d' % (sA, sA, sB))
    g.I('s_and_b32 s%d, s2, 63' % sB)
    g.I('s_lshl_b32 s%d, s%d, 6' % (sB, sB))
    g.I('s_add_u32 s%d, s%d, s%d' % (sA, sA, sB))
    g.I('s_add_u32 s%d, s%d, 0x%x' % (sA, sA, WS_AP))
    g.vmem('buffer_store_dwordx2 %s, v%d, %s, s%d offen sc1' % (vr(R0, 2), vT0, sq(SRD_WS), sA), 'ap')
    g.I('s_lshl_b32 s%d, s%d, 9' % (sB, sWAVE))
    g.I('s_lshl_b32 s%d, s%d, 12' % (sA, sG))
    g.I('s_add_u32 s%d, s%d, s%d' % (sA, sA, sB))
    g.I('s_and_b32 s%d, s2, 63' % sB)
    g.I('s_lshl_b32 s%d, s%d, 3' % (sB, sB))
    g.I('s_add_u32 s%d, s%d, s%d' % (sA, sA, sB))
    g.I('s_add_u32 s%d, s%d, 0x%x' % (sA, sA, WS_ML))
    g.I('s_mov_b64 exec, 1')
    g.vmem('buffer_store_dwordx2 %s, v%d, %s, s%d offen sc1' % (vr(vM, 2), vZERO, sq(SRD_WS), sA), 'ml')
    g.I('s_mov_b64 exec, -1')
    stamp(g, 'ap_stored')
    WDA = KR
    MLr = KR + 32
    AD = KR + 40
    g.I('s_lshl_b32 s%d, s%d, 9' % (sF, sH))
    g.I('s_add_u32 s%d, s%d, 0x%x' % (sF, sF, WS_ML))
    if not w0:
        HD = KR + 32
        g.I('s_mov_b32 s%d, 28672' % sT)
        g.I('v_mul_lo_u32 v%d, v%d, s%d' % (vT3, vN, sT))
        g.I('v_lshl_add_u32 v%d, v%d, 4, v%d' % (vT3, vJ, vT3))
        g.I('s_lshl_b32 s%d, s%d, 2' % (90, sE))
        g.I('s_add_u32 s%d, s%d, 0x%x' % (90, 90, WS_GP))
        g.I('s_add_u32 s%d, s%d, %d' % (91, 90, 16 * 28672))
        g.I('s_add_u32 s%d, s%d, %d' % (92, 90, 14336))
        g.I('s_add_u32 s%d, s%d, %d' % (93, 90, 14336 + 16 * 28672))
        poll_valid(g, ['buffer_load_dwordx4 %s, v%d, %s, s%d offen sc1' % (vr(HD + 4 * i), vT3, sq(SRD_WS), 90 + i)
                       for i in range(4)], range(HD, HD + 16), vT1, plain_first=True)
        GG, UU = HD, HD + 8
        for c in range(4):
            g.I('v_add_f32 v%d, v%d, v%d' % (GG + c, GG + c, GG + 4 + c))
            g.I('v_add_f32 v%d, v%d, v%d' % (UU + c, UU + c, UU + 4 + c))
        row_allreduce_multi(g, 'v_add_f32', [GG + c for c in range(4)] + [UU + c for c in range(4)])
        for c in range(0, 4, 2):
            bf_round2(g, GG + c, GG + c + 1, vT0)
            bf_round2(g, UU + c, UU + c + 1, vT0)
        k0 = 0.7978845608028654
        k1 = 0.044715
        c2 = -2.0 * k0 * 1.4426950408889634
        for c in range(4):
            x = GG + c
            t = GG + 4 + c
            g.I('v_mul_f32 v%d, v%d, v%d' % (t, x, x))
            g.I('v_mul_f32 v%d, v%d, v%d' % (t, t, x))
            g.I('v_mul_f32 v%d, %s, v%d' % (t, f32(k1), t))
            g.I('v_add_f32 v%d, v%d, v%d' % (t, t, x))
            g.I('v_mul_f32 v%d, %s, v%d' % (t, f32(c2), t))
            g.I('v_exp_f32 v%d, v%d' % (t, t))
            g.I('v_add_f32 v%d, 1.0, v%d' % (t, t))
            g.I('v_rcp_f32 v%d, v%d' % (t, t))
            g.I('v_mul_f32 v%d, v%d, v%d' % (x, x, t))
        for c in range(0, 4, 2):
            bf_round2(g, GG + c, GG + c + 1, vT0)
        for c in range(4):
            g.I('v_mul_f32 v%d, v%d, v%d' % (GG + c, GG + c, UU + c))
        HFR = QF + 6
        g.I('v_cvt_pk_bf16_f32 v%d, v%d, v%d' % (HFR, GG, GG + 1))
        g.I('v_cvt_pk_bf16_f32 v%d, v%d, v%d' % (HFR + 1, GG + 2, GG + 3))
        tile16(g, WDR, HFR, WDA)
    else:
        PR = PT
        g.I('v_lshlrev_b32 v%d, 3, v%d' % (vT3, vLANE))
        poll_valid(g, ['buffer_load_dwordx2 %s, v%d, %s, s%d offen sc1' % (vr(PR, 2), vT3, sq(SRD_WS), sF)],
                   range(PR, PR + 2), vT1, sleep=P['TSLEEP'])
    stamp(g, 'pre_b5')
    g.I('s_barrier')
    loads = []
    g.I('v_lshlrev_b32 v%d, 3, v%d' % (vT0, vN))
    loads += ['buffer_load_dwordx2 %s, v%d, %s, s%d offen offset:%d sc1' % (vr(MLr + 2 * i, 2), vT0, sq(SRD_WS), sF, i * 128)
              for i in range(4)]
    g.I('v_lshlrev_b32 v%d, 6, v%d' % (vT2, vN))
    g.I('v_lshl_add_u32 v%d, v%d, 4, v%d' % (vT2, vJ, vT2))
    g.I('s_lshl_b32 s%d, s%d, 15' % (sA, sH))
    g.I('s_lshl_b32 s%d, s%d, 12' % (sB, sWAVE))
    g.I('s_add_u32 s%d, s%d, s%d' % (sA, sA, sB))
    g.I('s_add_u32 s%d, s%d, 0x%x' % (sA, sA, WS_AP))
    loads += ['buffer_load_dwordx4 %s, v%d, %s, s%d offen offset:%d sc1' % (vr(AD + 4 * i), vT2, sq(SRD_WS), sA, i * 1024)
              for i in range(4)]
    poll_valid(g, loads, range(MLr, MLr + 24), vT1, plain_first=True)
    stamp(g, 'ml_ok')
    g.I('v_max3_f32 v%d, v%d, v%d, v%d' % (vM, MLr, MLr + 2, MLr + 4))
    g.I('v_max_f32 v%d, v%d, v%d' % (vM, vM, MLr + 6))
    row_allreduce(g, 'v_max_f32', vM)
    for i in range(4):
        m = MLr + 2 * i
        g.I('v_sub_f32 v%d, v%d, v%d' % (m, m, vM))
        g.I('v_mul_f32 v%d, s%d, v%d' % (m, sLOG2E, m))
        g.I('v_exp_f32 v%d, v%d' % (m, m))
    OC = QF
    for i in range(4):
        m = MLr + 2 * i
        op = 'v_mul_f32' if i == 0 else 'v_fmac_f32'
        g.I('%s v%d, v%d, v%d' % (op, vL, m, m + 1))
        for c in range(4):
            g.I('%s v%d, v%d, v%d' % (op, OC + c, m, AD + 4 * i + c))
    row_allreduce_multi(g, 'v_add_f32', [vL, OC, OC + 1, OC + 2, OC + 3])
    g.I('v_rcp_f32 v%d, v%d' % (vT0, vL))
    for c in range(4):
        x = OC + c
        g.I('v_mul_f32 v%d, v%d, v%d' % (vT1, x, vT0))
        g.I('v_fma_f32 v%d, -v%d, v%d, v%d' % (vT5, vT1, vL, x))
        g.I('v_fma_f32 v%d, v%d, v%d, v%d' % (x, vT5, vT0, vT1))
    OFR = QF + 4
    g.I('v_cvt_pk_bf16_f32 v%d, v%d, v%d' % (OFR, OC, OC + 1))
    g.I('v_cvt_pk_bf16_f32 v%d, v%d, v%d' % (OFR + 1, OC + 2, OC + 3))
    WOA = OA
    tile16(g, WOR, OFR, WOA)
    stamp(g, 'wo_done')
    stamp(g, 'wd_done')
    F = VA
    for dd in range(8):
        g.I('v_mov_b32 v%d, v%d' % (F + dd, WOA + 4 * dd))
    for dd in range(8):
        if w0:
            g.I('v_mov_b32 v%d, 0' % (F + 8 + dd))
        else:
            g.I('v_mov_b32 v%d, v%d' % (F + 8 + dd, WDA + 4 * dd))
    g.I('s_lshl_b32 s%d, s%d, 10' % (sA, sWAVE))
    g.I('v_lshlrev_b32 v%d, 5, v%d' % (vT0, vN))
    g.I('v_add_u32 v%d, s%d, v%d' % (vT0, sA, vT0))
    g.I('s_mov_b64 exec, 0xffff')
    g.I('ds_write_b128 v%d, %s offset:%d' % (vT0, vr(F), L_FR))
    g.I('ds_write_b128 v%d, %s offset:%d' % (vT0, vr(F + 4), L_FR + 16))
    g.I('ds_write_b128 v%d, %s offset:%d' % (vT0, vr(F + 8), L_FR + 512))
    g.I('ds_write_b128 v%d, %s offset:%d' % (vT0, vr(F + 12), L_FR + 528))
    g.I('s_mov_b64 exec, -1')
    g.I('s_waitcnt lgkmcnt(0)')
    g.I('s_barrier')
    stamp(g, 'b4')
    if not w0:
        stamp_store(g)
        g.I('s_endpgm')
        return
    g.I('s_lshl_b32 s%d, s%d, 8' % (sF, sCB))
    g.I('s_lshl_b32 s%d, s%d, 3' % (sB, sH))
    g.I('s_add_u32 s%d, s%d, s%d' % (sF, sF, sB))
    XV = QF + 8
    g.vmem('buffer_load_dwordx2 %s, v%d, %s, s%d offen' % (vr(XV, 2), vZERO, sq(SRD_X), sF), 'xv')
    RD = KR
    for w in range(8):
        g.I('ds_read_b128 %s, v%d offset:%d' % (vr(RD + 4 * w), vVOFF, L_FR + w * 1024))
    g.I('s_waitcnt lgkmcnt(0)')
    for w in range(1, 8):
        for c in range(4):
            g.I('v_add_f32 v%d, v%d, v%d' % (RD + c, RD + c, RD + 4 * w + c))
    g.I('s_lshl_b32 s%d, s%d, 15' % (sA, sCB))
    g.I('s_add_u32 s%d, s%d, 0x%x' % (sA, sA, WS_FP))
    g.I('s_lshl_b32 s%d, s%d, 10' % (sB, sH))
    g.I('s_add_u32 s%d, s%d, s%d' % (sB, sA, sB))
    g.vmem('buffer_store_dwordx4 %s, v%d, %s, s%d offen sc1' % (vr(RD), vVOFF, sq(SRD_WS), sB), 'fp')
    g.I('v_and_b32 v%d, 31, v%d' % (vT0, vLANE))
    g.I('v_lshlrev_b32 v%d, 10, v%d' % (vT0, vT0))
    g.I('v_lshrrev_b32 v%d, 5, v%d' % (vT1, vLANE))
    g.I('v_lshl_add_u32 v%d, v%d, 9, v%d' % (vT0, vT1, vT0))
    g.I('s_lshl_b32 s%d, s%d, 4' % (sB, sH))
    g.I('s_add_u32 s%d, s%d, s%d' % (sA, sA, sB))
    FD = KR + 32
    poll_valid(g, ['buffer_load_dwordx4 %s, v%d, %s, s%d offen sc1' % (vr(FD), vT0, sq(SRD_WS), sA)], range(FD, FD + 4), vT1)
    row_allreduce_multi(g, 'v_add_f32', [FD + c for c in range(4)])
    FE = FD + 4
    for c in range(4):
        g.I('v_mov_b32 v%d, v%d' % (FE + c, FD + c))
    for c in range(4):
        g.I('v_permlane16_swap_b32 v%d, v%d' % (FD + c, FE + c))
    for c in range(4):
        g.I('v_add_f32 v%d, v%d, v%d' % (FD + c, FD + c, FE + c))
    for c in range(4):
        g.I('v_mov_b32 v%d, v%d' % (FE + c, FD + c))
    for c in range(4):
        g.I('v_permlane32_swap_b32 v%d, v%d' % (FD + c, FE + c))
    XF = FD + 8
    for d in range(2):
        g.I('v_lshlrev_b32 v%d, 16, v%d' % (XF + 2 * d, XV + d))
        g.I('v_and_b32 v%d, 0xffff0000, v%d' % (XF + 2 * d + 1, XV + d))
    for c in range(0, 4, 2):
        bf_round2(g, FD + c, FD + c + 1, vT0)
        bf_round2(g, FE + c, FE + c + 1, vT0)
    for c in range(4):
        g.I('v_add_f32 v%d, v%d, v%d' % (FD + c, FD + c, XF + c))
    for c in range(0, 4, 2):
        bf_round2(g, FD + c, FD + c + 1, vT0)
    for c in range(4):
        g.I('v_add_f32 v%d, v%d, v%d' % (FD + c, FD + c, FE + c))
    g.I('v_cvt_pk_bf16_f32 v%d, v%d, v%d' % (XF, FD, FD + 1))
    g.I('v_cvt_pk_bf16_f32 v%d, v%d, v%d' % (XF + 1, FD + 2, FD + 3))
    g.I('s_mov_b64 exec, 1')
    g.I('buffer_store_dwordx2 %s, v%d, %s, s%d offen' % (vr(XF, 2), vZERO, sq(SRD_OUT), sF))
    stamp(g, 'end')
    stamp_store(g, True)
    g.I('s_endpgm')


def build():
    g = Gen()
    hdr = open('cdna_kernels/%s.s.ref' % NAME).read().split('\n')
    out = []
    for ln in hdr:
        if ln.startswith('; @launch'):
            out.append('; @launch grid=(256,1,1) block=(512,1,1) lds=%d' % LDS_BYTES)
        elif ln.startswith(';'):
            out.append(ln)
        else:
            break
    out.append('.amdgcn_target "amdgcn-amd-amdhsa--gfx950"')
    out.append('.text')
    out.append('.globl %s_kernel' % NAME)
    out.append('.p2align 8')
    out.append('.type %s_kernel,@function' % NAME)
    out.append('%s_kernel:' % NAME)
    g.I('s_cmp_ge_u32 s2, 256')
    g.I('s_cbranch_scc1 L_end')
    g.I('s_load_dwordx16 s[8:23], s[0:1], 0')
    g.I('s_load_dwordx8 s[24:31], s[0:1], 64')
    if P['REMAP']:
        g.I('s_and_b32 s%d, s2, 7' % sT)
        g.I('s_lshl_b32 s%d, s%d, 5' % (sT, sT))
        g.I('s_lshr_b32 s2, s2, 3')
        g.I('s_add_u32 s2, s2, s%d' % sT)
    g.I('v_lshrrev_b32 v1, 6, v0')
    g.I('v_and_b32 v0, 63, v0')
    g.I('v_readfirstlane_b32 s%d, v1' % sWAVE)
    g.I('v_and_b32 v%d, 15, v0' % vN)
    g.I('v_lshrrev_b32 v%d, 4, v0' % vJ)
    g.I('v_and_b32 v%d, 3, v%d' % (vKOFF, vN))
    g.I('v_lshlrev_b32 v%d, %d, v%d' % (vKOFF, 19 if P['ILV'] == 2 else 10, vKOFF))
    g.I('v_lshrrev_b32 v%d, 2, v%d' % (vT0, vN))
    g.I('v_lshl_add_u32 v%d, v%d, 8, v%d' % (vKOFF, vT0, vKOFF))
    g.I('v_lshl_add_u32 v%d, v%d, 4, v%d' % (vKOFF, vJ, vKOFF))
    g.I('v_lshlrev_b32 v%d, 4, v0' % vVOFF)
    g.I('v_mov_b32 v%d, 0' % vZERO)
    if P['ILV']:
        sh = 3 if P['ILV'] == 2 else 0
        g.I('s_lshr_b32 s%d, s2, 6' % sKV)
        g.I('s_lshl_b32 s%d, s%d, 24' % (sKV, sKV))
        g.I('s_and_b32 s%d, s2, 63' % sT)
        g.I('s_lshl_b32 s%d, s%d, %d' % (sT, sT, 16 - sh))
        g.I('s_add_u32 s%d, s%d, s%d' % (sKV, sKV, sT))
        g.I('s_lshl_b32 s%d, s%d, %d' % (sT, sWAVE, 13 - sh))
        g.I('s_add_u32 s%d, s%d, s%d' % (sKV, sKV, sT))
    else:
        g.I('s_lshl_b32 s%d, s2, 18' % sKV)
        g.I('s_lshl_b32 s%d, s%d, 15' % (sT, sWAVE))
        g.I('s_add_u32 s%d, s%d, s%d' % (sKV, sKV, sT))
    g.I('s_lshr_b32 s%d, s2, 3' % sH)
    g.I('s_and_b32 s%d, s2, 7' % sCB)
    g.I('s_lshr_b32 s%d, s2, 6' % sG)
    g.I('s_mov_b32 s%d, 0' % sCNT)
    g.I('s_mov_b32 s%d, 0x05040100' % sSEL0)
    g.I('s_mov_b32 s%d, 0x07060302' % sSEL1)
    g.I('s_mov_b32 s%d, %s' % (sSCALE, f32(128 ** -0.5)))
    g.I('s_mov_b32 s%d, %s' % (sLOG2E, f32(1.4426950408889634)))
    g.I('s_waitcnt lgkmcnt(0)')
    srd(g, SRD_K, 10, 1 << 26)
    srd(g, SRD_V, 12, 1 << 26)
    srd(g, SRD_X, 8, 2048)
    srd(g, SRD_WQ, 14, 1 << 23)
    srd(g, SRD_WO, 16, 1 << 23)
    g.I('s_cmp_lt_u32 s%d, 4' % sCB)
    g.I('s_cselect_b32 s%d, s20, s22' % SRD_GU)
    g.I('s_cselect_b32 s%d, s21, s23' % (SRD_GU + 1))
    g.I('s_and_b32 s%d, s%d, 0xffff' % (SRD_GU + 1, SRD_GU + 1))
    g.I('s_mov_b32 s%d, 0x%x' % (SRD_GU + 2, 1024 * 3584 * 2))
    g.I('s_mov_b32 s%d, 0x00020000' % (SRD_GU + 3))
    srd(g, SRD_WD, 24, 3584 * 1024 * 2)
    srd(g, SRD_OUT, 26, 2048)
    srd(g, SRD_DBG, 28, 256)
    srd(g, SRD_WS, 30, WS_SIZE)
    g.I('v_mov_b32 v%d, 0' % vST)
    stamp(g, 'entry')
    g.I('s_cmp_eq_u32 s%d, 0' % sWAVE)
    g.I('s_cbranch_scc1 L_wave0')
    g.fence()
    main_path(g, False)
    g.label('L_wave0')
    g.vm_reset()
    prologue_wave0(g)
    main_path(g, True)
    g.label('L_end')
    g.I('s_endpgm')
    out.append(g.text())
    out.append('.section .rodata,"a"')
    out.append('.p2align 6')
    out.append('.amdhsa_kernel %s_kernel' % NAME)
    out.append('  .amdhsa_next_free_vgpr 256')
    out.append('  .amdhsa_next_free_sgpr 102')
    out.append('  .amdhsa_accum_offset 256')
    out.append('  .amdhsa_group_segment_fixed_size 0')
    out.append('  .amdhsa_kernarg_size 96')
    out.append('  .amdhsa_user_sgpr_count 2')
    out.append('  .amdhsa_user_sgpr_kernarg_segment_ptr 1')
    out.append('  .amdhsa_system_sgpr_workgroup_id_x 1')
    out.append('  .amdhsa_float_denorm_mode_32 3')
    out.append('.end_amdhsa_kernel')
    return '\n'.join(out) + '\n'


if __name__ == '__main__':
    dst = sys.argv[1] if len(sys.argv) > 1 else 'cdna_kernels/%s.s' % NAME
    open(dst, 'w').write(build())
    print('wrote', dst)
    if P.get('STAMPS'):
        open(dst + '.stamps', 'w').write('\n'.join(STAMP_NAMES))
```

```python
import sys
import struct
from dsl import Gen

NAME = 'parallel_sum__gqa_block_cached__geglu_ffn__decode'

P = dict(
    W=4,
    W0=10,
    WP=16,
    NT_K='',
    NT_V=' nt',
    NT_W=' nt',
    SLEEP=1,
    QSLEEP=4,
    TW=3,
    WT=8,
    KG=16,
    REMAP=1,
    PLAIN=0,
    KL=2,
    WV=0,
    WVT=2,
    QPOS=6,
    QPOS0=8,
    TSLEEP=4,
    ILV=2,
    QPOLL=' sc1',
)
for a in sys.argv[2:]:
    k, v = a.split('=')
    P[k] = int(v) if v.lstrip('-').isdigit() else v


def f32(x):
    return '0x%08x' % struct.unpack('<I', struct.pack('<f', x))[0]


L_XN = 0
L_Q = 2048
L_FLAG = 4096
L_OW = 8192
L_ML = L_OW + 8 * 4224
L_FR = L_ML + 512
LDS_BYTES = L_FR + 8192

WS_QP = 0
WS_AP = 0x100000
WS_ML = 0x200000
WS_GP = 0x300000
WS_FP = 0x400000
WS_MB = 0x440000
WS_SIZE = 0x500000

sWAVE = 3
sKV = 4
sT = 5
sT2 = 6
sCNT = 7
SRD_K, SRD_V, SRD_WQ, SRD_WO, SRD_GU, SRD_WD, SRD_WS, SRD_X, SRD_OUT, SRD_DBG = 32, 36, 40, 44, 48, 52, 56, 60, 64, 68
sSEL0, sSEL1 = 72, 73
sSCALE, sLOG2E = 74, 75
sH = 76
sCB = 77
sG = 78
sA, sB, sC, sD = 80, 81, 82, 83
sE, sF = 84, 85
sEX = 86

vLANE, vN, vJ = 0, 2, 3
vKOFF, vVOFF = 4, 5
vT0, vT1, vT2, vT3, vT4, vT5 = 6, 7, 8, 9, 10, 11
vZERO = 12
vM, vL = 14, 15
QF = 16
SA = 32
VA = 64
KR = 128
OA = 192
PT = 224
PF = 240

SPIN_MAX = 200000


def srd(g, d, ptr, size):
    g.I('s_mov_b32 s%d, s%d' % (d, ptr))
    g.I('s_and_b32 s%d, s%d, 0xffff' % (d + 1, ptr + 1))
    g.I('s_mov_b32 s%d, 0x%x' % (d + 2, size))
    g.I('s_mov_b32 s%d, 0x00020000' % (d + 3))


def vr(a, n=4):
    return 'v[%d:%d]' % (a, a + n - 1)


def sq(d):
    return 's[%d:%d]' % (d, d + 3)


def row_allreduce(g, op, v, tmp=None):
    for r in (1, 2, 4, 8):
        g.I('%s_dpp v%d, v%d, v%d row_ror:%d row_mask:0xf bank_mask:0xf' % (op, v, v, v, r))


def row_allreduce_multi(g, op, vs):
    for r in (1, 2, 4, 8):
        for v in vs:
            g.I('%s_dpp v%d, v%d, v%d row_ror:%d row_mask:0xf bank_mask:0xf' % (op, v, v, v, r))


def xrow_allreduce(g, op, v, t):
    g.I('v_mov_b32 v%d, v%d' % (t, v))
    g.I('v_permlane16_swap_b32 v%d, v%d' % (v, t))
    g.I('%s v%d, v%d, v%d' % (op, v, v, t))
    g.I('v_mov_b32 v%d, v%d' % (t, v))
    g.I('v_permlane32_swap_b32 v%d, v%d' % (v, t))
    g.I('%s v%d, v%d, v%d' % (op, v, v, t))


def bf_round(g, v, t):
    g.I('v_cvt_pk_bf16_f32 v%d, v%d, v%d' % (t, v, v))
    g.I('v_lshlrev_b32 v%d, 16, v%d' % (v, t))


def bf_round2(g, a, b, t):
    g.I('v_cvt_pk_bf16_f32 v%d, v%d, v%d' % (t, a, b))
    g.I('v_lshlrev_b32 v%d, 16, v%d' % (a, t))
    g.I('v_and_b32 v%d, 0xffff0000, v%d' % (b, t))


def tile32(g, R, frag, acc, first, frag_is_A=False, PT=PT):
    def perms(dd):
        t = PT + (dd & 3) * 4
        for q in range(4):
            g.I('v_perm_b32 v%d, v%d, v%d, s%d' % (t + q, R + (2 * q + 1) * 4 + (dd >> 1), R + (2 * q) * 4 + (dd >> 1),
                                                  sSEL1 if dd & 1 else sSEL0))
    perms(0)
    for dd in range(8):
        if dd < 7:
            perms(dd + 1)
        t = PT + (dd & 3) * 4
        c = '0' if first else vr(acc + 4 * dd)
        if frag_is_A:
            g.I('v_mfma_f32_16x16x32_bf16 %s, %s, %s, %s' % (vr(acc + 4 * dd), vr(frag), vr(t), c))
        else:
            g.I('v_mfma_f32_16x16x32_bf16 %s, %s, %s, %s' % (vr(acc + 4 * dd), vr(t), vr(frag), c))


def tile16(g, R, frag, acc):
    def perms(dd):
        t = PT + (dd & 3) * 4
        for q in range(2):
            g.I('v_perm_b32 v%d, v%d, v%d, s%d' % (t + q, R + (2 * q + 1) * 4 + (dd >> 1), R + (2 * q) * 4 + (dd >> 1),
                                                  sSEL1 if dd & 1 else sSEL0))
    perms(0)
    perms(1)
    for dd in range(8):
        if dd < 6:
            perms(dd + 2)
        t = PT + (dd & 3) * 4
        g.I('v_mfma_f32_16x16x16_bf16 %s, %s, %s, 0' % (vr(acc + 4 * dd), vr(frag, 2), vr(t, 2)))


vST = 13
WS_ST = 0x480000
STAMP_NAMES = []


DBG_NAMES = ['entry', 'w0_issued', 'w0_qproj', 'w0_atomic', 'w0_polled', 'main_start', 'q_ready', 'sm_done', 'pv_done', 'b3', 'pre_b5', 'ml_ok', 'b4', 'end']


def stamp(g, name):
    if P.get('DBGST'):
        if name in DBG_NAMES:
            g.I('s_memrealtime s[88:89]')
            g.I('s_waitcnt lgkmcnt(0)')
            g.I('v_writelane_b32 v%d, s88, %d' % (vST, 1 + DBG_NAMES.index(name)))
        return
    if not P.get('STAMPS'):
        return
    if name not in STAMP_NAMES:
        STAMP_NAMES.append(name)
    k = STAMP_NAMES.index(name)
    g.I('s_memrealtime s[88:89]')
    g.I('s_waitcnt lgkmcnt(0)')
    g.I('v_writelane_b32 v%d, s88, %d' % (vST, k))


def stamp_store(g, final=False):
    if P.get('DBGST'):
        if final:
            lb = g.newlabel('L_dbg')
            g.I('s_mov_b64 exec, 1')
            g.I('v_mov_b32 v1, s88')
            g.I('buffer_atomic_umax v1, v%d, %s, 0 offen offset:60' % (vZERO, sq(SRD_DBG)))
            g.I('s_cmp_lg_u32 s2, %d' % P.get('DBGWG', 0))
            g.I('s_cbranch_scc1 %s' % lb)
            g.I('s_mov_b64 exec, 0x7ffe')
            g.I('v_lshlrev_b32 v1, 2, v0')
            g.I('s_nop 4')
            g.I('buffer_store_dword v%d, v1, %s, 0 offen' % (vST, sq(SRD_DBG)))
            g.label(lb)
        return
    if not P.get('STAMPS'):
        return
    g.I('s_mov_b64 exec, -1')
    g.I('s_lshl_b32 s88, s2, 11')
    g.I('s_lshl_b32 s89, s%d, 8' % sWAVE)
    g.I('s_add_u32 s88, s88, s89')
    g.I('s_add_u32 s88, s88, 0x%x' % WS_ST)
    g.I('v_lshlrev_b32 v1, 2, v0')
    g.I('s_nop 4')
    g.I('buffer_store_dword v%d, v1, %s, s88 offen' % (vST, sq(SRD_WS)))


def spin_guard(g, done_label):
    g.I('s_add_u32 s%d, s%d, 1' % (sCNT, sCNT))
    g.I('s_cmp_ge_u32 s%d, %d' % (sCNT, SPIN_MAX))
    g.I('s_cbranch_scc1 %s' % done_label)


def poll_valid(g, loads, regs, tmp, sleep=None, plain_first=False):
    lp = g.newlabel('L_poll')
    dn = g.newlabel('L_polld')

    def check():
        g.I('s_waitcnt vmcnt(0)')
        rs = list(regs)
        g.I('v_max_u32 v%d, v%d, v%d' % (tmp, rs[0], rs[1]))
        i = 2
        while i < len(rs):
            if i + 1 < len(rs):
                g.I('v_max3_u32 v%d, v%d, v%d, v%d' % (tmp, tmp, rs[i], rs[i + 1]))
                i += 2
            else:
                g.I('v_max_u32 v%d, v%d, v%d' % (tmp, tmp, rs[i]))
                i += 1
        g.I('v_cmp_eq_u32 vcc, -1, v%d' % tmp)
        g.I('s_cbranch_vccz %s' % dn)
    if plain_first and P['PLAIN']:
        for t in loads:
            g.I(t.replace(' sc1', ''))
        check()
    g.label(lp)
    for t in loads:
        g.I(t)
    check()
    spin_guard(g, dn)
    g.I('s_sleep %d' % (P['SLEEP'] if sleep is None else sleep))
    g.I('s_branch %s' % lp)
    g.label(dn)
    g.vm_reset()


def prologue_wave0(g):
    g.comment('---------------- wave 0 prologue: LN, q-proj slice, clears, sync, Q assembly')
    ntw = P['NT_W']
    g.I('v_lshlrev_b32 v%d, 5, v%d' % (vT0, vLANE))
    g.vmem('buffer_load_dwordx4 %s, v%d, %s, 0 offen' % (vr(16), vT0, sq(SRD_X)), 'x')
    g.vmem('buffer_load_dwordx4 %s, v%d, %s, 0 offen offset:16' % (vr(20), vT0, sq(SRD_X)), 'x')
    g.I('v_lshlrev_b32 v%d, 16, v%d' % (vT1, vJ))
    g.I('v_lshl_add_u32 v%d, v%d, 4, v%d' % (vT1, vN, vT1))
    g.I('s_lshl_b32 s%d, s%d, 20' % (sA, sCB))
    g.I('s_lshl_b32 s%d, s%d, 8' % (sB, sH))
    g.I('s_add_u32 s%d, s%d, s%d' % (sA, sA, sB))
    for T in range(4):
        for e in range(8):
            g.I('s_add_u32 s%d, s%d, 0x%x' % (sT, sA, (32 * T + e) * 8192))
            g.vmem('buffer_load_dwordx4 %s, v%d, %s, s%d offen%s' % (vr(KR + (T * 8 + e) * 4), vT1, sq(SRD_WQ), sT, ntw),
                   'wq%d' % T, P['WP'])
    for i in range(4):
        g.I('v_mov_b32 v%d, -1' % (24 + i))
    g.I('v_lshrrev_b32 v%d, 2, v%d' % (vT2, vLANE))
    g.I('v_lshlrev_b32 v%d, 12, v%d' % (vT2, vT2))
    g.I('v_and_b32 v%d, 3, v%d' % (vT3, vLANE))
    g.I('v_lshl_add_u32 v%d, v%d, 4, v%d' % (vT2, vT3, vT2))
    g.I('s_lshl_b32 s%d, s%d, 18' % (sA, sG))
    g.I('s_and_b32 s%d, s2, 63' % sB)
    g.I('s_lshl_b32 s%d, s%d, 6' % (sB, sB))
    g.I('s_add_u32 s%d, s%d, s%d' % (sA, sA, sB))
    for i in range(4):
        g.I('s_add_u32 s%d, s%d, 0x%x' % (sT, sA, WS_AP + i * 65536))
        g.vmem('buffer_store_dwordx4 %s, v%d, %s, s%d offen sc1' % (vr(24), vT2, sq(SRD_WS), sT), 'clr')
    g.I('s_mul_i32 s%d, s%d, 28672' % (sA, sH))
    g.I('s_mul_i32 s%d, s%d, 3584' % (sB, sCB))
    g.I('s_add_u32 s%d, s%d, s%d' % (sA, sA, sB))
    g.I('s_add_u32 s%d, s%d, 0x%x' % (sA, sA, WS_GP))
    for i in range(3):
        g.vmem('buffer_store_dwordx4 %s, v%d, %s, s%d offen offset:%d sc1' % (vr(24), vVOFF, sq(SRD_WS), sA, i * 1024), 'clr')
    g.I('s_mov_b32 exec_lo, -1')
    g.I('s_mov_b32 exec_hi, 0')
    g.vmem('buffer_store_dwordx4 %s, v%d, %s, s%d offen offset:%d sc1' % (vr(24), vVOFF, sq(SRD_WS), sA, 3072), 'clr')
    g.I('s_mov_b64 exec, 0xff')
    g.I('v_lshlrev_b32 v%d, 9, v%d' % (vT2, vLANE))
    g.I('s_lshl_b32 s%d, s%d, 12' % (sA, sG))
    g.I('s_and_b32 s%d, s2, 63' % sB)
    g.I('s_lshl_b32 s%d, s%d, 3' % (sB, sB))
    g.I('s_add_u32 s%d, s%d, s%d' % (sA, sA, sB))
    g.I('s_add_u32 s%d, s%d, 0x%x' % (sA, sA, WS_ML))
    g.vmem('buffer_store_dwordx2 %s, v%d, %s, s%d offen sc1' % (vr(24, 2), vT2, sq(SRD_WS), sA), 'clr')
    g.I('s_mov_b64 exec, -1')
    g.I('s_lshl_b32 s%d, s%d, 15' % (sA, sCB))
    g.I('s_lshl_b32 s%d, s%d, 10' % (sB, sH))
    g.I('s_add_u32 s%d, s%d, s%d' % (sA, sA, sB))
    g.I('s_add_u32 s%d, s%d, 0x%x' % (sA, sA, WS_FP))
    g.vmem('buffer_store_dwordx4 %s, v%d, %s, s%d offen sc1' % (vr(24), vVOFF, sq(SRD_WS), sA), 'clr')
    g.I('s_lshl_b32 s%d, s%d, 7' % (sF, sH))
    g.I('s_add_u32 s%d, s%d, 0x%x' % (sF, sF, WS_MB))
    g.I('s_lshl_b32 s%d, s2, 7' % sA)
    g.I('s_add_u32 s%d, s%d, 0x%x' % (sA, sA, WS_MB + 8192))
    g.I('s_cmp_eq_u32 s%d, 0' % sCB)
    g.I('s_cselect_b32 s%d, s%d, s%d' % (sA, sF, sA))
    g.I('s_mov_b64 exec, 1')
    g.vmem('buffer_store_dword v%d, v%d, %s, s%d offen sc1' % (vZERO, vZERO, sq(SRD_WS), sA), 'clr')
    g.I('s_mov_b64 exec, -1')
    g.I('ds_write_b32 v%d, v%d offset:%d' % (vZERO, vZERO, L_FLAG))
    g.I('s_waitcnt lgkmcnt(0)')
    g.I('s_barrier')
    stamp(g, 'w0_issued')
    g.vm_wait('x')
    X = SA
    for d in range(8):
        g.I('v_lshlrev_b32 v%d, 16, v%d' % (X + 2 * d, 16 + d))
        g.I('v_and_b32 v%d, 0xffff0000, v%d' % (X + 2 * d + 1, 16 + d))
    S = 48
    g.I('v_add_f32 v%d, v%d, v%d' % (S, X, X + 1))
    for i in range(2, 16):
        g.I('v_add_f32 v%d, v%d, v%d' % (S, S, X + i))

    def wave_sum(v):
        row_allreduce(g, 'v_add_f32', v)
        xrow_allreduce(g, 'v_add_f32', v, 49)
    wave_sum(S)
    MEAN = 50
    g.I('v_mul_f32 v%d, %s, v%d' % (MEAN, f32(1.0 / 1024), S))
    D = 51
    g.I('v_mov_b32 v%d, 0' % S)
    for i in range(16):
        g.I('v_sub_f32 v%d, v%d, v%d' % (D, X + i, MEAN))
        g.I('v_fmac_f32 v%d, v%d, v%d' % (S, D, D))
    wave_sum(S)
    VAR = 52
    g.I('v_mul_f32 v%d, %s, v%d' % (VAR, f32(1.0 / 1024), S))
    bf_round(g, MEAN, 53)
    bf_round(g, VAR, 53)
    g.I('v_add_f32 v%d, %s, v%d' % (VAR, f32(1e-5), VAR))
    bf_round(g, VAR, 53)
    SD = 54
    g.I('v_sqrt_f32 v%d, v%d' % (SD, VAR))
    g.I('v_rcp_f32 v%d, v%d' % (55, SD))
    g.I('v_fma_f32 v%d, -v%d, v%d, v%d' % (56, SD, SD, VAR))
    g.I('v_mul_f32 v%d, 0.5, v%d' % (55, 55))
    g.I('v_fmac_f32 v%d, v%d, v%d' % (SD, 56, 55))
    bf_round(g, SD, 53)
    RC = 55
    g.I('v_rcp_f32 v%d, v%d' % (RC, SD))
    for d in range(8):
        a, b = X + 2 * d, X + 2 * d + 1
        g.I('v_sub_f32 v%d, v%d, v%d' % (a, a, MEAN))
        g.I('v_sub_f32 v%d, v%d, v%d' % (b, b, MEAN))
        bf_round2(g, a, b, 53)
        for x in (a, b):
            g.I('v_mul_f32 v%d, v%d, v%d' % (56, x, RC))
            g.I('v_fma_f32 v%d, -v%d, v%d, v%d' % (57, 56, SD, x))
            g.I('v_fma_f32 v%d, v%d, v%d, v%d' % (x, 57, RC, 56))
        g.I('v_cvt_pk_bf16_f32 v%d, v%d, v%d' % (16 + d, a, b))
    g.I('ds_write_b128 v%d, %s offset:%d' % (vT0, vr(16), L_XN))
    g.I('ds_write_b128 v%d, %s offset:%d' % (vT0, vr(20), L_XN + 16))
    g.I('v_lshlrev_b32 v%d, 4, v%d' % (vT2, vJ))
    g.I('s_lshl_b32 s%d, s%d, 8' % (sA, sCB))
    g.I('v_add_u32 v%d, s%d, v%d' % (vT2, sA, vT2))
    g.I('s_waitcnt lgkmcnt(0)')
    for T in range(4):
        g.I('ds_read_b128 %s, v%d offset:%d' % (vr(16 + 4 * T), vT2, L_XN + 64 * T))
    g.vm_wait('clr')
    g.I('v_mov_b32 v%d, 1' % vT3)
    g.I('ds_write_b32 v%d, v%d offset:%d' % (vZERO, vT3, L_FLAG))
    g.I('s_waitcnt lgkmcnt(0)')
    ACC = SA
    for T in range(4):
        g.vm_wait('wq%d' % T)
        tile32(g, KR + T * 32, 16 + 4 * T, ACC, T == 0, frag_is_A=True, PT=VA)
    for dd in range(8):
        g.I('v_mov_b32 v%d, v%d' % (16 + dd, ACC + 4 * dd))
    stamp(g, 'w0_qproj')
    g.I('v_lshlrev_b32 v%d, 5, v%d' % (vT2, vN))
    g.I('s_lshl_b32 s%d, s%d, 15' % (sA, sG))
    g.I('s_lshl_b32 s%d, s%d, 12' % (sB, sCB))
    g.I('s_add_u32 s%d, s%d, s%d' % (sA, sA, sB))
    g.I('s_and_b32 s%d, s%d, 7' % (sB, sH))
    g.I('s_lshl_b32 s%d, s%d, 9' % (sB, sB))
    g.I('s_add_u32 s%d, s%d, s%d' % (sB, sA, sB))
    g.I('s_mov_b64 exec, 0xffff')
    g.vmem('buffer_store_dwordx4 %s, v%d, %s, s%d offen sc1' % (vr(16), vT2, sq(SRD_WS), sB), 'qp')
    g.vmem('buffer_store_dwordx4 %s, v%d, %s, s%d offen offset:16 sc1' % (vr(20), vT2, sq(SRD_WS), sB), 'qp')
    g.I('s_mov_b64 exec, 1')
    g.I('v_mov_b32 v%d, 1' % vT3)
    g.vm_wait_all()
    g.I('buffer_atomic_add v%d, v%d, %s, 0 offen sc0' % (vT3, vZERO, sq(SRD_DBG)))
    g.I('s_waitcnt vmcnt(0)')
    g.I('v_readfirstlane_b32 s%d, v%d' % (sB, vT3))
    g.I('s_mov_b64 exec, -1')
    stamp(g, 'w0_atomic')
    lp = g.newlabel('L_qpoll')
    dn = g.newlabel('L_qpolld')
    g.I('s_and_b32 s%d, s%d, 255' % (sB, sB))
    g.I('s_cmp_lg_u32 s%d, 255' % sB)
    g.I('s_cbranch_scc1 %s' % lp)
    g.I('v_lshlrev_b32 v%d, 7, v%d' % (vT3, vLANE))
    g.I('v_mov_b32 v%d, 1' % vT4)
    g.I('s_mov_b32 s%d, 0x%x' % (sB, WS_MB))
    g.I('s_mov_b32 exec_hi, 0')
    g.I('buffer_store_dword v%d, v%d, %s, s%d offen sc1' % (vT4, vT3, sq(SRD_WS), sB))
    g.I('s_mov_b64 exec, -1')
    g.I('s_branch %s' % dn)
    g.label(lp)
    g.I('buffer_load_dword v16, v%d, %s, s%d offen sc1' % (vZERO, sq(SRD_WS), sF))
    g.I('s_waitcnt vmcnt(0)')
    g.I('v_readfirstlane_b32 s%d, v16' % sB)
    g.I('s_nop 3')
    g.I('s_cmp_eq_u32 s%d, 1' % sB)
    g.I('s_cbranch_scc1 %s' % dn)
    spin_guard(g, dn)
    g.I('s_sleep %d' % P['QSLEEP'])
    g.I('s_branch %s' % lp)
    g.label(dn)
    g.vm_reset()
    stamp(g, 'w0_polled')
    g.I('s_lshl_b32 s%d, s%d, 15' % (sA, sG))
    for ks in range(8):
        g.I('s_add_u32 s%d, s%d, 0x%x' % (sT, sA, WS_QP + ks * 4096))
        for i in range(4):
            g.vmem('buffer_load_dwordx4 %s, v%d, %s, s%d offen offset:%d%s' % (vr(KR + (ks * 4 + i) * 4), vVOFF, sq(SRD_WS), sT, i * 1024, '' if P['PLAIN'] else ' sc1'),
                   'q%d' % ks, P['WP'])
    for ks in range(1, 8):
        g.vm_wait('q%d' % ks)
        for r in range(16):
            g.I('v_add_f32 v%d, v%d, v%d' % (KR + r, KR + r, KR + ks * 16 + r))
    g.I('v_lshlrev_b32 v%d, 3, v%d' % (vT2, vLANE))
    for i in range(4):
        g.I('v_cvt_pk_bf16_f32 v%d, v%d, v%d' % (16 + 2 * i, KR + 4 * i, KR + 4 * i + 1))
        g.I('v_cvt_pk_bf16_f32 v%d, v%d, v%d' % (17 + 2 * i, KR + 4 * i + 2, KR + 4 * i + 3))
        g.I('ds_write_b64 v%d, %s offset:%d' % (vT2, vr(16 + 2 * i, 2), L_Q + i * 512))
    g.I('v_mov_b32 v%d, 2' % vT3)
    g.I('s_waitcnt lgkmcnt(0)')
    g.I('ds_write_b32 v%d, v%d offset:%d' % (vZERO, vT3, L_FLAG))


def wait_flag(g, val):
    lp = g.newlabel('L_fl')
    dn = g.newlabel('L_fld')
    g.label(lp)
    g.I('ds_read_b32 v%d, v%d offset:%d' % (vT0, vZERO, L_FLAG))
    g.I('s_waitcnt lgkmcnt(0)')
    g.I('v_readfirstlane_b32 s%d, v%d' % (sA, vT0))
    g.I('s_nop 3')
    g.I('s_cmp_ge_u32 s%d, %d' % (sA, val))
    g.I('s_cbranch_scc1 %s' % dn)
    spin_guard(g, dn)
    g.I('s_sleep 1')
    g.I('s_branch %s' % lp)
    g.label(dn)


def main_path(g, w0):
    W = P['W0'] if w0 else P['W']
    ntk, ntv, ntw = P['NT_K'], P['NT_V'], P['NT_W']
    g.comment('---------------- main path (wave0=%s)' % w0)
    stamp(g, 'main_start')

    def kload(t, i):
        if P['KL'] == 2:
            X = 2 * t + (i >> 1)
            g.I('s_add_u32 s%d, s%d, 0x%x' % (sT, sKV, X << 20))
            g.vmem('buffer_load_dwordx4 %s, v%d, %s, s%d offen offset:%d%s' % (vr(KR + (t * 4 + i) * 4), vKOFF, sq(SRD_K), sT, (i & 1) * 128, ntk),
                   'k%d' % t, W)
            return
        if i == 0:
            koff = {0: t * 4096, 1: ((t >> 1) << 22) + (t & 1) * 4096, 2: t << 21}[P['ILV']]
            g.I('s_add_u32 s%d, s%d, 0x%x' % (sT, sKV, koff))
        g.vmem('buffer_load_dwordx4 %s, v%d, %s, s%d offen offset:%d%s' % (vr(KR + (t * 4 + i) * 4), vKOFF, sq(SRD_K), sT, i * 64, ntk),
               'k%d' % t, W)

    def vbase(T):
        return VA + 32 * T if T < 2 else KR + 32 * (T - 2)

    def vload(T, e):
        if P['ILV'] == 2:
            g.I('s_add_u32 s%d, s%d, 0x%x' % (sT2, sKV, (T * 8 + e) << 19))
            g.vmem('buffer_load_dwordx4 %s, v%d, %s, s%d offen%s' % (vr(vbase(T) + e * 4), vVOFF, sq(SRD_V), sT2, ntv),
                   'v%d' % T, P['WV'] if (P['WV'] and not w0 and T >= P['WVT']) else W)
            return
        if e % 4 == 0:
            g.I('s_add_u32 s%d, s%d, 0x%x' % (sT2, sKV, ((T << 22) if P['ILV'] else T * 8192) + (e // 4) * 4096))
        g.vmem('buffer_load_dwordx4 %s, v%d, %s, s%d offen offset:%d%s' % (vr(vbase(T) + e * 4), vVOFF, sq(SRD_V), sT2, (e % 4) * 1024, ntv),
               'v%d' % T, W)

    if not w0:
        GR = VA
        vGO = vT2
        g.I('s_mov_b32 s%d, 57344' % sA)
        g.I('v_mul_lo_u32 v%d, v%d, s%d' % (vGO, vJ, sA))
        g.I('v_lshl_add_u32 v%d, v%d, 4, v%d' % (vGO, vN, vGO))
        g.I('s_mul_i32 s%d, s%d, %d' % (sA, sH, 32 * 7168))
        g.I('s_and_b32 s%d, s%d, 3' % (sB, sCB))
        g.I('s_mul_i32 s%d, s%d, 1792' % (sB, sB))
        g.I('s_add_u32 s%d, s%d, s%d' % (sA, sA, sB))
        g.I('s_lshl_b32 s%d, s%d, 8' % (sB, sWAVE))
        g.I('s_add_u32 s%d, s%d, s%d' % (sA, sA, sB))
        g.I('s_sub_u32 s%d, s%d, 256' % (sA, sA))
        for e in range(8):
            g.I('s_add_u32 s%d, s%d, %d' % (sT, sA, e * 7168))
            g.vmem('buffer_load_dwordx4 %s, v%d, %s, s%d offen%s' % (vr(GR + 4 * e), vGO, sq(SRD_GU), sT, ntw), 'g', W)
            if e == min(W, 8) - 1:
                g.I('s_barrier')
    n = 0
    for t in range(8):
        for i in range(4):
            kload(t, i)
            n += 1
            if not w0 and n == P['KG']:
                wait_flag(g, 1)
                stamp(g, 'xn_ready')
                g.I('v_lshlrev_b32 v%d, 4, v%d' % (vT0, vJ))
                g.I('s_lshl_b32 s%d, s%d, 6' % (sA, sH))
                g.I('v_add_u32 v%d, s%d, v%d' % (vT0, sA, vT0))
                g.I('ds_read_b128 %s, v%d offset:%d' % (vr(QF), vT0, L_XN))
                g.I('s_waitcnt lgkmcnt(0)')
                g.vm_wait('g')
                tile32(g, GR, QF, SA, True, frag_is_A=True, PT=VA + 32)
                for dd in range(8):
                    g.I('v_mov_b32 v%d, v%d' % (QF + 8 + dd, SA + 4 * dd))
                g.I('s_mul_i32 s%d, s%d, 28672' % (sA, sH))
                g.I('s_mul_i32 s%d, s%d, 3584' % (sB, sCB))
                g.I('s_add_u32 s%d, s%d, s%d' % (sA, sA, sB))
                g.I('s_lshl_b32 s%d, s%d, 9' % (sB, sWAVE))
                g.I('s_add_u32 s%d, s%d, s%d' % (sA, sA, sB))
                g.I('s_add_u32 s%d, s%d, 0x%x' % (sA, sA, WS_GP - 512))
                g.I('v_lshlrev_b32 v%d, 5, v%d' % (vT0, vN))
                g.I('s_mov_b64 exec, 0xffff')
                g.vmem('buffer_store_dwordx4 %s, v%d, %s, s%d offen sc1' % (vr(QF + 8), vT0, sq(SRD_WS), sA), 'gp')
                g.vmem('buffer_store_dwordx4 %s, v%d, %s, s%d offen offset:16 sc1' % (vr(QF + 12), vT0, sq(SRD_WS), sA), 'gp')
                g.I('s_mov_b64 exec, -1')
                stamp(g, 'gu_done')
                if i != 3:
                    koff = {0: t * 4096, 1: ((t >> 1) << 22) + (t & 1) * 4096, 2: t << 21}[P['ILV']]
                    g.I('s_add_u32 s%d, s%d, 0x%x' % (sT, sKV, koff))
    pend = [(T, e) for T in range(4) for e in range(8)]

    def issue(nn):
        for _ in range(nn):
            if pend:
                T, e = pend.pop(0)
                vload(T, e)

    def issue_through(T):
        while pend and pend[0][0] <= T:
            issue(1)

    issue(P['QPOS0'] if w0 else P['QPOS'])
    stamp(g, 'kv_issued')
    if not w0:
        wait_flag(g, 2)
    if P['KL'] == 2:
        g.I('v_and_b32 v%d, 7, v%d' % (vT0, vN))
        g.I('v_lshlrev_b32 v%d, 8, v%d' % (vT0, vT0))
        g.I('v_lshl_add_u32 v%d, v%d, 4, v%d' % (vT0, vJ, vT0))
        g.I('v_lshrrev_b32 v%d, 3, v%d' % (vT1, vN))
        g.I('v_lshl_add_u32 v%d, v%d, 6, v%d' % (vT0, vT1, vT0))
        for i in range(2):
            g.I('ds_read_b128 %s, v%d offset:%d' % (vr(QF + 4 * i), vT0, L_Q + i * 128))
        g.I('s_waitcnt lgkmcnt(0)')
        stamp(g, 'q_ready')

        def dreg(X):
            return QF + 8 if X == 0 else KR + (X - 1) * 8

        def adds(X):
            d = dreg(X)
            g.I('v_add_f32_dpp v%d, v%d, v%d row_ror:8 row_mask:0xf bank_mask:0xf' % (SA + 2 * X, d + 1, d))
            g.I('v_add_f32_dpp v%d, v%d, v%d row_ror:8 row_mask:0xf bank_mask:0xf' % (SA + 2 * X + 1, d + 3, d + 2))
        for X in range(16):
            g.vm_wait('k%d' % (X >> 1))
            d = dreg(X)
            g.I('v_mfma_f32_16x16x32_bf16 %s, %s, %s, 0' % (vr(d), vr(KR + X * 8), vr(QF)))
            g.I('v_mfma_f32_16x16x32_bf16 %s, %s, %s, %s' % (vr(d), vr(KR + X * 8 + 4), vr(QF + 4), vr(d)))
            if X >= 3:
                adds(X - 3)
        for X in range(13, 16):
            adds(X)
    else:
        g.I('v_and_b32 v%d, 7, v%d' % (vT0, vN))
        g.I('v_lshlrev_b32 v%d, 8, v%d' % (vT0, vT0))
        g.I('v_lshl_add_u32 v%d, v%d, 4, v%d' % (vT0, vJ, vT0))
        for i in range(4):
            g.I('ds_read_b128 %s, v%d offset:%d' % (vr(QF + 4 * i), vT0, L_Q + i * 64))
        g.I('s_waitcnt lgkmcnt(0)')
        stamp(g, 'q_ready')
        for t in range(8):
            g.vm_wait('k%d' % t)
            for i in range(4):
                c = '0' if i == 0 else vr(SA + 4 * t)
                g.I('v_mfma_f32_16x16x32_bf16 %s, %s, %s, %s' % (vr(SA + 4 * t), vr(KR + (t * 4 + i) * 4), vr(QF + 4 * i), c))
    stamp(g, 'qk_done')
    for r in range(0, 32, 2):
        a, b = SA + r, SA + r + 1
        bf_round2(g, a, b, vT0)
        g.I('v_mul_f32 v%d, s%d, v%d' % (a, sSCALE, a))
        g.I('v_mul_f32 v%d, s%d, v%d' % (b, sSCALE, b))
        bf_round2(g, a, b, vT1)
        if r == 0:
            g.I('v_max_f32 v%d, v%d, v%d' % (vM, a, b))
        else:
            g.I('v_max3_f32 v%d, v%d, v%d, v%d' % (vM, vM, a, b))
        if r % 8 == 6:
            issue(1)
    xrow_allreduce(g, 'v_max_f32', vM, vT0)
    for r in range(32):
        a = SA + r
        g.I('v_sub_f32 v%d, v%d, v%d' % (a, a, vM))
        g.I('v_mul_f32 v%d, s%d, v%d' % (a, sLOG2E, a))
        g.I('v_exp_f32 v%d, v%d' % (a, a))
        if r % 8 == 7:
            issue(1)
    g.I('v_add_f32 v%d, v%d, v%d' % (vL, SA, SA + 1))
    for r in range(2, 32):
        g.I('v_add_f32 v%d, v%d, v%d' % (vL, vL, SA + r))
    for r in range(0, 32, 2):
        g.I('v_cvt_pk_bf16_f32 v%d, v%d, v%d' % (PF + r // 2, SA + r, SA + r + 1))
    xrow_allreduce(g, 'v_add_f32', vL, vT0)
    WOR, WDR = VA + 32, VA + 48
    vWOO, vWDO = vT3, vT4
    g.I('v_lshlrev_b32 v%d, 11, v%d' % (vWOO, vJ))
    g.I('v_lshl_add_u32 v%d, v%d, 4, v%d' % (vWOO, vN, vWOO))
    g.I('v_lshlrev_b32 v%d, 13, v%d' % (vWDO, vJ))
    g.I('v_lshl_add_u32 v%d, v%d, 4, v%d' % (vWDO, vN, vWDO))
    stamp(g, 'sm_done')
    for T in range(4):
        issue_through(min(T + 1, 3))
        g.vm_wait('v%d' % T)
        if T == P['TW']:
            WW = P['WT']
            if not w0:
                g.I('s_mul_i32 s%d, s%d, 112' % (sA, sH))
                g.I('s_lshl_b32 s%d, s%d, 4' % (sB, sWAVE))
                g.I('s_add_u32 s%d, s%d, s%d' % (sA, sA, sB))
                g.I('s_sub_u32 s%d, s%d, 16' % (sE, sA))
                g.I('s_lshl_b32 s%d, s%d, 11' % (sA, sE))
                g.I('s_lshl_b32 s%d, s%d, 8' % (sB, sCB))
                g.I('s_add_u32 s%d, s%d, s%d' % (sA, sA, sB))
                for e in range(4):
                    g.I('s_add_u32 s%d, s%d, %d' % (sT, sA, e * 2048))
                    g.vmem('buffer_load_dwordx4 %s, v%d, %s, s%d offen%s' % (vr(WDR + 4 * e), vWDO, sq(SRD_WD), sT, ntw), 'wd', WW)
            g.I('s_lshl_b32 s%d, s%d, 7' % (sA, sH))
            g.I('s_lshr_b32 s%d, s%d, 1' % (sB, sWAVE))
            g.I('s_lshl_b32 s%d, s%d, 5' % (sB, sB))
            g.I('s_add_u32 s%d, s%d, s%d' % (sA, sA, sB))
            g.I('s_and_b32 s%d, s%d, 1' % (sB, sWAVE))
            g.I('s_lshl_b32 s%d, s%d, 2' % (sB, sB))
            g.I('s_add_u32 s%d, s%d, s%d' % (sA, sA, sB))
            g.I('s_lshl_b32 s%d, s%d, 11' % (sA, sA))
            g.I('s_lshl_b32 s%d, s%d, 8' % (sB, sCB))
            g.I('s_add_u32 s%d, s%d, s%d' % (sA, sA, sB))
            for e in range(4):
                g.I('s_add_u32 s%d, s%d, %d' % (sT, sA, e * 16384))
                g.vmem('buffer_load_dwordx4 %s, v%d, %s, s%d offen%s' % (vr(WOR + 4 * e), vWOO, sq(SRD_WO), sT, ntw), 'wo', WW)
        tile32(g, vbase(T), PF + 4 * T, OA, T == 0, frag_is_A=False)
    stamp(g, 'pv_done')
    g.I('s_mul_i32 s%d, s%d, 4224' % (sA, sWAVE))
    g.I('v_mul_u32_u24 v%d, 528, v%d' % (vT0, vN))
    g.I('v_lshl_add_u32 v%d, v%d, 7, v%d' % (vT0, vJ, vT0))
    g.I('v_add_u32 v%d, s%d, v%d' % (vT0, sA, vT0))
    g.I('s_mov_b32 s%d, 0x00ff00ff' % sEX)
    g.I('s_mov_b32 s%d, 0x00ff00ff' % (sEX + 1))
    g.I('s_mov_b64 exec, s[%d:%d]' % (sEX, sEX + 1))
    for dd in range(8):
        g.I('ds_write_b128 v%d, %s offset:%d' % (vT0, vr(OA + 4 * dd), L_OW + dd * 16))
    g.I('s_mov_b64 exec, 0xff')
    g.I('s_lshl_b32 s%d, s%d, 6' % (sA, sWAVE))
    g.I('v_lshlrev_b32 v%d, 3, v%d' % (vT1, vLANE))
    g.I('v_add_u32 v%d, s%d, v%d' % (vT1, sA, vT1))
    g.I('ds_write_b64 v%d, %s offset:%d' % (vT1, vr(vM, 2), L_ML))
    g.I('s_mov_b64 exec, -1')
    g.I('s_waitcnt lgkmcnt(0)')
    g.I('s_barrier')
    stamp(g, 'b3')
    CO = OA
    CM = OA + 16
    g.I('s_mul_i32 s%d, s%d, 528' % (sA, sWAVE))
    g.I('v_lshlrev_b32 v%d, 3, v%d' % (vT0, vLANE))
    g.I('v_add_u32 v%d, s%d, v%d' % (vT1, sA, vT0))
    g.I('s_lshl_b32 s%d, s%d, 3' % (sA, sWAVE))
    g.I('v_mov_b32 v%d, s%d' % (vT5, sA))
    for w in range(8):
        g.I('ds_read_b64 %s, v%d offset:%d' % (vr(CM + 2 * w, 2), vT5, L_ML + w * 64))
    for w in range(8):
        g.I('ds_read_b64 %s, v%d offset:%d' % (vr(CO + 2 * w, 2), vT1, L_OW + w * 4224))
    g.I('s_waitcnt lgkmcnt(0)')
    g.I('v_max3_f32 v%d, v%d, v%d, v%d' % (vM, CM, CM + 2, CM + 4))
    g.I('v_max3_f32 v%d, v%d, v%d, v%d' % (vM, vM, CM + 6, CM + 8))
    g.I('v_max3_f32 v%d, v%d, v%d, v%d' % (vM, vM, CM + 10, CM + 12))
    g.I('v_max_f32 v%d, v%d, v%d' % (vM, vM, CM + 14))
    for w in range(8):
        m = CM + 2 * w
        g.I('v_sub_f32 v%d, v%d, v%d' % (m, m, vM))
        g.I('v_mul_f32 v%d, s%d, v%d' % (m, sLOG2E, m))
        g.I('v_exp_f32 v%d, v%d' % (m, m))
    R0, R1 = PT, PT + 1
    for w in range(8):
        m = CM + 2 * w
        if w == 0:
            g.I('v_mul_f32 v%d, v%d, v%d' % (R0, m, CO))
            g.I('v_mul_f32 v%d, v%d, v%d' % (R1, m, CO + 1))
            g.I('v_mul_f32 v%d, v%d, v%d' % (vL, m, m + 1))
        else:
            g.I('v_fmac_f32 v%d, v%d, v%d' % (R0, m, CO + 2 * w))
            g.I('v_fmac_f32 v%d, v%d, v%d' % (R1, m, CO + 2 * w + 1))
            g.I('v_fmac_f32 v%d, v%d, v%d' % (vL, m, m + 1))
    g.I('v_lshrrev_b32 v%d, 3, v%d' % (vT0, vLANE))
    g.I('v_lshlrev_b32 v%d, 12, v%d' % (vT0, vT0))
    g.I('v_and_b32 v%d, 7, v%d' % (vT1, vLANE))
    g.I('v_lshl_add_u32 v%d, v%d, 3, v%d' % (vT0, vT1, vT0))
    g.I('s_lshl_b32 s%d, s%d, 18' % (sA, sG))
    g.I('s_lshl_b32 s%d, s%d, 15' % (sB, sWAVE))
    g.I('s_add_u32 s%d, s%d, s%d' % (sA, sA, sB))
    g.I('s_and_b32 s%d, s2, 63' % sB)
    g.I('s_lshl_b32 s%d, s%d, 6' % (sB, sB))
    g.I('s_add_u32 s%d, s%d, s%d' % (sA, sA, sB))
    g.I('s_add_u32 s%d, s%d, 0x%x' % (sA, sA, WS_AP))
    g.vmem('buffer_store_dwordx2 %s, v%d, %s, s%d offen sc1' % (vr(R0, 2), vT0, sq(SRD_WS), sA), 'ap')
    g.I('s_lshl_b32 s%d, s%d, 9' % (sB, sWAVE))
    g.I('s_lshl_b32 s%d, s%d, 12' % (sA, sG))
    g.I('s_add_u32 s%d, s%d, s%d' % (sA, sA, sB))
    g.I('s_and_b32 s%d, s2, 63' % sB)
    g.I('s_lshl_b32 s%d, s%d, 3' % (sB, sB))
    g.I('s_add_u32 s%d, s%d, s%d' % (sA, sA, sB))
    g.I('s_add_u32 s%d, s%d, 0x%x' % (sA, sA, WS_ML))
    g.I('s_mov_b64 exec, 1')
    g.vmem('buffer_store_dwordx2 %s, v%d, %s, s%d offen sc1' % (vr(vM, 2), vZERO, sq(SRD_WS), sA), 'ml')
    g.I('s_mov_b64 exec, -1')
    stamp(g, 'ap_stored')
    WDA = KR
    MLr = KR + 32
    AD = KR + 40
    g.I('s_lshl_b32 s%d, s%d, 9' % (sF, sH))
    g.I('s_add_u32 s%d, s%d, 0x%x' % (sF, sF, WS_ML))
    if not w0:
        HD = KR + 32
        g.I('s_mov_b32 s%d, 28672' % sT)
        g.I('v_mul_lo_u32 v%d, v%d, s%d' % (vT3, vN, sT))
        g.I('v_lshl_add_u32 v%d, v%d, 4, v%d' % (vT3, vJ, vT3))
        g.I('s_lshl_b32 s%d, s%d, 2' % (90, sE))
        g.I('s_add_u32 s%d, s%d, 0x%x' % (90, 90, WS_GP))
        g.I('s_add_u32 s%d, s%d, %d' % (91, 90, 16 * 28672))
        g.I('s_add_u32 s%d, s%d, %d' % (92, 90, 14336))
        g.I('s_add_u32 s%d, s%d, %d' % (93, 90, 14336 + 16 * 28672))
        poll_valid(g, ['buffer_load_dwordx4 %s, v%d, %s, s%d offen sc1' % (vr(HD + 4 * i), vT3, sq(SRD_WS), 90 + i)
                       for i in range(4)], range(HD, HD + 16), vT1, plain_first=True)
        GG, UU = HD, HD + 8
        for c in range(4):
            g.I('v_add_f32 v%d, v%d, v%d' % (GG + c, GG + c, GG + 4 + c))
            g.I('v_add_f32 v%d, v%d, v%d' % (UU + c, UU + c, UU + 4 + c))
        row_allreduce_multi(g, 'v_add_f32', [GG + c for c in range(4)] + [UU + c for c in range(4)])
        for c in range(0, 4, 2):
            bf_round2(g, GG + c, GG + c + 1, vT0)
            bf_round2(g, UU + c, UU + c + 1, vT0)
        k0 = 0.7978845608028654
        k1 = 0.044715
        c2 = -2.0 * k0 * 1.4426950408889634
        for c in range(4):
            x = GG + c
            t = GG + 4 + c
            g.I('v_mul_f32 v%d, v%d, v%d' % (t, x, x))
            g.I('v_mul_f32 v%d, v%d, v%d' % (t, t, x))
            g.I('v_mul_f32 v%d, %s, v%d' % (t, f32(k1), t))
            g.I('v_add_f32 v%d, v%d, v%d' % (t, t, x))
            g.I('v_mul_f32 v%d, %s, v%d' % (t, f32(c2), t))
            g.I('v_exp_f32 v%d, v%d' % (t, t))
            g.I('v_add_f32 v%d, 1.0, v%d' % (t, t))
            g.I('v_rcp_f32 v%d, v%d' % (t, t))
            g.I('v_mul_f32 v%d, v%d, v%d' % (x, x, t))
        for c in range(0, 4, 2):
            bf_round2(g, GG + c, GG + c + 1, vT0)
        for c in range(4):
            g.I('v_mul_f32 v%d, v%d, v%d' % (GG + c, GG + c, UU + c))
        HFR = QF + 6
        g.I('v_cvt_pk_bf16_f32 v%d, v%d, v%d' % (HFR, GG, GG + 1))
        g.I('v_cvt_pk_bf16_f32 v%d, v%d, v%d' % (HFR + 1, GG + 2, GG + 3))
        tile16(g, WDR, HFR, WDA)
    else:
        PR = PT
        g.I('v_lshlrev_b32 v%d, 3, v%d' % (vT3, vLANE))
        poll_valid(g, ['buffer_load_dwordx2 %s, v%d, %s, s%d offen sc1' % (vr(PR, 2), vT3, sq(SRD_WS), sF)],
                   range(PR, PR + 2), vT1, sleep=P['TSLEEP'])
    stamp(g, 'pre_b5')
    g.I('s_barrier')
    loads = []
    g.I('v_lshlrev_b32 v%d, 3, v%d' % (vT0, vN))
    loads += ['buffer_load_dwordx2 %s, v%d, %s, s%d offen offset:%d sc1' % (vr(MLr + 2 * i, 2), vT0, sq(SRD_WS), sF, i * 128)
              for i in range(4)]
    g.I('v_lshlrev_b32 v%d, 6, v%d' % (vT2, vN))
    g.I('v_lshl_add_u32 v%d, v%d, 4, v%d' % (vT2, vJ, vT2))
    g.I('s_lshl_b32 s%d, s%d, 15' % (sA, sH))
    g.I('s_lshl_b32 s%d, s%d, 12' % (sB, sWAVE))
    g.I('s_add_u32 s%d, s%d, s%d' % (sA, sA, sB))
    g.I('s_add_u32 s%d, s%d, 0x%x' % (sA, sA, WS_AP))
    loads += ['buffer_load_dwordx4 %s, v%d, %s, s%d offen offset:%d sc1' % (vr(AD + 4 * i), vT2, sq(SRD_WS), sA, i * 1024)
              for i in range(4)]
    poll_valid(g, loads, range(MLr, MLr + 24), vT1, plain_first=True)
    stamp(g, 'ml_ok')
    g.I('v_max3_f32 v%d, v%d, v%d, v%d' % (vM, MLr, MLr + 2, MLr + 4))
    g.I('v_max_f32 v%d, v%d, v%d' % (vM, vM, MLr + 6))
    row_allreduce(g, 'v_max_f32', vM)
    for i in range(4):
        m = MLr + 2 * i
        g.I('v_sub_f32 v%d, v%d, v%d' % (m, m, vM))
        g.I('v_mul_f32 v%d, s%d, v%d' % (m, sLOG2E, m))
        g.I('v_exp_f32 v%d, v%d' % (m, m))
    OC = QF
    for i in range(4):
        m = MLr + 2 * i
        op = 'v_mul_f32' if i == 0 else 'v_fmac_f32'
        g.I('%s v%d, v%d, v%d' % (op, vL, m, m + 1))
        for c in range(4):
            g.I('%s v%d, v%d, v%d' % (op, OC + c, m, AD + 4 * i + c))
    row_allreduce_multi(g, 'v_add_f32', [vL, OC, OC + 1, OC + 2, OC + 3])
    g.I('v_rcp_f32 v%d, v%d' % (vT0, vL))
    for c in range(4):
        x = OC + c
        g.I('v_mul_f32 v%d, v%d, v%d' % (vT1, x, vT0))
        g.I('v_fma_f32 v%d, -v%d, v%d, v%d' % (vT5, vT1, vL, x))
        g.I('v_fma_f32 v%d, v%d, v%d, v%d' % (x, vT5, vT0, vT1))
    OFR = QF + 4
    g.I('v_cvt_pk_bf16_f32 v%d, v%d, v%d' % (OFR, OC, OC + 1))
    g.I('v_cvt_pk_bf16_f32 v%d, v%d, v%d' % (OFR + 1, OC + 2, OC + 3))
    WOA = OA
    tile16(g, WOR, OFR, WOA)
    stamp(g, 'wo_done')
    stamp(g, 'wd_done')
    F = VA
    for dd in range(8):
        g.I('v_mov_b32 v%d, v%d' % (F + dd, WOA + 4 * dd))
    for dd in range(8):
        if w0:
            g.I('v_mov_b32 v%d, 0' % (F + 8 + dd))
        else:
            g.I('v_mov_b32 v%d, v%d' % (F + 8 + dd, WDA + 4 * dd))
    g.I('s_lshl_b32 s%d, s%d, 10' % (sA, sWAVE))
    g.I('v_lshlrev_b32 v%d, 5, v%d' % (vT0, vN))
    g.I('v_add_u32 v%d, s%d, v%d' % (vT0, sA, vT0))
    g.I('s_mov_b64 exec, 0xffff')
    g.I('ds_write_b128 v%d, %s offset:%d' % (vT0, vr(F), L_FR))
    g.I('ds_write_b128 v%d, %s offset:%d' % (vT0, vr(F + 4), L_FR + 16))
    g.I('ds_write_b128 v%d, %s offset:%d' % (vT0, vr(F + 8), L_FR + 512))
    g.I('ds_write_b128 v%d, %s offset:%d' % (vT0, vr(F + 12), L_FR + 528))
    g.I('s_mov_b64 exec, -1')
    g.I('s_waitcnt lgkmcnt(0)')
    g.I('s_barrier')
    stamp(g, 'b4')
    if not w0:
        stamp_store(g)
        g.I('s_endpgm')
        return
    g.I('s_lshl_b32 s%d, s%d, 8' % (sF, sCB))
    g.I('s_lshl_b32 s%d, s%d, 3' % (sB, sH))
    g.I('s_add_u32 s%d, s%d, s%d' % (sF, sF, sB))
    XV = QF + 8
    g.vmem('buffer_load_dwordx2 %s, v%d, %s, s%d offen' % (vr(XV, 2), vZERO, sq(SRD_X), sF), 'xv')
    RD = KR
    for w in range(8):
        g.I('ds_read_b128 %s, v%d offset:%d' % (vr(RD + 4 * w), vVOFF, L_FR + w * 1024))
    g.I('s_waitcnt lgkmcnt(0)')
    for w in range(1, 8):
        for c in range(4):
            g.I('v_add_f32 v%d, v%d, v%d' % (RD + c, RD + c, RD + 4 * w + c))
    g.I('s_lshl_b32 s%d, s%d, 15' % (sA, sCB))
    g.I('s_add_u32 s%d, s%d, 0x%x' % (sA, sA, WS_FP))
    g.I('s_lshl_b32 s%d, s%d, 10' % (sB, sH))
    g.I('s_add_u32 s%d, s%d, s%d' % (sB, sA, sB))
    g.vmem('buffer_store_dwordx4 %s, v%d, %s, s%d offen sc1' % (vr(RD), vVOFF, sq(SRD_WS), sB), 'fp')
    g.I('v_and_b32 v%d, 31, v%d' % (vT0, vLANE))
    g.I('v_lshlrev_b32 v%d, 10, v%d' % (vT0, vT0))
    g.I('v_lshrrev_b32 v%d, 5, v%d' % (vT1, vLANE))
    g.I('v_lshl_add_u32 v%d, v%d, 9, v%d' % (vT0, vT1, vT0))
    g.I('s_lshl_b32 s%d, s%d, 4' % (sB, sH))
    g.I('s_add_u32 s%d, s%d, s%d' % (sA, sA, sB))
    FD = KR + 32
    poll_valid(g, ['buffer_load_dwordx4 %s, v%d, %s, s%d offen sc1' % (vr(FD), vT0, sq(SRD_WS), sA)], range(FD, FD + 4), vT1)
    row_allreduce_multi(g, 'v_add_f32', [FD + c for c in range(4)])
    FE = FD + 4
    for c in range(4):
        g.I('v_mov_b32 v%d, v%d' % (FE + c, FD + c))
    for c in range(4):
        g.I('v_permlane16_swap_b32 v%d, v%d' % (FD + c, FE + c))
    for c in range(4):
        g.I('v_add_f32 v%d, v%d, v%d' % (FD + c, FD + c, FE + c))
    for c in range(4):
        g.I('v_mov_b32 v%d, v%d' % (FE + c, FD + c))
    for c in range(4):
        g.I('v_permlane32_swap_b32 v%d, v%d' % (FD + c, FE + c))
    XF = FD + 8
    for d in range(2):
        g.I('v_lshlrev_b32 v%d, 16, v%d' % (XF + 2 * d, XV + d))
        g.I('v_and_b32 v%d, 0xffff0000, v%d' % (XF + 2 * d + 1, XV + d))
    for c in range(0, 4, 2):
        bf_round2(g, FD + c, FD + c + 1, vT0)
        bf_round2(g, FE + c, FE + c + 1, vT0)
    for c in range(4):
        g.I('v_add_f32 v%d, v%d, v%d' % (FD + c, FD + c, XF + c))
    for c in range(0, 4, 2):
        bf_round2(g, FD + c, FD + c + 1, vT0)
    for c in range(4):
        g.I('v_add_f32 v%d, v%d, v%d' % (FD + c, FD + c, FE + c))
    g.I('v_cvt_pk_bf16_f32 v%d, v%d, v%d' % (XF, FD, FD + 1))
    g.I('v_cvt_pk_bf16_f32 v%d, v%d, v%d' % (XF + 1, FD + 2, FD + 3))
    g.I('s_mov_b64 exec, 1')
    g.I('buffer_store_dwordx2 %s, v%d, %s, s%d offen' % (vr(XF, 2), vZERO, sq(SRD_OUT), sF))
    stamp(g, 'end')
    stamp_store(g, True)
    g.I('s_endpgm')


def build():
    g = Gen()
    hdr = open('cdna_kernels/%s.s.ref' % NAME).read().split('\n')
    out = []
    for ln in hdr:
        if ln.startswith('; @launch'):
            out.append('; @launch grid=(256,1,1) block=(512,1,1) lds=%d' % LDS_BYTES)
        elif ln.startswith(';'):
            out.append(ln)
        else:
            break
    out.append('.amdgcn_target "amdgcn-amd-amdhsa--gfx950"')
    out.append('.text')
    out.append('.globl %s_kernel' % NAME)
    out.append('.p2align 8')
    out.append('.type %s_kernel,@function' % NAME)
    out.append('%s_kernel:' % NAME)
    g.I('s_cmp_ge_u32 s2, 256')
    g.I('s_cbranch_scc1 L_end')
    g.I('s_load_dwordx16 s[8:23], s[0:1], 0')
    g.I('s_load_dwordx8 s[24:31], s[0:1], 64')
    if P['REMAP']:
        g.I('s_and_b32 s%d, s2, 7' % sT)
        g.I('s_lshl_b32 s%d, s%d, 5' % (sT, sT))
        g.I('s_lshr_b32 s2, s2, 3')
        g.I('s_add_u32 s2, s2, s%d' % sT)
    g.I('v_lshrrev_b32 v1, 6, v0')
    g.I('v_and_b32 v0, 63, v0')
    g.I('v_readfirstlane_b32 s%d, v1' % sWAVE)
    g.I('v_and_b32 v%d, 15, v0' % vN)
    g.I('v_lshrrev_b32 v%d, 4, v0' % vJ)
    if P['KL'] == 2:
        g.I('v_bfe_u32 v%d, v%d, 1, 1' % (vKOFF, vN))
        g.I('v_lshlrev_b32 v%d, 19, v%d' % (vKOFF, vKOFF))
        g.I('v_and_b32 v%d, 1, v%d' % (vT0, vN))
        g.I('v_lshl_add_u32 v%d, v%d, 6, v%d' % (vKOFF, vT0, vKOFF))
    else:
        g.I('v_and_b32 v%d, 3, v%d' % (vKOFF, vN))
        g.I('v_lshlrev_b32 v%d, %d, v%d' % (vKOFF, 19 if P['ILV'] == 2 else 10, vKOFF))
    g.I('v_lshrrev_b32 v%d, 2, v%d' % (vT0, vN))
    g.I('v_lshl_add_u32 v%d, v%d, 8, v%d' % (vKOFF, vT0, vKOFF))
    g.I('v_lshl_add_u32 v%d, v%d, 4, v%d' % (vKOFF, vJ, vKOFF))
    g.I('v_lshlrev_b32 v%d, 4, v0' % vVOFF)
    g.I('v_mov_b32 v%d, 0' % vZERO)
    if P['ILV']:
        sh = 3 if P['ILV'] == 2 else 0
        g.I('s_lshr_b32 s%d, s2, 6' % sKV)
        g.I('s_lshl_b32 s%d, s%d, 24' % (sKV, sKV))
        g.I('s_and_b32 s%d, s2, 63' % sT)
        g.I('s_lshl_b32 s%d, s%d, %d' % (sT, sT, 16 - sh))
        g.I('s_add_u32 s%d, s%d, s%d' % (sKV, sKV, sT))
        g.I('s_lshl_b32 s%d, s%d, %d' % (sT, sWAVE, 13 - sh))
        g.I('s_add_u32 s%d, s%d, s%d' % (sKV, sKV, sT))
    else:
        g.I('s_lshl_b32 s%d, s2, 18' % sKV)
        g.I('s_lshl_b32 s%d, s%d, 15' % (sT, sWAVE))
        g.I('s_add_u32 s%d, s%d, s%d' % (sKV, sKV, sT))
    g.I('s_lshr_b32 s%d, s2, 3' % sH)
    g.I('s_and_b32 s%d, s2, 7' % sCB)
    g.I('s_lshr_b32 s%d, s2, 6' % sG)
    g.I('s_mov_b32 s%d, 0' % sCNT)
    g.I('s_mov_b32 s%d, 0x05040100' % sSEL0)
    g.I('s_mov_b32 s%d, 0x07060302' % sSEL1)
    g.I('s_mov_b32 s%d, %s' % (sSCALE, f32(128 ** -0.5)))
    g.I('s_mov_b32 s%d, %s' % (sLOG2E, f32(1.4426950408889634)))
    g.I('s_waitcnt lgkmcnt(0)')
    srd(g, SRD_K, 10, 1 << 26)
    srd(g, SRD_V, 12, 1 << 26)
    srd(g, SRD_X, 8, 2048)
    srd(g, SRD_WQ, 14, 1 << 23)
    srd(g, SRD_WO, 16, 1 << 23)
    g.I('s_cmp_lt_u32 s%d, 4' % sCB)
    g.I('s_cselect_b32 s%d, s20, s22' % SRD_GU)
    g.I('s_cselect_b32 s%d, s21, s23' % (SRD_GU + 1))
    g.I('s_and_b32 s%d, s%d, 0xffff' % (SRD_GU + 1, SRD_GU + 1))
    g.I('s_mov_b32 s%d, 0x%x' % (SRD_GU + 2, 1024 * 3584 * 2))
    g.I('s_mov_b32 s%d, 0x00020000' % (SRD_GU + 3))
    srd(g, SRD_WD, 24, 3584 * 1024 * 2)
    srd(g, SRD_OUT, 26, 2048)
    srd(g, SRD_DBG, 28, 256)
    srd(g, SRD_WS, 30, WS_SIZE)
    g.I('v_mov_b32 v%d, 0' % vST)
    stamp(g, 'entry')
    g.I('s_cmp_eq_u32 s%d, 0' % sWAVE)
    g.I('s_cbranch_scc1 L_wave0')
    g.fence()
    main_path(g, False)
    g.label('L_wave0')
    g.vm_reset()
    prologue_wave0(g)
    main_path(g, True)
    g.label('L_end')
    g.I('s_endpgm')
    out.append(g.text())
    out.append('.section .rodata,"a"')
    out.append('.p2align 6')
    out.append('.amdhsa_kernel %s_kernel' % NAME)
    out.append('  .amdhsa_next_free_vgpr 256')
    out.append('  .amdhsa_next_free_sgpr 102')
    out.append('  .amdhsa_accum_offset 256')
    out.append('  .amdhsa_group_segment_fixed_size 0')
    out.append('  .amdhsa_kernarg_size 96')
    out.append('  .amdhsa_user_sgpr_count 2')
    out.append('  .amdhsa_user_sgpr_kernarg_segment_ptr 1')
    out.append('  .amdhsa_system_sgpr_workgroup_id_x 1')
    out.append('  .amdhsa_float_denorm_mode_32 3')
    out.append('.end_amdhsa_kernel')
    return '\n'.join(out) + '\n'


if __name__ == '__main__':
    dst = sys.argv[1] if len(sys.argv) > 1 else 'cdna_kernels/%s.s' % NAME
    open(dst, 'w').write(build())
    print('wrote', dst)
    if P.get('STAMPS'):
        open(dst + '.stamps', 'w').write('\n'.join(STAMP_NAMES))
```

```python
import sys
import struct
from dsl import Gen

NAME = 'parallel_sum__gqa_block_cached__geglu_ffn__decode'

P = dict(
    W=4,
    W0=8,
    WP=16,
    NT_K=' nt',
    NT_V=' nt',
    NT_W=' nt',
    SLEEP=1,
    QSLEEP=4,
    TW=3,
    TH=2,
    KA=6,
    KP=24,
    TC=1,
    WT=8,
    KG=16,
    REMAP=2,
    DYN=0,
    NONCE=1,
    NOCLR=0,
    NOSYNC=0,
    PLAIN=0,
    KL=2,
    WV=0,
    WVT=2,
    QPOS=6,
    QPOS0=8,
    TSLEEP=4,
    ILV=2,
    QPOLL=' sc1',
)
for a in sys.argv[2:]:
    k, v = a.split('=')
    P[k] = int(v) if v.lstrip('-').isdigit() else v


def f32(x):
    return '0x%08x' % struct.unpack('<I', struct.pack('<f', x))[0]


L_XN = 0
L_Q = 2048
L_FLAG = 4096
L_OW = 8192
L_ML = L_OW + 8 * 4224
L_FR = L_ML + 512
LDS_BYTES = L_FR + 8192

WS_QP = 0
WS_AP = 0x100000
WS_ML = 0x200000
WS_GP = 0x300000
WS_FP = 0x400000
WS_MB = 0x440000
WS_CT = 0x460000
WS_FL = 0x470000
WS_SIZE = 0x500000

sWAVE = 3
sKV = 4
sT = 5
sT2 = 6
sCNT = 7
SRD_K, SRD_V, SRD_WQ, SRD_WO, SRD_GU, SRD_WD, SRD_WS, SRD_X, SRD_OUT, SRD_DBG = 32, 36, 40, 44, 48, 52, 56, 60, 64, 68
sSEL0, sSEL1 = 72, 73
sSCALE, sLOG2E = 74, 75
sH = 76
sCB = 77
sG = 78
sA, sB, sC, sD = 80, 81, 82, 83
sE, sF = 84, 85
sEX = 86
sDI = 94
sDB = 95
sCT = 96
sN0, sN1 = 98, 99

vLANE, vN, vJ = 0, 2, 3
vKOFF, vVOFF = 4, 5
vT0, vT1, vT2, vT3, vT4, vT5 = 6, 7, 8, 9, 10, 11
vZERO = 12
vM, vL = 14, 15
QF = 16
SA = 32
VA = 64
KR = 128
OA = 192
PT = 224
PF = 240

SPIN_MAX = 200000


def srd(g, d, ptr, size):
    g.I('s_mov_b32 s%d, s%d' % (d, ptr))
    g.I('s_and_b32 s%d, s%d, 0xffff' % (d + 1, ptr + 1))
    g.I('s_mov_b32 s%d, 0x%x' % (d + 2, size))
    g.I('s_mov_b32 s%d, 0x00020000' % (d + 3))


def vr(a, n=4):
    return 'v[%d:%d]' % (a, a + n - 1)


def sq(d):
    return 's[%d:%d]' % (d, d + 3)


def row_allreduce(g, op, v, tmp=None):
    for r in (1, 2, 4, 8):
        g.I('%s_dpp v%d, v%d, v%d row_ror:%d row_mask:0xf bank_mask:0xf' % (op, v, v, v, r))


def row_allreduce_multi(g, op, vs):
    for r in (1, 2, 4, 8):
        for v in vs:
            g.I('%s_dpp v%d, v%d, v%d row_ror:%d row_mask:0xf bank_mask:0xf' % (op, v, v, v, r))


def xrow_allreduce(g, op, v, t):
    g.I('v_mov_b32 v%d, v%d' % (t, v))
    g.I('v_permlane16_swap_b32 v%d, v%d' % (v, t))
    g.I('%s v%d, v%d, v%d' % (op, v, v, t))
    g.I('v_mov_b32 v%d, v%d' % (t, v))
    g.I('v_permlane32_swap_b32 v%d, v%d' % (v, t))
    g.I('%s v%d, v%d, v%d' % (op, v, v, t))


def bf_round(g, v, t):
    g.I('v_cvt_pk_bf16_f32 v%d, v%d, v%d' % (t, v, v))
    g.I('v_lshlrev_b32 v%d, 16, v%d' % (v, t))


def bf_round2(g, a, b, t):
    g.I('v_cvt_pk_bf16_f32 v%d, v%d, v%d' % (t, a, b))
    g.I('v_lshlrev_b32 v%d, 16, v%d' % (a, t))
    g.I('v_and_b32 v%d, 0xffff0000, v%d' % (b, t))


def tile32(g, R, frag, acc, first, frag_is_A=False, PT=PT):
    def perms(dd):
        t = PT + (dd & 3) * 4
        for q in range(4):
            g.I('v_perm_b32 v%d, v%d, v%d, s%d' % (t + q, R + (2 * q + 1) * 4 + (dd >> 1), R + (2 * q) * 4 + (dd >> 1),
                                                  sSEL1 if dd & 1 else sSEL0))
    perms(0)
    for dd in range(8):
        if dd < 7:
            perms(dd + 1)
        t = PT + (dd & 3) * 4
        c = '0' if first else vr(acc + 4 * dd)
        if frag_is_A:
            g.I('v_mfma_f32_16x16x32_bf16 %s, %s, %s, %s' % (vr(acc + 4 * dd), vr(frag), vr(t), c))
        else:
            g.I('v_mfma_f32_16x16x32_bf16 %s, %s, %s, %s' % (vr(acc + 4 * dd), vr(t), vr(frag), c))


def tile16(g, R, frag, acc):
    def perms(dd):
        t = PT + (dd & 3) * 4
        for q in range(2):
            g.I('v_perm_b32 v%d, v%d, v%d, s%d' % (t + q, R + (2 * q + 1) * 4 + (dd >> 1), R + (2 * q) * 4 + (dd >> 1),
                                                  sSEL1 if dd & 1 else sSEL0))
    perms(0)
    perms(1)
    for dd in range(8):
        if dd < 6:
            perms(dd + 2)
        t = PT + (dd & 3) * 4
        g.I('v_mfma_f32_16x16x16_bf16 %s, %s, %s, 0' % (vr(acc + 4 * dd), vr(frag, 2), vr(t, 2)))


def tile16g(g, R, frag, rot, out):
    def perms(dd):
        t = PT + (dd & 3) * 4
        for q in range(2):
            g.I('v_perm_b32 v%d, v%d, v%d, s%d' % (t + q, R + (2 * q + 1) * 4 + (dd >> 1), R + (2 * q) * 4 + (dd >> 1),
                                                  sSEL1 if dd & 1 else sSEL0))
    perms(0)
    perms(1)
    for dd in range(8):
        if dd < 6:
            perms(dd + 2)
        if dd >= 4:
            g.I('v_mov_b32 v%d, v%d' % (out + dd - 4, rot + 4 * (dd & 3)))
        t = PT + (dd & 3) * 4
        g.I('v_mfma_f32_16x16x16_bf16 %s, %s, %s, 0' % (vr(rot + 4 * (dd & 3)), vr(frag, 2), vr(t, 2)))
    for dd in range(4, 8):
        g.I('v_mov_b32 v%d, v%d' % (out + dd, rot + 4 * (dd & 3)))


vST = 13
WS_ST = 0x480000
STAMP_NAMES = []


DBG_NAMES = ['entry', 'w0_issued', 'w0_qproj', 'w0_atomic', 'w0_polled', 'main_start', 'q_ready', 'sm_done', 'pv_done', 'b3', 'pre_b5', 'ml_ok', 'b4', 'end']


def stamp(g, name):
    if P.get('DBGST'):
        if name in DBG_NAMES:
            g.I('s_memrealtime s[88:89]')
            g.I('s_waitcnt lgkmcnt(0)')
            g.I('v_writelane_b32 v%d, s88, %d' % (vST, 1 + DBG_NAMES.index(name)))
        return
    if not P.get('STAMPS'):
        return
    if name not in STAMP_NAMES:
        STAMP_NAMES.append(name)
    k = STAMP_NAMES.index(name)
    g.I('s_memrealtime s[88:89]')
    g.I('s_waitcnt lgkmcnt(0)')
    g.I('v_writelane_b32 v%d, s88, %d' % (vST, k))


def stamp_store(g, final=False):
    if P.get('DBGST'):
        if final:
            lb = g.newlabel('L_dbg')
            g.I('s_mov_b64 exec, 1')
            g.I('v_mov_b32 v1, s88')
            g.I('buffer_atomic_umax v1, v%d, %s, 0 offen offset:60' % (vZERO, sq(SRD_DBG)))
            g.I('s_cmp_lg_u32 s2, %d' % P.get('DBGWG', 0))
            g.I('s_cbranch_scc1 %s' % lb)
            g.I('s_mov_b64 exec, 0x7ffe')
            g.I('v_lshlrev_b32 v1, 2, v0')
            g.I('s_nop 4')
            g.I('buffer_store_dword v%d, v1, %s, 0 offen' % (vST, sq(SRD_DBG)))
            g.label(lb)
        return
    if not P.get('STAMPS'):
        return
    g.I('s_mov_b64 exec, -1')
    g.I('s_lshl_b32 s88, s2, 11')
    g.I('s_lshl_b32 s89, s%d, 8' % sWAVE)
    g.I('s_add_u32 s88, s88, s89')
    g.I('s_add_u32 s88, s88, 0x%x' % WS_ST)
    g.I('v_lshlrev_b32 v1, 2, v0')
    g.I('s_nop 4')
    g.I('buffer_store_dword v%d, v1, %s, s88 offen' % (vST, sq(SRD_WS)))


def spin_guard(g, done_label):
    g.I('s_add_u32 s%d, s%d, 1' % (sCNT, sCNT))
    g.I('s_cmp_ge_u32 s%d, %d' % (sCNT, SPIN_MAX))
    g.I('s_cbranch_scc1 %s' % done_label)


def poll_valid(g, loads, regs, tmp, sleep=None, plain_first=False):
    lp = g.newlabel('L_poll')
    dn = g.newlabel('L_polld')

    def check():
        g.I('s_waitcnt vmcnt(0)')
        rs = list(regs)
        g.I('v_max_u32 v%d, v%d, v%d' % (tmp, rs[0], rs[1]))
        i = 2
        while i < len(rs):
            if i + 1 < len(rs):
                g.I('v_max3_u32 v%d, v%d, v%d, v%d' % (tmp, tmp, rs[i], rs[i + 1]))
                i += 2
            else:
                g.I('v_max_u32 v%d, v%d, v%d' % (tmp, tmp, rs[i]))
                i += 1
        g.I('v_cmp_eq_u32 vcc, -1, v%d' % tmp)
        g.I('s_cbranch_vccz %s' % dn)
    if plain_first and P['PLAIN']:
        for t in loads:
            g.I(t.replace(' sc1', ''))
        check()
    g.label(lp)
    for t in loads:
        g.I(t)
    check()
    spin_guard(g, dn)
    g.I('s_sleep %d' % (P['SLEEP'] if sleep is None else sleep))
    g.I('s_branch %s' % lp)
    g.label(dn)
    g.vm_reset()


def kload2(g, n, W):
    t, i = n >> 2, n & 3
    X = 2 * t + (i >> 1)
    g.I('s_add_u32 s%d, s%d, 0x%x' % (sT, sKV, X << 20))
    g.vmem('buffer_load_dwordx4 %s, v%d, %s, s%d offen offset:%d%s' % (vr(KR + n * 4), vKOFF, sq(SRD_K), sT, (i & 1) * 128, P['NT_K']),
           'k%d' % t, W)


def flag_poll(g, bases):
    lp = g.newlabel('L_fpoll')
    dn = g.newlabel('L_fpolld')
    g.label(lp)
    for i, sb in enumerate(bases):
        g.I('buffer_load_dwordx2 %s, v%d, %s, s%d offen sc1' % (vr(16 + 2 * i, 2), vT3, sq(SRD_WS), sb))
    g.I('s_waitcnt vmcnt(0)')
    for i in range(len(bases)):
        g.I('v_xor_b32 v%d, s%d, v%d' % (16 + 2 * i, sN0, 16 + 2 * i))
        g.I('v_xor_b32 v%d, s%d, v%d' % (17 + 2 * i, sN1, 17 + 2 * i))
    for i in range(1, 2 * len(bases)):
        g.I('v_or_b32 v16, v16, v%d' % (16 + i))
    g.I('v_cmp_ne_u32 vcc, 0, v16')
    g.I('s_cbranch_vccz %s' % dn)
    spin_guard(g, dn)
    g.I('s_sleep %d' % P['QSLEEP'])
    g.I('s_branch %s' % lp)
    g.label(dn)


def prologue_wave0(g):
    if P['NOCLR']:
        orig = g.vmem
        def vm2(text, tag=None, window=None):
            if tag == 'clr':
                g.vm.append(tag) if False else None
                return
            orig(text, tag, window)
        g.vmem = vm2
        ow = g.vm_wait
        def w2(tag):
            if tag == 'clr':
                return
            ow(tag)
        g.vm_wait = w2
    ntw = P['NT_W']
    g.I('v_lshlrev_b32 v%d, 5, v%d' % (vT0, vLANE))
    g.vmem('buffer_load_dwordx4 %s, v%d, %s, 0 offen' % (vr(16), vT0, sq(SRD_X)), 'x')
    g.vmem('buffer_load_dwordx4 %s, v%d, %s, 0 offen offset:16' % (vr(20), vT0, sq(SRD_X)), 'x')
    if P['NONCE']:
        lb = g.newlabel('L_nonce')
        g.I('s_cmp_lg_u32 s2, 0')
        g.I('s_cbranch_scc1 %s' % lb)
        g.I('s_memrealtime s[%d:%d]' % (sN0, sN1))
        g.I('s_waitcnt lgkmcnt(0)')
        g.I('s_or_b32 s%d, s%d, 1' % (sN0, sN0))
        g.I('v_mov_b32 v28, s%d' % sN0)
        g.I('v_mov_b32 v29, s%d' % sN1)
        g.I('s_mov_b64 exec, 1')
        g.I('buffer_store_dwordx2 v[28:29], v%d, %s, 0 offen offset:8 sc1' % (vZERO, sq(SRD_DBG)))
        g.I('s_mov_b64 exec, -1')
        g.I('s_waitcnt vmcnt(0)')
        g.label(lb)
        g.vm_done = 0
    g.I('v_lshlrev_b32 v%d, 16, v%d' % (vT1, vJ))
    g.I('v_lshl_add_u32 v%d, v%d, 4, v%d' % (vT1, vN, vT1))
    g.I('s_lshl_b32 s%d, s%d, 20' % (sA, sCB))
    g.I('s_lshl_b32 s%d, s%d, 8' % (sB, sH))
    g.I('s_add_u32 s%d, s%d, s%d' % (sA, sA, sB))
    for T in range(4):
        for e in range(8):
            g.I('s_add_u32 s%d, s%d, 0x%x' % (sT, sA, (32 * T + e) * 8192))
            g.vmem('buffer_load_dwordx4 %s, v%d, %s, s%d offen%s' % (vr(KR + (T * 8 + e) * 4), vT1, sq(SRD_WQ), sT, ntw),
                   'wq%d' % T, P['WP'])
    for i in range(4):
        g.I('v_mov_b32 v%d, -1' % (24 + i))
    g.I('s_lshl_b32 s%d, s2, 12' % sA)
    g.I('s_add_u32 s%d, s%d, 0x%x' % (sA, sA, WS_AP))
    for i in range(4):
        g.vmem('buffer_store_dwordx4 %s, v%d, %s, s%d offen offset:%d sc1' % (vr(24), vVOFF, sq(SRD_WS), sA, i * 1024), 'clr')
    g.I('s_mul_i32 s%d, s%d, 28672' % (sA, sH))
    g.I('s_mul_i32 s%d, s%d, 3584' % (sB, sCB))
    g.I('s_add_u32 s%d, s%d, s%d' % (sA, sA, sB))
    g.I('s_add_u32 s%d, s%d, 0x%x' % (sA, sA, WS_GP))
    for i in range(3):
        g.vmem('buffer_store_dwordx4 %s, v%d, %s, s%d offen offset:%d sc1' % (vr(24), vVOFF, sq(SRD_WS), sA, i * 1024), 'clr')
    g.I('s_mov_b32 exec_lo, -1')
    g.I('s_mov_b32 exec_hi, 0')
    g.vmem('buffer_store_dwordx4 %s, v%d, %s, s%d offen offset:%d sc1' % (vr(24), vVOFF, sq(SRD_WS), sA, 3072), 'clr')
    g.I('s_mov_b64 exec, 0xf')
    g.I('s_lshl_b32 s%d, s2, 6' % sA)
    g.I('s_add_u32 s%d, s%d, 0x%x' % (sA, sA, WS_ML))
    g.vmem('buffer_store_dwordx4 %s, v%d, %s, s%d offen sc1' % (vr(24), vVOFF, sq(SRD_WS), sA), 'clr')
    g.I('s_mov_b64 exec, -1')
    g.I('s_lshl_b32 s%d, s%d, 15' % (sA, sCB))
    g.I('s_lshl_b32 s%d, s%d, 10' % (sB, sH))
    g.I('s_add_u32 s%d, s%d, s%d' % (sA, sA, sB))
    g.I('s_add_u32 s%d, s%d, 0x%x' % (sA, sA, WS_FP))
    g.vmem('buffer_store_dwordx4 %s, v%d, %s, s%d offen sc1' % (vr(24), vVOFF, sq(SRD_WS), sA), 'clr')
    g.I('s_lshl_b32 s%d, s%d, 7' % (sF, sH))
    g.I('s_add_u32 s%d, s%d, 0x%x' % (sF, sF, WS_MB))
    g.I('s_cmp_eq_u32 s%d, 0' % sCB)
    g.I('s_cselect_b32 s%d, s%d, 0x7f000000' % (sA, sF))
    g.I('s_mov_b64 exec, 1')
    if not P['NONCE']:
        g.vmem('buffer_store_dword v%d, v%d, %s, s%d offen sc1' % (vZERO, vZERO, sq(SRD_WS), sA), 'clr')
    g.I('s_mov_b64 exec, -1')
    if P['DYN']:
        g.I('s_lshl_b32 s%d, s%d, 8' % (sA, sG))
        g.I('s_add_u32 s%d, s%d, 0x%x' % (sA, sA, WS_CT))
        g.I('s_lshl_b32 s%d, s2, 8' % sB)
        g.I('s_add_u32 s%d, s%d, 0x%x' % (sB, sB, WS_CT + 4096))
        g.I('s_and_b32 s%d, s2, 63' % sC)
        g.I('s_cmp_eq_u32 s%d, 0' % sC)
        g.I('s_cselect_b32 s%d, s%d, s%d' % (sA, sA, sB))
        g.I('v_lshlrev_b32 v%d, 7, v%d' % (vT2, vLANE))
        g.I('s_mov_b64 exec, 3')
        g.vmem('buffer_store_dword v%d, v%d, %s, s%d offen sc1' % (vZERO, vT2, sq(SRD_WS), sA), 'clr')
        g.I('s_mov_b64 exec, -1')
    g.I('ds_write_b32 v%d, v%d offset:%d' % (vZERO, vZERO, L_FLAG))
    g.I('s_waitcnt lgkmcnt(0)')
    g.I('s_barrier')
    stamp(g, 'w0_issued')
    g.vm_wait('x')
    X = SA
    for d in range(8):
        g.I('v_lshlrev_b32 v%d, 16, v%d' % (X + 2 * d, 16 + d))
        g.I('v_and_b32 v%d, 0xffff0000, v%d' % (X + 2 * d + 1, 16 + d))
    S = 48
    g.I('v_add_f32 v%d, v%d, v%d' % (S, X, X + 1))
    for i in range(2, 16):
        g.I('v_add_f32 v%d, v%d, v%d' % (S, S, X + i))

    def wave_sum(v):
        row_allreduce(g, 'v_add_f32', v)
        xrow_allreduce(g, 'v_add_f32', v, 49)
    wave_sum(S)
    MEAN = 50
    g.I('v_mul_f32 v%d, %s, v%d' % (MEAN, f32(1.0 / 1024), S))
    D = 51
    g.I('v_mov_b32 v%d, 0' % S)
    for i in range(16):
        g.I('v_sub_f32 v%d, v%d, v%d' % (D, X + i, MEAN))
        g.I('v_fmac_f32 v%d, v%d, v%d' % (S, D, D))
    wave_sum(S)
    VAR = 52
    g.I('v_mul_f32 v%d, %s, v%d' % (VAR, f32(1.0 / 1024), S))
    bf_round(g, MEAN, 53)
    bf_round(g, VAR, 53)
    g.I('v_add_f32 v%d, %s, v%d' % (VAR, f32(1e-5), VAR))
    bf_round(g, VAR, 53)
    SD = 54
    g.I('v_sqrt_f32 v%d, v%d' % (SD, VAR))
    g.I('v_rcp_f32 v%d, v%d' % (55, SD))
    g.I('v_fma_f32 v%d, -v%d, v%d, v%d' % (56, SD, SD, VAR))
    g.I('v_mul_f32 v%d, 0.5, v%d' % (55, 55))
    g.I('v_fmac_f32 v%d, v%d, v%d' % (SD, 56, 55))
    bf_round(g, SD, 53)
    RC = 55
    g.I('v_rcp_f32 v%d, v%d' % (RC, SD))
    for d in range(8):
        a, b = X + 2 * d, X + 2 * d + 1
        g.I('v_sub_f32 v%d, v%d, v%d' % (a, a, MEAN))
        g.I('v_sub_f32 v%d, v%d, v%d' % (b, b, MEAN))
        bf_round2(g, a, b, 53)
        for x in (a, b):
            g.I('v_mul_f32 v%d, v%d, v%d' % (56, x, RC))
            g.I('v_fma_f32 v%d, -v%d, v%d, v%d' % (57, 56, SD, x))
            g.I('v_fma_f32 v%d, v%d, v%d, v%d' % (x, 57, RC, 56))
        g.I('v_cvt_pk_bf16_f32 v%d, v%d, v%d' % (16 + d, a, b))
    g.I('ds_write_b128 v%d, %s offset:%d' % (vT0, vr(16), L_XN))
    g.I('ds_write_b128 v%d, %s offset:%d' % (vT0, vr(20), L_XN + 16))
    g.I('v_lshlrev_b32 v%d, 4, v%d' % (vT2, vJ))
    g.I('s_lshl_b32 s%d, s%d, 8' % (sA, sCB))
    g.I('v_add_u32 v%d, s%d, v%d' % (vT2, sA, vT2))
    g.I('s_waitcnt lgkmcnt(0)')
    for T in range(4):
        g.I('ds_read_b128 %s, v%d offset:%d' % (vr(16 + 4 * T), vT2, L_XN + 64 * T))
    g.vm_wait('clr')
    g.I('v_mov_b32 v%d, 1' % vT3)
    g.I('ds_write_b32 v%d, v%d offset:%d' % (vZERO, vT3, L_FLAG))
    g.I('s_waitcnt lgkmcnt(0)')
    ACC = SA
    for T in range(4):
        g.vm_wait('wq%d' % T)
        tile32(g, KR + T * 32, 16 + 4 * T, ACC, T == 0, frag_is_A=True, PT=VA)
    for dd in range(8):
        g.I('v_mov_b32 v%d, v%d' % (16 + dd, ACC + 4 * dd))
    stamp(g, 'w0_qproj')
    g.I('v_lshlrev_b32 v%d, 5, v%d' % (vT2, vN))
    g.I('s_lshl_b32 s%d, s%d, 15' % (sA, sG))
    g.I('s_lshl_b32 s%d, s%d, 12' % (sB, sCB))
    g.I('s_add_u32 s%d, s%d, s%d' % (sA, sA, sB))
    g.I('s_and_b32 s%d, s%d, 7' % (sB, sH))
    g.I('s_lshl_b32 s%d, s%d, 9' % (sB, sB))
    g.I('s_add_u32 s%d, s%d, s%d' % (sB, sA, sB))
    g.I('s_mov_b64 exec, 0xffff')
    g.vmem('buffer_store_dwordx4 %s, v%d, %s, s%d offen sc1' % (vr(16), vT2, sq(SRD_WS), sB), 'qp')
    g.vmem('buffer_store_dwordx4 %s, v%d, %s, s%d offen offset:16 sc1' % (vr(20), vT2, sq(SRD_WS), sB), 'qp')
    g.I('s_mov_b64 exec, -1')
    NK = 8 * (3 if P['DYN'] else 4)
    W0 = P['W0']
    if P['NONCE']:
        g.vmem('buffer_load_dwordx2 v[28:29], v%d, %s, 0 offen offset:8 sc1' % (vZERO, sq(SRD_DBG)), 'nonce')
        for n in range(0, 8):
            kload2(g, n, W0)
        g.vm_wait('nonce')
        sv = (list(g.vm), g.vm_done)
        ok = g.newlabel('L_nok')
        lp = g.newlabel('L_npoll')
        g.I('v_readfirstlane_b32 s%d, v28' % sN0)
        g.I('v_readfirstlane_b32 s%d, v29' % sN1)
        g.I('s_nop 3')
        g.I('s_cmp_lg_u32 s%d, 0' % sN0)
        g.I('s_cbranch_scc1 %s' % ok)
        g.label(lp)
        g.I('buffer_load_dwordx2 v[28:29], v%d, %s, 0 offen offset:8 sc1' % (vZERO, sq(SRD_DBG)))
        g.I('s_waitcnt vmcnt(0)')
        g.I('v_readfirstlane_b32 s%d, v28' % sN0)
        g.I('v_readfirstlane_b32 s%d, v29' % sN1)
        g.I('s_nop 3')
        g.I('s_cmp_lg_u32 s%d, 0' % sN0)
        g.I('s_cbranch_scc1 %s' % ok)
        spin_guard(g, ok)
        g.I('s_sleep 8')
        g.I('s_branch %s' % lp)
        g.label(ok)
        g.vm, g.vm_done = sv
        g.I('s_lshl_b32 s%d, s%d, 12' % (sF, sG))
        g.I('s_add_u32 s%d, s%d, 0x%x' % (sF, sF, WS_FL))
        g.I('s_and_b32 s%d, s2, 63' % sB)
        g.I('s_lshl_b32 s%d, s%d, 3' % (sB, sB))
        g.I('s_add_u32 s%d, s%d, s%d' % (sB, sB, sF))
        g.I('s_mov_b64 exec, 1')
        g.vmem('buffer_store_dwordx2 v[28:29], v%d, %s, s%d offen sc1' % (vZERO, sq(SRD_WS), sB), 'fl')
        g.I('s_mov_b64 exec, -1')
        stamp(g, 'w0_atomic')
        for n in range(8, P['KP']):
            kload2(g, n, W0)
        g.I('v_lshlrev_b32 v%d, 3, v%d' % (vT3, vLANE))
        flag_poll(g, [sF])
        g.vm_done = len(g.vm)
    else:
        for n in range(0, 8):
            kload2(g, n, W0)
        g.vm_wait('qp')
        g.I('s_mov_b64 exec, 1')
        g.I('v_mov_b32 v%d, 1' % vT3)
        if P['NOSYNC']:
            g.vmem('buffer_load_dword v%d, v%d, %s, s%d offen sc1' % (vT3, vZERO, sq(SRD_WS), sF), 'at')
        else:
            g.vmem('buffer_atomic_add v%d, v%d, %s, 0 offen sc0' % (vT3, vZERO, sq(SRD_DBG)), 'at')
        g.I('s_mov_b64 exec, -1')
        for n in range(8, 8 + P['KA']):
            kload2(g, n, W0)
        g.vm_wait('at')
        g.I('v_readfirstlane_b32 s%d, v%d' % (sB, vT3))
        stamp(g, 'w0_atomic')
        nl = g.newlabel('L_notlast')
        g.I('s_and_b32 s%d, s%d, 255' % (sB, sB))
        g.I('s_cmp_lg_u32 s%d, 255' % sB)
        g.I('s_mov_b32 s%d, 0x%x' % (sC, WS_MB))
        g.I('s_cselect_b32 s%d, 0x7f000000, s%d' % (sB, sC))
        g.I('v_lshlrev_b32 v%d, 7, v%d' % (vT3, vLANE))
        g.I('v_mov_b32 v%d, 1' % vT4)
        g.I('s_mov_b32 exec_hi, 0')
        g.vmem('buffer_store_dword v%d, v%d, %s, s%d offen sc1' % (vT4, vT3, sq(SRD_WS), sB), 'nt')
        g.I('s_mov_b64 exec, -1')
        for n in range(8 + P['KA'], NK):
            kload2(g, n, W0)
        sv = (list(g.vm), g.vm_done)
        lp = g.newlabel('L_qpoll')
        dn = g.newlabel('L_qpolld')
        g.label(lp)
        g.I('buffer_load_dword v16, v%d, %s, s%d offen sc1' % (vZERO, sq(SRD_WS), sF))
        g.I('s_waitcnt vmcnt(0)')
        g.I('v_readfirstlane_b32 s%d, v16' % sB)
        g.I('s_nop 3')
        g.I('s_cmp_eq_u32 s%d, 1' % sB)
        g.I('s_cbranch_scc1 %s' % dn)
        if P['NOSYNC']:
            g.I('s_branch %s' % dn)
        spin_guard(g, dn)
        g.I('s_sleep %d' % P['QSLEEP'])
        g.I('s_branch %s' % lp)
        g.label(dn)
        g.vm_done = len(g.vm)
    stamp(g, 'w0_polled')
    g.I('s_lshl_b32 s%d, s%d, 15' % (sA, sG))
    QA = SA
    for half in range(2):
        for k4 in range(4):
            ks = half * 4 + k4
            g.I('s_add_u32 s%d, s%d, 0x%x' % (sT, sA, WS_QP + ks * 4096))
            for i in range(4):
                g.vmem('buffer_load_dwordx4 %s, v%d, %s, s%d offen offset:%d sc1' % (vr(VA + (k4 * 4 + i) * 4), vVOFF, sq(SRD_WS), sT, i * 1024),
                       'q%d' % ks)
        for k4 in range(4):
            ks = half * 4 + k4
            g.vm_wait('q%d' % ks)
            for r in range(16):
                if ks == 0:
                    g.I('v_mov_b32 v%d, v%d' % (QA + r, VA + r))
                else:
                    g.I('v_add_f32 v%d, v%d, v%d' % (QA + r, QA + r, VA + k4 * 16 + r))
    g.I('v_lshlrev_b32 v%d, 3, v%d' % (vT2, vLANE))
    for i in range(4):
        g.I('v_cvt_pk_bf16_f32 v%d, v%d, v%d' % (16 + 2 * i, QA + 4 * i, QA + 4 * i + 1))
        g.I('v_cvt_pk_bf16_f32 v%d, v%d, v%d' % (17 + 2 * i, QA + 4 * i + 2, QA + 4 * i + 3))
        g.I('ds_write_b64 v%d, %s offset:%d' % (vT2, vr(16 + 2 * i, 2), L_Q + i * 512))
    g.I('v_mov_b32 v%d, 2' % vT4)
    g.I('s_waitcnt lgkmcnt(0)')
    g.I('ds_write_b32 v%d, v%d offset:%d' % (vZERO, vT4, L_FLAG))
    if P['NONCE']:
        for i in range(4):
            g.I('s_mov_b32 s%d, 0x%x' % (90 + i, WS_FL + i * 4096))
        flag_poll(g, [90, 91, 92, 93])
        g.vm_done = len(g.vm)
        g.I('v_mov_b32 v%d, 3' % vT4)
        g.I('ds_write_b32 v%d, v%d offset:%d' % (vZERO, vT4, L_FLAG))
        for n in range(P['KP'], NK):
            kload2(g, n, W0)


def wait_flag(g, val):
    lp = g.newlabel('L_fl')
    dn = g.newlabel('L_fld')
    g.label(lp)
    g.I('ds_read_b32 v%d, v%d offset:%d' % (vT0, vZERO, L_FLAG))
    g.I('s_waitcnt lgkmcnt(0)')
    g.I('v_readfirstlane_b32 s%d, v%d' % (sA, vT0))
    g.I('s_nop 3')
    g.I('s_cmp_ge_u32 s%d, %d' % (sA, val))
    g.I('s_cbranch_scc1 %s' % dn)
    spin_guard(g, dn)
    g.I('s_sleep 1')
    g.I('s_branch %s' % lp)
    g.label(dn)


def main_path(g, w0):
    W = P['W0'] if w0 else P['W']
    ntk, ntv, ntw = P['NT_K'], P['NT_V'], P['NT_W']
    g.comment('---------------- main path (wave0=%s)' % w0)
    NS = 3 if P['DYN'] else 4
    stamp(g, 'main_start')

    def kload(t, i):
        if P['KL'] == 2:
            X = 2 * t + (i >> 1)
            g.I('s_add_u32 s%d, s%d, 0x%x' % (sT, sKV, X << 20))
            g.vmem('buffer_load_dwordx4 %s, v%d, %s, s%d offen offset:%d%s' % (vr(KR + (t * 4 + i) * 4), vKOFF, sq(SRD_K), sT, (i & 1) * 128, ntk),
                   'k%d' % t, W)
            return
        if i == 0:
            koff = {0: t * 4096, 1: ((t >> 1) << 22) + (t & 1) * 4096, 2: t << 21}[P['ILV']]
            g.I('s_add_u32 s%d, s%d, 0x%x' % (sT, sKV, koff))
        g.vmem('buffer_load_dwordx4 %s, v%d, %s, s%d offen offset:%d%s' % (vr(KR + (t * 4 + i) * 4), vKOFF, sq(SRD_K), sT, i * 64, ntk),
               'k%d' % t, W)

    def vbase(T):
        return VA + 32 * T if T < 2 else KR + 32 * (T - 2)

    def vload(T, e):
        if P['ILV'] == 2:
            g.I('s_add_u32 s%d, s%d, 0x%x' % (sT2, sKV, (T * 8 + e) << 19))
            g.vmem('buffer_load_dwordx4 %s, v%d, %s, s%d offen%s' % (vr(vbase(T) + e * 4), vVOFF, sq(SRD_V), sT2, ntv),
                   'v%d' % T, P['WV'] if (P['WV'] and not w0 and T >= P['WVT']) else W)
            return
        if e % 4 == 0:
            g.I('s_add_u32 s%d, s%d, 0x%x' % (sT2, sKV, ((T << 22) if P['ILV'] else T * 8192) + (e // 4) * 4096))
        g.vmem('buffer_load_dwordx4 %s, v%d, %s, s%d offen offset:%d%s' % (vr(vbase(T) + e * 4), vVOFF, sq(SRD_V), sT2, (e % 4) * 1024, ntv),
               'v%d' % T, W)

    if not w0:
        GR = VA
        vGO = vT2
        g.I('s_mov_b32 s%d, 57344' % sA)
        g.I('v_mul_lo_u32 v%d, v%d, s%d' % (vGO, vJ, sA))
        g.I('v_lshl_add_u32 v%d, v%d, 4, v%d' % (vGO, vN, vGO))
        g.I('s_mul_i32 s%d, s%d, %d' % (sA, sH, 32 * 7168))
        g.I('s_and_b32 s%d, s%d, 3' % (sB, sCB))
        g.I('s_mul_i32 s%d, s%d, 1792' % (sB, sB))
        g.I('s_add_u32 s%d, s%d, s%d' % (sA, sA, sB))
        g.I('s_lshl_b32 s%d, s%d, 8' % (sB, sWAVE))
        g.I('s_add_u32 s%d, s%d, s%d' % (sA, sA, sB))
        g.I('s_sub_u32 s%d, s%d, 256' % (sA, sA))
        for e in range(8):
            g.I('s_add_u32 s%d, s%d, %d' % (sT, sA, e * 7168))
            g.vmem('buffer_load_dwordx4 %s, v%d, %s, s%d offen%s' % (vr(GR + 4 * e), vGO, sq(SRD_GU), sT, ntw), 'g', W)
            if e == min(W, 8) - 1:
                g.I('s_barrier')
    n = 0
    for t in range(0 if w0 else 2 * NS):
        for i in range(4):
            kload(t, i)
            n += 1
            if not w0 and n == P['KG']:
                wait_flag(g, 1)
                stamp(g, 'xn_ready')
                g.I('v_lshlrev_b32 v%d, 4, v%d' % (vT0, vJ))
                g.I('s_lshl_b32 s%d, s%d, 6' % (sA, sH))
                g.I('v_add_u32 v%d, s%d, v%d' % (vT0, sA, vT0))
                g.I('ds_read_b128 %s, v%d offset:%d' % (vr(QF), vT0, L_XN))
                g.I('s_waitcnt lgkmcnt(0)')
                g.vm_wait('g')
                tile32(g, GR, QF, SA, True, frag_is_A=True, PT=VA + 32)
                for dd in range(8):
                    g.I('v_mov_b32 v%d, v%d' % (QF + 8 + dd, SA + 4 * dd))
                g.I('s_mul_i32 s%d, s%d, 28672' % (sA, sH))
                g.I('s_mul_i32 s%d, s%d, 3584' % (sB, sCB))
                g.I('s_add_u32 s%d, s%d, s%d' % (sA, sA, sB))
                g.I('s_lshl_b32 s%d, s%d, 9' % (sB, sWAVE))
                g.I('s_add_u32 s%d, s%d, s%d' % (sA, sA, sB))
                g.I('s_add_u32 s%d, s%d, 0x%x' % (sA, sA, WS_GP - 512))
                g.I('v_lshlrev_b32 v%d, 5, v%d' % (vT0, vN))
                g.I('s_mov_b64 exec, 0xffff')
                g.vmem('buffer_store_dwordx4 %s, v%d, %s, s%d offen sc1' % (vr(QF + 8), vT0, sq(SRD_WS), sA), 'gp')
                g.vmem('buffer_store_dwordx4 %s, v%d, %s, s%d offen offset:16 sc1' % (vr(QF + 12), vT0, sq(SRD_WS), sA), 'gp')
                g.I('s_mov_b64 exec, -1')
                stamp(g, 'gu_done')
                if i != 3:
                    koff = {0: t * 4096, 1: ((t >> 1) << 22) + (t & 1) * 4096, 2: t << 21}[P['ILV']]
                    g.I('s_add_u32 s%d, s%d, 0x%x' % (sT, sKV, koff))
    pend = [(T, e) for T in range(NS) for e in range(8)]

    def issue(nn):
        for _ in range(nn):
            if pend:
                T, e = pend.pop(0)
                vload(T, e)

    def issue_through(T):
        while pend and pend[0][0] <= T:
            issue(1)

    issue(P['QPOS0'] if w0 else P['QPOS'])
    stamp(g, 'kv_issued')
    if not w0:
        wait_flag(g, 2)
    if P['KL'] == 2:
        g.I('v_and_b32 v%d, 7, v%d' % (vT0, vN))
        g.I('v_lshlrev_b32 v%d, 8, v%d' % (vT0, vT0))
        g.I('v_lshl_add_u32 v%d, v%d, 4, v%d' % (vT0, vJ, vT0))
        g.I('v_lshrrev_b32 v%d, 3, v%d' % (vT1, vN))
        g.I('v_lshl_add_u32 v%d, v%d, 6, v%d' % (vT0, vT1, vT0))
        for i in range(2):
            g.I('ds_read_b128 %s, v%d offset:%d' % (vr(QF + 4 * i), vT0, L_Q + i * 128))
        g.I('s_waitcnt lgkmcnt(0)')
        stamp(g, 'q_ready')

        def dreg(X):
            return QF + 8 if X == 0 else KR + (X - 1) * 8

        def adds(X):
            d = dreg(X)
            g.I('v_add_f32_dpp v%d, v%d, v%d row_ror:8 row_mask:0xf bank_mask:0xf' % (SA + 2 * X, d + 1, d))
            g.I('v_add_f32_dpp v%d, v%d, v%d row_ror:8 row_mask:0xf bank_mask:0xf' % (SA + 2 * X + 1, d + 3, d + 2))
        for X in range(4 * NS):
            g.vm_wait('k%d' % (X >> 1))
            d = dreg(X)
            g.I('v_mfma_f32_16x16x32_bf16 %s, %s, %s, 0' % (vr(d), vr(KR + X * 8), vr(QF)))
            g.I('v_mfma_f32_16x16x32_bf16 %s, %s, %s, %s' % (vr(d), vr(KR + X * 8 + 4), vr(QF + 4), vr(d)))
            if X >= 3:
                adds(X - 3)
        for X in range(4 * NS - 3, 4 * NS):
            adds(X)
    else:
        g.I('v_and_b32 v%d, 7, v%d' % (vT0, vN))
        g.I('v_lshlrev_b32 v%d, 8, v%d' % (vT0, vT0))
        g.I('v_lshl_add_u32 v%d, v%d, 4, v%d' % (vT0, vJ, vT0))
        for i in range(4):
            g.I('ds_read_b128 %s, v%d offset:%d' % (vr(QF + 4 * i), vT0, L_Q + i * 64))
        g.I('s_waitcnt lgkmcnt(0)')
        stamp(g, 'q_ready')
        for t in range(8):
            g.vm_wait('k%d' % t)
            for i in range(4):
                c = '0' if i == 0 else vr(SA + 4 * t)
                g.I('v_mfma_f32_16x16x32_bf16 %s, %s, %s, %s' % (vr(SA + 4 * t), vr(KR + (t * 4 + i) * 4), vr(QF + 4 * i), c))
    stamp(g, 'qk_done')
    for r in range(0, 8 * NS, 2):
        a, b = SA + r, SA + r + 1
        bf_round2(g, a, b, vT0)
        g.I('v_mul_f32 v%d, s%d, v%d' % (a, sSCALE, a))
        g.I('v_mul_f32 v%d, s%d, v%d' % (b, sSCALE, b))
        bf_round2(g, a, b, vT1)
        if r == 0:
            g.I('v_max_f32 v%d, v%d, v%d' % (vM, a, b))
        else:
            g.I('v_max3_f32 v%d, v%d, v%d, v%d' % (vM, vM, a, b))
        if r % 8 == 6:
            issue(1)
    xrow_allreduce(g, 'v_max_f32', vM, vT0)
    for r in range(8 * NS):
        a = SA + r
        g.I('v_sub_f32 v%d, v%d, v%d' % (a, a, vM))
        g.I('v_mul_f32 v%d, s%d, v%d' % (a, sLOG2E, a))
        g.I('v_exp_f32 v%d, v%d' % (a, a))
        if r % 8 == 7:
            issue(1)
    g.I('v_add_f32 v%d, v%d, v%d' % (vL, SA, SA + 1))
    for r in range(2, 8 * NS):
        g.I('v_add_f32 v%d, v%d, v%d' % (vL, vL, SA + r))
    for r in range(0, 8 * NS, 2):
        g.I('v_cvt_pk_bf16_f32 v%d, v%d, v%d' % (PF + r // 2, SA + r, SA + r + 1))
    xrow_allreduce(g, 'v_add_f32', vL, vT0)
    WOR = SA if P['DYN'] else VA + 32
    WDR, HD = SA, SA + 16
    WDG = QF + 8
    vWOO, vWDO = vT3, vT4
    g.I('v_lshlrev_b32 v%d, 11, v%d' % (vWOO, vJ))
    g.I('v_lshl_add_u32 v%d, v%d, 4, v%d' % (vWOO, vN, vWOO))
    stamp(g, 'sm_done')
    vCL = 1

    def claim(track):
        g.I('s_mov_b64 exec, 1')
        g.I('v_mov_b32 v%d, 1' % vCL)
        t = 'buffer_atomic_add v%d, v%d, %s, s%d offen sc0' % (vCL, vZERO, sq(SRD_WS), sCT)
        if track:
            g.vmem(t, 'cl')
        else:
            g.I(t)
        g.I('s_mov_b64 exec, -1')

    def dyn_base():
        g.I('v_readfirstlane_b32 s%d, v%d' % (sDI, vCL))
        g.I('s_nop 3')
        g.I('s_and_b32 s%d, s%d, 1' % (sDB, sWAVE))
        g.I('s_lshl_b32 s%d, s%d, 8' % (sDB, sDB))
        g.I('s_add_u32 s%d, s%d, s%d' % (sDB, sDB, sDI))
        g.I('s_lshl_b32 s%d, s%d, 10' % (sDB, sDB))
        g.I('s_lshl_b32 s%d, s%d, 24' % (sA, sG))
        g.I('s_add_u32 s%d, s%d, s%d' % (sDB, sDB, sA))
        g.I('s_cmp_lt_u32 s%d, 256' % sDI)
        g.I('s_cselect_b32 s%d, s%d, 0x7f000000' % (sDB, sDB))

    def dyn_loads(track):
        for x in range(4):
            for ii in range(2):
                g.I('s_add_u32 s%d, s%d, 0x%x' % (sT, sDB, (12 + x) << 20))
                t = 'buffer_load_dwordx4 %s, v%d, %s, s%d offen offset:%d%s' % (vr(VA + (x * 2 + ii) * 4), vKOFF, sq(SRD_K), sT, ii * 128, ntk)
                if track:
                    g.vmem(t, 'dk', W)
                else:
                    g.I(t)
        for e in range(8):
            g.I('s_add_u32 s%d, s%d, 0x%x' % (sT2, sDB, (24 + e) << 19))
            t = 'buffer_load_dwordx4 %s, v%d, %s, s%d offen%s' % (vr(VA + 32 + e * 4), vVOFF, sq(SRD_V), sT2, ntv)
            if track:
                g.vmem(t, 'dv', W)
            else:
                g.I(t)

    if P['DYN']:
        g.I('s_lshl_b32 s%d, s%d, 8' % (sCT, sG))
        g.I('s_and_b32 s%d, s%d, 1' % (sA, sWAVE))
        g.I('s_lshl_b32 s%d, s%d, 7' % (sA, sA))
        g.I('s_add_u32 s%d, s%d, s%d' % (sCT, sCT, sA))
        g.I('s_add_u32 s%d, s%d, 0x%x' % (sCT, sCT, WS_CT))
    hloads = []
    if not w0:
        if P['NONCE']:
            wait_flag(g, 3)
        g.I('v_lshlrev_b32 v%d, 13, v%d' % (vWDO, vJ))
        g.I('v_lshl_add_u32 v%d, v%d, 4, v%d' % (vWDO, vN, vWDO))
        g.I('s_mul_i32 s%d, s%d, 112' % (sA, sH))
        g.I('s_lshl_b32 s%d, s%d, 4' % (sB, sWAVE))
        g.I('s_add_u32 s%d, s%d, s%d' % (sA, sA, sB))
        g.I('s_sub_u32 s%d, s%d, 16' % (sE, sA))
        g.I('s_lshl_b32 s%d, s%d, 11' % (sA, sE))
        g.I('s_lshl_b32 s%d, s%d, 8' % (sB, sCB))
        g.I('s_add_u32 s%d, s%d, s%d' % (sA, sA, sB))
        for e in range(4):
            g.I('s_add_u32 s%d, s%d, %d' % (sT, sA, e * 2048))
            g.vmem('buffer_load_dwordx4 %s, v%d, %s, s%d offen%s' % (vr(WDR + 4 * e), vWDO, sq(SRD_WD), sT, ntw), 'wd', W)
        vHO = vT5
        g.I('s_mov_b32 s%d, 28672' % sT)
        g.I('v_mul_lo_u32 v%d, v%d, s%d' % (vHO, vN, sT))
        g.I('v_lshl_add_u32 v%d, v%d, 4, v%d' % (vHO, vJ, vHO))
        g.I('s_lshl_b32 s%d, s%d, 2' % (90, sE))
        g.I('s_add_u32 s%d, s%d, 0x%x' % (90, 90, WS_GP))
        g.I('s_add_u32 s%d, s%d, %d' % (91, 90, 16 * 28672))
        g.I('s_add_u32 s%d, s%d, %d' % (92, 90, 14336))
        g.I('s_add_u32 s%d, s%d, %d' % (93, 90, 14336 + 16 * 28672))
        hloads = ['buffer_load_dwordx4 %s, v%d, %s, s%d offen sc1' % (vr(HD + 4 * i), vHO, sq(SRD_WS), 90 + i) for i in range(4)]
        for t in hloads:
            g.vmem(t, 'h', W)
    def wo_loads():
        WW = P['WT']
        g.I('s_lshl_b32 s%d, s%d, 7' % (sA, sH))
        g.I('s_lshr_b32 s%d, s%d, 1' % (sB, sWAVE))
        g.I('s_lshl_b32 s%d, s%d, 5' % (sB, sB))
        g.I('s_add_u32 s%d, s%d, s%d' % (sA, sA, sB))
        g.I('s_and_b32 s%d, s%d, 1' % (sB, sWAVE))
        g.I('s_lshl_b32 s%d, s%d, 2' % (sB, sB))
        g.I('s_add_u32 s%d, s%d, s%d' % (sA, sA, sB))
        g.I('s_lshl_b32 s%d, s%d, 11' % (sA, sA))
        g.I('s_lshl_b32 s%d, s%d, 8' % (sB, sCB))
        g.I('s_add_u32 s%d, s%d, s%d' % (sA, sA, sB))
        for e in range(4):
            g.I('s_add_u32 s%d, s%d, %d' % (sT, sA, e * 16384))
            g.vmem('buffer_load_dwordx4 %s, v%d, %s, s%d offen%s' % (vr(WOR + 4 * e), vWOO, sq(SRD_WO), sT, ntw), 'wo', WW)

    for T in range(NS):
        if P['DYN'] and T == P['TC']:
            claim(True)
        issue_through(min(T + 1, NS - 1))
        if P['DYN'] and T == 2:
            g.vm_wait('cl')
            dyn_base()
            dyn_loads(True)
        g.vm_wait('v%d' % T)
        if T == P['TH'] and not w0:
            g.vm_wait('h')
            sv = (list(g.vm), g.vm_done)
            ok = g.newlabel('L_hok')
            rs = list(range(HD, HD + 16))
            g.I('v_max_u32 v%d, v%d, v%d' % (vT1, rs[0], rs[1]))
            for i in range(2, 16, 2):
                g.I('v_max3_u32 v%d, v%d, v%d, v%d' % (vT1, vT1, rs[i], rs[i + 1]))
            g.I('v_cmp_eq_u32 vcc, -1, v%d' % vT1)
            g.I('s_cbranch_vccz %s' % ok)
            poll_valid(g, hloads, rs, vT1)
            g.label(ok)
            g.vm, g.vm_done = sv
            GG, UU = HD, HD + 8
            for c in range(4):
                g.I('v_add_f32 v%d, v%d, v%d' % (GG + c, GG + c, GG + 4 + c))
                g.I('v_add_f32 v%d, v%d, v%d' % (UU + c, UU + c, UU + 4 + c))
            row_allreduce_multi(g, 'v_add_f32', [GG + c for c in range(4)] + [UU + c for c in range(4)])
            for c in range(0, 4, 2):
                bf_round2(g, GG + c, GG + c + 1, vT0)
                bf_round2(g, UU + c, UU + c + 1, vT0)
            k0 = 0.7978845608028654
            k1 = 0.044715
            c2 = -2.0 * k0 * 1.4426950408889634
            for c in range(4):
                x = GG + c
                t = GG + 4 + c
                g.I('v_mul_f32 v%d, v%d, v%d' % (t, x, x))
                g.I('v_mul_f32 v%d, v%d, v%d' % (t, t, x))
                g.I('v_mul_f32 v%d, %s, v%d' % (t, f32(k1), t))
                g.I('v_add_f32 v%d, v%d, v%d' % (t, t, x))
                g.I('v_mul_f32 v%d, %s, v%d' % (t, f32(c2), t))
                g.I('v_exp_f32 v%d, v%d' % (t, t))
                g.I('v_add_f32 v%d, 1.0, v%d' % (t, t))
                g.I('v_rcp_f32 v%d, v%d' % (t, t))
                g.I('v_mul_f32 v%d, v%d, v%d' % (x, x, t))
            for c in range(0, 4, 2):
                bf_round2(g, GG + c, GG + c + 1, vT0)
            for c in range(4):
                g.I('v_mul_f32 v%d, v%d, v%d' % (GG + c, GG + c, UU + c))
            HFR = PT + 2
            g.I('v_cvt_pk_bf16_f32 v%d, v%d, v%d' % (HFR, GG, GG + 1))
            g.I('v_cvt_pk_bf16_f32 v%d, v%d, v%d' % (HFR + 1, GG + 2, GG + 3))
            tile16g(g, WDR, HFR, HD, WDG)
            stamp(g, 'wd_done')
        if T == P['TW'] and not P['DYN']:
            wo_loads()
        tile32(g, vbase(T), PF + 4 * T, OA, T == 0, frag_is_A=False)
    if P['DYN']:
        lp = g.newlabel('L_dyn')
        dn = g.newlabel('L_dynd')
        g.I('s_cmp_ge_u32 s%d, 256' % sDI)
        g.I('s_cbranch_scc1 %s' % dn)
        g.label(lp)
        claim(False)
        g.I('s_waitcnt vmcnt(9)')
        DS, DD = SA, SA + 8
        for x in range(4):
            d = DD + 4 * x
            g.I('v_mfma_f32_16x16x32_bf16 %s, %s, %s, 0' % (vr(d), vr(VA + x * 8), vr(QF)))
            g.I('v_mfma_f32_16x16x32_bf16 %s, %s, %s, %s' % (vr(d), vr(VA + x * 8 + 4), vr(QF + 4), vr(d)))
        for x in range(4):
            d = DD + 4 * x
            g.I('v_add_f32_dpp v%d, v%d, v%d row_ror:8 row_mask:0xf bank_mask:0xf' % (DS + 2 * x, d + 1, d))
            g.I('v_add_f32_dpp v%d, v%d, v%d row_ror:8 row_mask:0xf bank_mask:0xf' % (DS + 2 * x + 1, d + 3, d + 2))
        MN, AL, LS = DD, DD + 1, DD + 2
        for r in range(0, 8, 2):
            a_, b_ = DS + r, DS + r + 1
            bf_round2(g, a_, b_, vT0)
            g.I('v_mul_f32 v%d, s%d, v%d' % (a_, sSCALE, a_))
            g.I('v_mul_f32 v%d, s%d, v%d' % (b_, sSCALE, b_))
            bf_round2(g, a_, b_, vT1)
            g.I('v_max3_f32 v%d, v%d, v%d, v%d' % (MN, vM if r == 0 else MN, a_, b_))
        xrow_allreduce(g, 'v_max_f32', MN, vT0)
        g.I('v_sub_f32 v%d, v%d, v%d' % (AL, vM, MN))
        g.I('v_mul_f32 v%d, s%d, v%d' % (AL, sLOG2E, AL))
        g.I('v_exp_f32 v%d, v%d' % (AL, AL))
        g.I('v_mov_b32 v%d, v%d' % (vM, MN))
        for r in range(8):
            a_ = DS + r
            g.I('v_sub_f32 v%d, v%d, v%d' % (a_, a_, MN))
            g.I('v_mul_f32 v%d, s%d, v%d' % (a_, sLOG2E, a_))
            g.I('v_exp_f32 v%d, v%d' % (a_, a_))
        g.I('v_add_f32 v%d, v%d, v%d' % (LS, DS, DS + 1))
        for r in range(2, 8):
            g.I('v_add_f32 v%d, v%d, v%d' % (LS, LS, DS + r))
        for r in range(0, 8, 2):
            g.I('v_cvt_pk_bf16_f32 v%d, v%d, v%d' % (PF + r // 2, DS + r, DS + r + 1))
        xrow_allreduce(g, 'v_add_f32', LS, vT0)
        g.I('v_fma_f32 v%d, v%d, v%d, v%d' % (vL, vL, AL, LS))
        for r in range(32):
            g.I('v_mul_f32 v%d, v%d, v%d' % (OA + r, OA + r, AL))
        g.I('s_waitcnt vmcnt(1)')
        tile32(g, VA + 32, PF, OA, False, frag_is_A=False)
        g.I('s_waitcnt vmcnt(0)')
        dyn_base()
        g.I('s_cmp_ge_u32 s%d, 256' % sDI)
        g.I('s_cbranch_scc1 %s' % dn)
        dyn_loads(False)
        g.I('s_branch %s' % lp)
        g.label(dn)
        g.vm_reset()
        wo_loads()
    stamp(g, 'pv_done')
    g.I('s_mul_i32 s%d, s%d, 4224' % (sA, sWAVE))
    g.I('v_mul_u32_u24 v%d, 528, v%d' % (vT0, vN))
    g.I('v_lshl_add_u32 v%d, v%d, 7, v%d' % (vT0, vJ, vT0))
    g.I('v_add_u32 v%d, s%d, v%d' % (vT0, sA, vT0))
    g.I('s_mov_b32 s%d, 0x00ff00ff' % sEX)
    g.I('s_mov_b32 s%d, 0x00ff00ff' % (sEX + 1))
    g.I('s_mov_b64 exec, s[%d:%d]' % (sEX, sEX + 1))
    for dd in range(8):
        g.I('ds_write_b128 v%d, %s offset:%d' % (vT0, vr(OA + 4 * dd), L_OW + dd * 16))
    g.I('s_mov_b64 exec, 0xff')
    g.I('s_lshl_b32 s%d, s%d, 6' % (sA, sWAVE))
    g.I('v_lshlrev_b32 v%d, 3, v%d' % (vT1, vLANE))
    g.I('v_add_u32 v%d, s%d, v%d' % (vT1, sA, vT1))
    g.I('ds_write_b64 v%d, %s offset:%d' % (vT1, vr(vM, 2), L_ML))
    g.I('s_mov_b64 exec, -1')
    g.I('s_waitcnt lgkmcnt(0)')
    g.I('s_barrier')
    stamp(g, 'b3')
    CO = OA
    CM = OA + 16
    g.I('s_mul_i32 s%d, s%d, 528' % (sA, sWAVE))
    g.I('v_lshlrev_b32 v%d, 3, v%d' % (vT0, vLANE))
    g.I('v_add_u32 v%d, s%d, v%d' % (vT1, sA, vT0))
    g.I('s_lshl_b32 s%d, s%d, 3' % (sA, sWAVE))
    g.I('v_mov_b32 v%d, s%d' % (vT5, sA))
    for w in range(8):
        g.I('ds_read_b64 %s, v%d offset:%d' % (vr(CM + 2 * w, 2), vT5, L_ML + w * 64))
    for w in range(8):
        g.I('ds_read_b64 %s, v%d offset:%d' % (vr(CO + 2 * w, 2), vT1, L_OW + w * 4224))
    g.I('s_waitcnt lgkmcnt(0)')
    g.I('v_max3_f32 v%d, v%d, v%d, v%d' % (vM, CM, CM + 2, CM + 4))
    g.I('v_max3_f32 v%d, v%d, v%d, v%d' % (vM, vM, CM + 6, CM + 8))
    g.I('v_max3_f32 v%d, v%d, v%d, v%d' % (vM, vM, CM + 10, CM + 12))
    g.I('v_max_f32 v%d, v%d, v%d' % (vM, vM, CM + 14))
    for w in range(8):
        m = CM + 2 * w
        g.I('v_sub_f32 v%d, v%d, v%d' % (m, m, vM))
        g.I('v_mul_f32 v%d, s%d, v%d' % (m, sLOG2E, m))
        g.I('v_exp_f32 v%d, v%d' % (m, m))
    R0, R1 = PT, PT + 1
    for w in range(8):
        m = CM + 2 * w
        if w == 0:
            g.I('v_mul_f32 v%d, v%d, v%d' % (R0, m, CO))
            g.I('v_mul_f32 v%d, v%d, v%d' % (R1, m, CO + 1))
            g.I('v_mul_f32 v%d, v%d, v%d' % (vL, m, m + 1))
        else:
            g.I('v_fmac_f32 v%d, v%d, v%d' % (R0, m, CO + 2 * w))
            g.I('v_fmac_f32 v%d, v%d, v%d' % (R1, m, CO + 2 * w + 1))
            g.I('v_fmac_f32 v%d, v%d, v%d' % (vL, m, m + 1))
    g.I('v_lshrrev_b32 v%d, 3, v%d' % (vT0, vLANE))
    g.I('v_lshlrev_b32 v%d, 12, v%d' % (vT0, vT0))
    g.I('v_and_b32 v%d, 7, v%d' % (vT1, vLANE))
    g.I('v_lshl_add_u32 v%d, v%d, 3, v%d' % (vT0, vT1, vT0))
    g.I('s_lshl_b32 s%d, s%d, 18' % (sA, sG))
    g.I('s_lshl_b32 s%d, s%d, 15' % (sB, sWAVE))
    g.I('s_add_u32 s%d, s%d, s%d' % (sA, sA, sB))
    g.I('s_and_b32 s%d, s2, 63' % sB)
    g.I('s_lshl_b32 s%d, s%d, 6' % (sB, sB))
    g.I('s_add_u32 s%d, s%d, s%d' % (sA, sA, sB))
    g.I('s_add_u32 s%d, s%d, 0x%x' % (sA, sA, WS_AP))
    g.vmem('buffer_store_dwordx2 %s, v%d, %s, s%d offen sc1' % (vr(R0, 2), vT0, sq(SRD_WS), sA), 'ap')
    g.I('s_lshl_b32 s%d, s%d, 9' % (sB, sWAVE))
    g.I('s_lshl_b32 s%d, s%d, 12' % (sA, sG))
    g.I('s_add_u32 s%d, s%d, s%d' % (sA, sA, sB))
    g.I('s_and_b32 s%d, s2, 63' % sB)
    g.I('s_lshl_b32 s%d, s%d, 3' % (sB, sB))
    g.I('s_add_u32 s%d, s%d, s%d' % (sA, sA, sB))
    g.I('s_add_u32 s%d, s%d, 0x%x' % (sA, sA, WS_ML))
    g.I('s_mov_b64 exec, 1')
    g.vmem('buffer_store_dwordx2 %s, v%d, %s, s%d offen sc1' % (vr(vM, 2), vZERO, sq(SRD_WS), sA), 'ml')
    g.I('s_mov_b64 exec, -1')
    stamp(g, 'ap_stored')
    WDA = KR
    MLr = KR + 32
    AD = KR + 40
    g.I('s_lshl_b32 s%d, s%d, 9' % (sF, sH))
    g.I('s_add_u32 s%d, s%d, 0x%x' % (sF, sF, WS_ML))
    if w0:
        PR = PT
        g.I('v_lshlrev_b32 v%d, 3, v%d' % (vT3, vLANE))
        poll_valid(g, ['buffer_load_dwordx2 %s, v%d, %s, s%d offen sc1' % (vr(PR, 2), vT3, sq(SRD_WS), sF)],
                   range(PR, PR + 2), vT1, sleep=P['TSLEEP'])
    stamp(g, 'pre_b5')
    g.I('s_barrier')
    loads = []
    g.I('v_lshlrev_b32 v%d, 3, v%d' % (vT0, vN))
    loads += ['buffer_load_dwordx2 %s, v%d, %s, s%d offen offset:%d sc1' % (vr(MLr + 2 * i, 2), vT0, sq(SRD_WS), sF, i * 128)
              for i in range(4)]
    g.I('v_lshlrev_b32 v%d, 6, v%d' % (vT2, vN))
    g.I('v_lshl_add_u32 v%d, v%d, 4, v%d' % (vT2, vJ, vT2))
    g.I('s_lshl_b32 s%d, s%d, 15' % (sA, sH))
    g.I('s_lshl_b32 s%d, s%d, 12' % (sB, sWAVE))
    g.I('s_add_u32 s%d, s%d, s%d' % (sA, sA, sB))
    g.I('s_add_u32 s%d, s%d, 0x%x' % (sA, sA, WS_AP))
    loads += ['buffer_load_dwordx4 %s, v%d, %s, s%d offen offset:%d sc1' % (vr(AD + 4 * i), vT2, sq(SRD_WS), sA, i * 1024)
              for i in range(4)]
    poll_valid(g, loads, range(MLr, MLr + 24), vT1, plain_first=True)
    stamp(g, 'ml_ok')
    g.I('v_max3_f32 v%d, v%d, v%d, v%d' % (vM, MLr, MLr + 2, MLr + 4))
    g.I('v_max_f32 v%d, v%d, v%d' % (vM, vM, MLr + 6))
    row_allreduce(g, 'v_max_f32', vM)
    for i in range(4):
        m = MLr + 2 * i
        g.I('v_sub_f32 v%d, v%d, v%d' % (m, m, vM))
        g.I('v_mul_f32 v%d, s%d, v%d' % (m, sLOG2E, m))
        g.I('v_exp_f32 v%d, v%d' % (m, m))
    OC = QF
    for i in range(4):
        m = MLr + 2 * i
        op = 'v_mul_f32' if i == 0 else 'v_fmac_f32'
        g.I('%s v%d, v%d, v%d' % (op, vL, m, m + 1))
        for c in range(4):
            g.I('%s v%d, v%d, v%d' % (op, OC + c, m, AD + 4 * i + c))
    row_allreduce_multi(g, 'v_add_f32', [vL, OC, OC + 1, OC + 2, OC + 3])
    g.I('v_rcp_f32 v%d, v%d' % (vT0, vL))
    for c in range(4):
        x = OC + c
        g.I('v_mul_f32 v%d, v%d, v%d' % (vT1, x, vT0))
        g.I('v_fma_f32 v%d, -v%d, v%d, v%d' % (vT5, vT1, vL, x))
        g.I('v_fma_f32 v%d, v%d, v%d, v%d' % (x, vT5, vT0, vT1))
    OFR = QF + 4
    g.I('v_cvt_pk_bf16_f32 v%d, v%d, v%d' % (OFR, OC, OC + 1))
    g.I('v_cvt_pk_bf16_f32 v%d, v%d, v%d' % (OFR + 1, OC + 2, OC + 3))
    WOA = OA
    tile16(g, WOR, OFR, WOA)
    stamp(g, 'wo_done')
    F = VA
    for dd in range(8):
        g.I('v_mov_b32 v%d, v%d' % (F + dd, WOA + 4 * dd))
    for dd in range(8):
        if w0:
            g.I('v_mov_b32 v%d, 0' % (F + 8 + dd))
        else:
            g.I('v_mov_b32 v%d, v%d' % (F + 8 + dd, WDG + dd))
    g.I('s_lshl_b32 s%d, s%d, 10' % (sA, sWAVE))
    g.I('v_lshlrev_b32 v%d, 5, v%d' % (vT0, vN))
    g.I('v_add_u32 v%d, s%d, v%d' % (vT0, sA, vT0))
    g.I('s_mov_b64 exec, 0xffff')
    g.I('ds_write_b128 v%d, %s offset:%d' % (vT0, vr(F), L_FR))
    g.I('ds_write_b128 v%d, %s offset:%d' % (vT0, vr(F + 4), L_FR + 16))
    g.I('ds_write_b128 v%d, %s offset:%d' % (vT0, vr(F + 8), L_FR + 512))
    g.I('ds_write_b128 v%d, %s offset:%d' % (vT0, vr(F + 12), L_FR + 528))
    g.I('s_mov_b64 exec, -1')
    g.I('s_waitcnt lgkmcnt(0)')
    g.I('s_barrier')
    stamp(g, 'b4')
    if not w0:
        stamp_store(g)
        g.I('s_endpgm')
        return
    g.I('s_lshl_b32 s%d, s%d, 8' % (sF, sCB))
    g.I('s_lshl_b32 s%d, s%d, 3' % (sB, sH))
    g.I('s_add_u32 s%d, s%d, s%d' % (sF, sF, sB))
    XV = QF + 8
    g.vmem('buffer_load_dwordx2 %s, v%d, %s, s%d offen' % (vr(XV, 2), vZERO, sq(SRD_X), sF), 'xv')
    RD = KR
    for w in range(8):
        g.I('ds_read_b128 %s, v%d offset:%d' % (vr(RD + 4 * w), vVOFF, L_FR + w * 1024))
    g.I('s_waitcnt lgkmcnt(0)')
    for w in range(1, 8):
        for c in range(4):
            g.I('v_add_f32 v%d, v%d, v%d' % (RD + c, RD + c, RD + 4 * w + c))
    g.I('s_lshl_b32 s%d, s%d, 15' % (sA, sCB))
    g.I('s_add_u32 s%d, s%d, 0x%x' % (sA, sA, WS_FP))
    g.I('s_lshl_b32 s%d, s%d, 10' % (sB, sH))
    g.I('s_add_u32 s%d, s%d, s%d' % (sB, sA, sB))
    g.vmem('buffer_store_dwordx4 %s, v%d, %s, s%d offen sc1' % (vr(RD), vVOFF, sq(SRD_WS), sB), 'fp')
    g.I('v_and_b32 v%d, 31, v%d' % (vT0, vLANE))
    g.I('v_lshlrev_b32 v%d, 10, v%d' % (vT0, vT0))
    g.I('v_lshrrev_b32 v%d, 5, v%d' % (vT1, vLANE))
    g.I('v_lshl_add_u32 v%d, v%d, 9, v%d' % (vT0, vT1, vT0))
    g.I('s_lshl_b32 s%d, s%d, 4' % (sB, sH))
    g.I('s_add_u32 s%d, s%d, s%d' % (sA, sA, sB))
    FD = KR + 32
    poll_valid(g, ['buffer_load_dwordx4 %s, v%d, %s, s%d offen sc1' % (vr(FD), vT0, sq(SRD_WS), sA)], range(FD, FD + 4), vT1)
    row_allreduce_multi(g, 'v_add_f32', [FD + c for c in range(4)])
    FE = FD + 4
    for c in range(4):
        g.I('v_mov_b32 v%d, v%d' % (FE + c, FD + c))
    for c in range(4):
        g.I('v_permlane16_swap_b32 v%d, v%d' % (FD + c, FE + c))
    for c in range(4):
        g.I('v_add_f32 v%d, v%d, v%d' % (FD + c, FD + c, FE + c))
    for c in range(4):
        g.I('v_mov_b32 v%d, v%d' % (FE + c, FD + c))
    for c in range(4):
        g.I('v_permlane32_swap_b32 v%d, v%d' % (FD + c, FE + c))
    XF = FD + 8
    for d in range(2):
        g.I('v_lshlrev_b32 v%d, 16, v%d' % (XF + 2 * d, XV + d))
        g.I('v_and_b32 v%d, 0xffff0000, v%d' % (XF + 2 * d + 1, XV + d))
    for c in range(0, 4, 2):
        bf_round2(g, FD + c, FD + c + 1, vT0)
        bf_round2(g, FE + c, FE + c + 1, vT0)
    for c in range(4):
        g.I('v_add_f32 v%d, v%d, v%d' % (FD + c, FD + c, XF + c))
    for c in range(0, 4, 2):
        bf_round2(g, FD + c, FD + c + 1, vT0)
    for c in range(4):
        g.I('v_add_f32 v%d, v%d, v%d' % (FD + c, FD + c, FE + c))
    g.I('v_cvt_pk_bf16_f32 v%d, v%d, v%d' % (XF, FD, FD + 1))
    g.I('v_cvt_pk_bf16_f32 v%d, v%d, v%d' % (XF + 1, FD + 2, FD + 3))
    g.I('s_mov_b64 exec, 1')
    g.I('buffer_store_dwordx2 %s, v%d, %s, s%d offen' % (vr(XF, 2), vZERO, sq(SRD_OUT), sF))
    stamp(g, 'end')
    stamp_store(g, True)
    g.I('s_endpgm')


def build():
    g = Gen()
    hdr = open('cdna_kernels/%s.s.ref' % NAME).read().split('\n')
    out = []
    for ln in hdr:
        if ln.startswith('; @launch'):
            out.append('; @launch grid=(256,1,1) block=(512,1,1) lds=%d' % LDS_BYTES)
        elif ln.startswith(';'):
            out.append(ln)
        else:
            break
    out.append('.amdgcn_target "amdgcn-amd-amdhsa--gfx950"')
    out.append('.text')
    out.append('.globl %s_kernel' % NAME)
    out.append('.p2align 8')
    out.append('.type %s_kernel,@function' % NAME)
    out.append('%s_kernel:' % NAME)
    g.I('s_cmp_ge_u32 s2, 256')
    g.I('s_cbranch_scc1 L_end')
    g.I('s_load_dwordx16 s[8:23], s[0:1], 0')
    g.I('s_load_dwordx8 s[24:31], s[0:1], 64')
    if P['REMAP'] == 2:
        g.I('s_and_b32 s%d, s2, 7' % sT)
        g.I('s_lshl_b32 s%d, s%d, 3' % (sT, sT))
        g.I('s_lshr_b32 s%d, s2, 3' % sT2)
        g.I('s_and_b32 s2, s%d, 7' % sT2)
        g.I('s_add_u32 s2, s2, s%d' % sT)
        g.I('s_lshr_b32 s%d, s%d, 3' % (sT2, sT2))
        g.I('s_lshl_b32 s%d, s%d, 6' % (sT2, sT2))
        g.I('s_add_u32 s2, s2, s%d' % sT2)
    elif P['REMAP']:
        g.I('s_and_b32 s%d, s2, 7' % sT)
        g.I('s_lshl_b32 s%d, s%d, 5' % (sT, sT))
        g.I('s_lshr_b32 s2, s2, 3')
        g.I('s_add_u32 s2, s2, s%d' % sT)
    g.I('v_lshrrev_b32 v1, 6, v0')
    g.I('v_and_b32 v0, 63, v0')
    g.I('v_readfirstlane_b32 s%d, v1' % sWAVE)
    g.I('v_and_b32 v%d, 15, v0' % vN)
    g.I('v_lshrrev_b32 v%d, 4, v0' % vJ)
    if P['KL'] == 2:
        g.I('v_bfe_u32 v%d, v%d, 1, 1' % (vKOFF, vN))
        g.I('v_lshlrev_b32 v%d, 19, v%d' % (vKOFF, vKOFF))
        g.I('v_and_b32 v%d, 1, v%d' % (vT0, vN))
        g.I('v_lshl_add_u32 v%d, v%d, 6, v%d' % (vKOFF, vT0, vKOFF))
    else:
        g.I('v_and_b32 v%d, 3, v%d' % (vKOFF, vN))
        g.I('v_lshlrev_b32 v%d, %d, v%d' % (vKOFF, 19 if P['ILV'] == 2 else 10, vKOFF))
    g.I('v_lshrrev_b32 v%d, 2, v%d' % (vT0, vN))
    g.I('v_lshl_add_u32 v%d, v%d, 8, v%d' % (vKOFF, vT0, vKOFF))
    g.I('v_lshl_add_u32 v%d, v%d, 4, v%d' % (vKOFF, vJ, vKOFF))
    g.I('v_lshlrev_b32 v%d, 4, v0' % vVOFF)
    g.I('v_mov_b32 v%d, 0' % vZERO)
    if P['ILV']:
        sh = 3 if P['ILV'] == 2 else 0
        g.I('s_lshr_b32 s%d, s2, 6' % sKV)
        g.I('s_lshl_b32 s%d, s%d, 24' % (sKV, sKV))
        g.I('s_and_b32 s%d, s2, 63' % sT)
        g.I('s_lshl_b32 s%d, s%d, %d' % (sT, sT, 16 - sh))
        g.I('s_add_u32 s%d, s%d, s%d' % (sKV, sKV, sT))
        g.I('s_lshl_b32 s%d, s%d, %d' % (sT, sWAVE, 13 - sh))
        g.I('s_add_u32 s%d, s%d, s%d' % (sKV, sKV, sT))
    else:
        g.I('s_lshl_b32 s%d, s2, 18' % sKV)
        g.I('s_lshl_b32 s%d, s%d, 15' % (sT, sWAVE))
        g.I('s_add_u32 s%d, s%d, s%d' % (sKV, sKV, sT))
    g.I('s_lshr_b32 s%d, s2, 3' % sH)
    g.I('s_and_b32 s%d, s2, 7' % sCB)
    g.I('s_lshr_b32 s%d, s2, 6' % sG)
    g.I('s_mov_b32 s%d, 0' % sCNT)
    g.I('s_mov_b32 s%d, 0x05040100' % sSEL0)
    g.I('s_mov_b32 s%d, 0x07060302' % sSEL1)
    g.I('s_mov_b32 s%d, %s' % (sSCALE, f32(128 ** -0.5)))
    g.I('s_mov_b32 s%d, %s' % (sLOG2E, f32(1.4426950408889634)))
    g.I('s_waitcnt lgkmcnt(0)')
    srd(g, SRD_K, 10, 1 << 26)
    srd(g, SRD_V, 12, 1 << 26)
    srd(g, SRD_X, 8, 2048)
    srd(g, SRD_WQ, 14, 1 << 23)
    srd(g, SRD_WO, 16, 1 << 23)
    g.I('s_cmp_lt_u32 s%d, 4' % sCB)
    g.I('s_cselect_b32 s%d, s20, s22' % SRD_GU)
    g.I('s_cselect_b32 s%d, s21, s23' % (SRD_GU + 1))
    g.I('s_and_b32 s%d, s%d, 0xffff' % (SRD_GU + 1, SRD_GU + 1))
    g.I('s_mov_b32 s%d, 0x%x' % (SRD_GU + 2, 1024 * 3584 * 2))
    g.I('s_mov_b32 s%d, 0x00020000' % (SRD_GU + 3))
    srd(g, SRD_WD, 24, 3584 * 1024 * 2)
    srd(g, SRD_OUT, 26, 2048)
    srd(g, SRD_DBG, 28, 256)
    srd(g, SRD_WS, 30, WS_SIZE)
    g.I('v_mov_b32 v%d, 0' % vST)
    stamp(g, 'entry')
    g.I('s_cmp_eq_u32 s%d, 0' % sWAVE)
    g.I('s_cbranch_scc1 L_wave0')
    g.fence()
    main_path(g, False)
    g.label('L_wave0')
    g.vm_reset()
    prologue_wave0(g)
    main_path(g, True)
    g.label('L_end')
    g.I('s_endpgm')
    out.append(g.text())
    out.append('.section .rodata,"a"')
    out.append('.p2align 6')
    out.append('.amdhsa_kernel %s_kernel' % NAME)
    out.append('  .amdhsa_next_free_vgpr 256')
    out.append('  .amdhsa_next_free_sgpr 102')
    out.append('  .amdhsa_accum_offset 256')
    out.append('  .amdhsa_group_segment_fixed_size 0')
    out.append('  .amdhsa_kernarg_size 96')
    out.append('  .amdhsa_user_sgpr_count 2')
    out.append('  .amdhsa_user_sgpr_kernarg_segment_ptr 1')
    out.append('  .amdhsa_system_sgpr_workgroup_id_x 1')
    out.append('  .amdhsa_float_denorm_mode_32 3')
    out.append('.end_amdhsa_kernel')
    return '\n'.join(out) + '\n'


if __name__ == '__main__':
    dst = sys.argv[1] if len(sys.argv) > 1 else 'cdna_kernels/%s.s' % NAME
    open(dst, 'w').write(build())
    print('wrote', dst)
    if P.get('STAMPS'):
        open(dst + '.stamps', 'w').write('\n'.join(STAMP_NAMES))
```

```python
import sys
import struct
from dsl import Gen

NAME = 'parallel_sum__gqa_block_cached__geglu_ffn__decode'

P = dict(
    W=4,
    W0=8,
    WP=16,
    NT_K=' nt',
    NT_V=' nt',
    NT_W=' nt',
    SLEEP=1,
    QSLEEP=4,
    TW=3,
    TH=2,
    KA=6,
    WG0=4,
    THR=4,
    KP=16,
    TC=1,
    WT=8,
    KG=16,
    REMAP=2,
    DYN=0,
    NONCE=1,
    NOCLR=0,
    NOSYNC=0,
    PLAIN=0,
    KL=2,
    WV=0,
    WVT=2,
    QPOS=6,
    QPOS0=8,
    TSLEEP=4,
    ILV=2,
    QPOLL=' sc1',
)
for a in sys.argv[2:]:
    k, v = a.split('=')
    P[k] = int(v) if v.lstrip('-').isdigit() else v


def f32(x):
    return '0x%08x' % struct.unpack('<I', struct.pack('<f', x))[0]


L_XN = 0
L_Q = 2048
L_FLAG = 4096
L_OW = 8192
L_ML = L_OW + 8 * 4224
L_FR = L_ML + 512
LDS_BYTES = L_FR + 8192

WS_QP = 0
WS_AP = 0x100000
WS_ML = 0x200000
WS_GP = 0x300000
WS_FP = 0x400000
WS_MB = 0x440000
WS_CT = 0x460000
WS_FL = 0x470000
WS_SIZE = 0x500000

sWAVE = 3
sKV = 4
sT = 5
sT2 = 6
sCNT = 7
SRD_K, SRD_V, SRD_WQ, SRD_WO, SRD_GU, SRD_WD, SRD_WS, SRD_X, SRD_OUT, SRD_DBG = 32, 36, 40, 44, 48, 52, 56, 60, 64, 68
sSEL0, sSEL1 = 72, 73
sSCALE, sLOG2E = 74, 75
sH = 76
sCB = 77
sG = 78
sA, sB, sC, sD = 80, 81, 82, 83
sE, sF = 84, 85
sEX = 86
sDI = 94
sDB = 95
sCT = 96
sN0, sN1 = 98, 99

vLANE, vN, vJ = 0, 2, 3
vKOFF, vVOFF = 4, 5
vT0, vT1, vT2, vT3, vT4, vT5 = 6, 7, 8, 9, 10, 11
vZERO = 12
vM, vL = 14, 15
QF = 16
SA = 32
VA = 64
KR = 128
OA = 192
PT = 224
PF = 240

SPIN_MAX = 200000


def srd(g, d, ptr, size):
    g.I('s_mov_b32 s%d, s%d' % (d, ptr))
    g.I('s_and_b32 s%d, s%d, 0xffff' % (d + 1, ptr + 1))
    g.I('s_mov_b32 s%d, 0x%x' % (d + 2, size))
    g.I('s_mov_b32 s%d, 0x00020000' % (d + 3))


def vr(a, n=4):
    return 'v[%d:%d]' % (a, a + n - 1)


def sq(d):
    return 's[%d:%d]' % (d, d + 3)


def row_allreduce(g, op, v, tmp=None):
    for r in (1, 2, 4, 8):
        g.I('%s_dpp v%d, v%d, v%d row_ror:%d row_mask:0xf bank_mask:0xf' % (op, v, v, v, r))


def row_allreduce_multi(g, op, vs):
    for r in (1, 2, 4, 8):
        for v in vs:
            g.I('%s_dpp v%d, v%d, v%d row_ror:%d row_mask:0xf bank_mask:0xf' % (op, v, v, v, r))


def xrow_allreduce(g, op, v, t):
    g.I('v_mov_b32 v%d, v%d' % (t, v))
    g.I('v_permlane16_swap_b32 v%d, v%d' % (v, t))
    g.I('%s v%d, v%d, v%d' % (op, v, v, t))
    g.I('v_mov_b32 v%d, v%d' % (t, v))
    g.I('v_permlane32_swap_b32 v%d, v%d' % (v, t))
    g.I('%s v%d, v%d, v%d' % (op, v, v, t))


def bf_round(g, v, t):
    g.I('v_cvt_pk_bf16_f32 v%d, v%d, v%d' % (t, v, v))
    g.I('v_lshlrev_b32 v%d, 16, v%d' % (v, t))


def bf_round2(g, a, b, t):
    g.I('v_cvt_pk_bf16_f32 v%d, v%d, v%d' % (t, a, b))
    g.I('v_lshlrev_b32 v%d, 16, v%d' % (a, t))
    g.I('v_and_b32 v%d, 0xffff0000, v%d' % (b, t))


def tile32(g, R, frag, acc, first, frag_is_A=False, PT=PT):
    def perms(dd):
        t = PT + (dd & 3) * 4
        for q in range(4):
            g.I('v_perm_b32 v%d, v%d, v%d, s%d' % (t + q, R + (2 * q + 1) * 4 + (dd >> 1), R + (2 * q) * 4 + (dd >> 1),
                                                  sSEL1 if dd & 1 else sSEL0))
    perms(0)
    for dd in range(8):
        if dd < 7:
            perms(dd + 1)
        t = PT + (dd & 3) * 4
        c = '0' if first else vr(acc + 4 * dd)
        if frag_is_A:
            g.I('v_mfma_f32_16x16x32_bf16 %s, %s, %s, %s' % (vr(acc + 4 * dd), vr(frag), vr(t), c))
        else:
            g.I('v_mfma_f32_16x16x32_bf16 %s, %s, %s, %s' % (vr(acc + 4 * dd), vr(t), vr(frag), c))


def tile16(g, R, frag, acc):
    def perms(dd):
        t = PT + (dd & 3) * 4
        for q in range(2):
            g.I('v_perm_b32 v%d, v%d, v%d, s%d' % (t + q, R + (2 * q + 1) * 4 + (dd >> 1), R + (2 * q) * 4 + (dd >> 1),
                                                  sSEL1 if dd & 1 else sSEL0))
    perms(0)
    perms(1)
    for dd in range(8):
        if dd < 6:
            perms(dd + 2)
        t = PT + (dd & 3) * 4
        g.I('v_mfma_f32_16x16x16_bf16 %s, %s, %s, 0' % (vr(acc + 4 * dd), vr(frag, 2), vr(t, 2)))


def tile16g(g, R, frag, rot, out):
    def perms(dd):
        t = PT + (dd & 3) * 4
        for q in range(2):
            g.I('v_perm_b32 v%d, v%d, v%d, s%d' % (t + q, R + (2 * q + 1) * 4 + (dd >> 1), R + (2 * q) * 4 + (dd >> 1),
                                                  sSEL1 if dd & 1 else sSEL0))
    perms(0)
    perms(1)
    for dd in range(8):
        if dd < 6:
            perms(dd + 2)
        if dd >= 4:
            g.I('v_mov_b32 v%d, v%d' % (out + dd - 4, rot + 4 * (dd & 3)))
        t = PT + (dd & 3) * 4
        g.I('v_mfma_f32_16x16x16_bf16 %s, %s, %s, 0' % (vr(rot + 4 * (dd & 3)), vr(frag, 2), vr(t, 2)))
    for dd in range(4, 8):
        g.I('v_mov_b32 v%d, v%d' % (out + dd, rot + 4 * (dd & 3)))


vST = 13
WS_ST = 0x480000
STAMP_NAMES = []


DBG_NAMES = ['entry', 'w0_issued', 'w0_qproj', 'w0_atomic', 'w0_polled', 'main_start', 'q_ready', 'sm_done', 'pv_done', 'b3', 'pre_b5', 'ml_ok', 'b4', 'end']


def stamp(g, name):
    if P.get('DBGST'):
        if name in DBG_NAMES:
            g.I('s_memrealtime s[88:89]')
            g.I('s_waitcnt lgkmcnt(0)')
            g.I('v_writelane_b32 v%d, s88, %d' % (vST, 1 + DBG_NAMES.index(name)))
        return
    if not P.get('STAMPS'):
        return
    if name not in STAMP_NAMES:
        STAMP_NAMES.append(name)
    k = STAMP_NAMES.index(name)
    g.I('s_memrealtime s[88:89]')
    g.I('s_waitcnt lgkmcnt(0)')
    g.I('v_writelane_b32 v%d, s88, %d' % (vST, k))


def stamp_store(g, final=False):
    if P.get('DBGST'):
        if final:
            lb = g.newlabel('L_dbg')
            g.I('s_mov_b64 exec, 1')
            g.I('v_mov_b32 v1, s88')
            g.I('buffer_atomic_umax v1, v%d, %s, 0 offen offset:60' % (vZERO, sq(SRD_DBG)))
            g.I('s_cmp_lg_u32 s2, %d' % P.get('DBGWG', 0))
            g.I('s_cbranch_scc1 %s' % lb)
            g.I('s_mov_b64 exec, 0x7ffe')
            g.I('v_lshlrev_b32 v1, 2, v0')
            g.I('s_nop 4')
            g.I('buffer_store_dword v%d, v1, %s, 0 offen' % (vST, sq(SRD_DBG)))
            g.label(lb)
        return
    if not P.get('STAMPS'):
        return
    g.I('s_mov_b64 exec, -1')
    g.I('s_lshl_b32 s88, s2, 11')
    g.I('s_lshl_b32 s89, s%d, 8' % sWAVE)
    g.I('s_add_u32 s88, s88, s89')
    g.I('s_add_u32 s88, s88, 0x%x' % WS_ST)
    g.I('v_lshlrev_b32 v1, 2, v0')
    g.I('s_nop 4')
    g.I('buffer_store_dword v%d, v1, %s, s88 offen' % (vST, sq(SRD_WS)))


def spin_guard(g, done_label):
    g.I('s_add_u32 s%d, s%d, 1' % (sCNT, sCNT))
    g.I('s_cmp_ge_u32 s%d, %d' % (sCNT, SPIN_MAX))
    g.I('s_cbranch_scc1 %s' % done_label)


def poll_valid(g, loads, regs, tmp, sleep=None, plain_first=False):
    lp = g.newlabel('L_poll')
    dn = g.newlabel('L_polld')

    def check():
        g.I('s_waitcnt vmcnt(0)')
        rs = list(regs)
        g.I('v_max_u32 v%d, v%d, v%d' % (tmp, rs[0], rs[1]))
        i = 2
        while i < len(rs):
            if i + 1 < len(rs):
                g.I('v_max3_u32 v%d, v%d, v%d, v%d' % (tmp, tmp, rs[i], rs[i + 1]))
                i += 2
            else:
                g.I('v_max_u32 v%d, v%d, v%d' % (tmp, tmp, rs[i]))
                i += 1
        g.I('v_cmp_eq_u32 vcc, -1, v%d' % tmp)
        g.I('s_cbranch_vccz %s' % dn)
    if plain_first and P['PLAIN']:
        for t in loads:
            g.I(t.replace(' sc1', ''))
        check()
    g.label(lp)
    for t in loads:
        g.I(t)
    check()
    spin_guard(g, dn)
    g.I('s_sleep %d' % (P['SLEEP'] if sleep is None else sleep))
    g.I('s_branch %s' % lp)
    g.label(dn)
    g.vm_reset()


def kload2(g, n, W):
    t, i = n >> 2, n & 3
    X = 2 * t + (i >> 1)
    g.I('s_add_u32 s%d, s%d, 0x%x' % (sT, sKV, X << 20))
    g.vmem('buffer_load_dwordx4 %s, v%d, %s, s%d offen offset:%d%s' % (vr(KR + n * 4), vKOFF, sq(SRD_K), sT, (i & 1) * 128, P['NT_K']),
           'k%d' % t, W)


def flag_poll(g, bases):
    lp = g.newlabel('L_fpoll')
    dn = g.newlabel('L_fpolld')
    g.label(lp)
    for i, sb in enumerate(bases):
        g.I('buffer_load_dwordx2 %s, v%d, %s, s%d offen sc1' % (vr(16 + 2 * i, 2), vT3, sq(SRD_WS), sb))
    g.I('s_waitcnt vmcnt(0)')
    for i in range(len(bases)):
        g.I('v_xor_b32 v%d, s%d, v%d' % (16 + 2 * i, sN0, 16 + 2 * i))
        g.I('v_xor_b32 v%d, s%d, v%d' % (17 + 2 * i, sN1, 17 + 2 * i))
    for i in range(1, 2 * len(bases)):
        g.I('v_or_b32 v16, v16, v%d' % (16 + i))
    g.I('v_cmp_ne_u32 vcc, 0, v16')
    g.I('s_cbranch_vccz %s' % dn)
    spin_guard(g, dn)
    g.I('s_sleep %d' % P['QSLEEP'])
    g.I('s_branch %s' % lp)
    g.label(dn)


def prologue_wave0(g):
    if P['NOCLR']:
        orig = g.vmem
        def vm2(text, tag=None, window=None):
            if tag == 'clr':
                g.vm.append(tag) if False else None
                return
            orig(text, tag, window)
        g.vmem = vm2
        ow = g.vm_wait
        def w2(tag):
            if tag == 'clr':
                return
            ow(tag)
        g.vm_wait = w2
    ntw = P['NT_W']
    g.I('v_lshlrev_b32 v%d, 5, v%d' % (vT0, vLANE))
    g.vmem('buffer_load_dwordx4 %s, v%d, %s, 0 offen' % (vr(16), vT0, sq(SRD_X)), 'x')
    g.vmem('buffer_load_dwordx4 %s, v%d, %s, 0 offen offset:16' % (vr(20), vT0, sq(SRD_X)), 'x')
    if P['NONCE']:
        lb = g.newlabel('L_nonce')
        g.I('s_cmp_lg_u32 s2, 0')
        g.I('s_cbranch_scc1 %s' % lb)
        g.I('s_memrealtime s[%d:%d]' % (sN0, sN1))
        g.I('s_waitcnt lgkmcnt(0)')
        g.I('s_or_b32 s%d, s%d, 1' % (sN0, sN0))
        g.I('v_mov_b32 v28, s%d' % sN0)
        g.I('v_mov_b32 v29, s%d' % sN1)
        g.I('s_mov_b64 exec, 1')
        g.I('buffer_store_dwordx2 v[28:29], v%d, %s, 0 offen offset:8 sc1' % (vZERO, sq(SRD_DBG)))
        g.I('s_mov_b64 exec, -1')
        g.I('s_waitcnt vmcnt(0)')
        g.label(lb)
        g.vm_done = 0
    g.I('v_lshlrev_b32 v%d, 16, v%d' % (vT1, vJ))
    g.I('v_lshl_add_u32 v%d, v%d, 4, v%d' % (vT1, vN, vT1))
    g.I('s_lshl_b32 s%d, s%d, 20' % (sA, sCB))
    g.I('s_lshl_b32 s%d, s%d, 8' % (sB, sH))
    g.I('s_add_u32 s%d, s%d, s%d' % (sA, sA, sB))
    for T in range(4):
        for e in range(8):
            g.I('s_add_u32 s%d, s%d, 0x%x' % (sT, sA, (32 * T + e) * 8192))
            g.vmem('buffer_load_dwordx4 %s, v%d, %s, s%d offen%s' % (vr(KR + (T * 8 + e) * 4), vT1, sq(SRD_WQ), sT, ntw),
                   'wq%d' % T, P['WP'])
    for i in range(4):
        g.I('v_mov_b32 v%d, -1' % (24 + i))
    g.I('s_lshl_b32 s%d, s2, 12' % sA)
    g.I('s_add_u32 s%d, s%d, 0x%x' % (sA, sA, WS_AP))
    for i in range(4):
        g.vmem('buffer_store_dwordx4 %s, v%d, %s, s%d offen offset:%d sc1' % (vr(24), vVOFF, sq(SRD_WS), sA, i * 1024), 'clr')
    g.I('s_mul_i32 s%d, s%d, 28672' % (sA, sH))
    g.I('s_mul_i32 s%d, s%d, 3584' % (sB, sCB))
    g.I('s_add_u32 s%d, s%d, s%d' % (sA, sA, sB))
    g.I('s_add_u32 s%d, s%d, 0x%x' % (sA, sA, WS_GP))
    for i in range(3):
        g.vmem('buffer_store_dwordx4 %s, v%d, %s, s%d offen offset:%d sc1' % (vr(24), vVOFF, sq(SRD_WS), sA, i * 1024), 'clr')
    g.I('s_mov_b32 exec_lo, -1')
    g.I('s_mov_b32 exec_hi, 0')
    g.vmem('buffer_store_dwordx4 %s, v%d, %s, s%d offen offset:%d sc1' % (vr(24), vVOFF, sq(SRD_WS), sA, 3072), 'clr')
    g.I('s_mov_b64 exec, 0xf')
    g.I('s_lshl_b32 s%d, s2, 6' % sA)
    g.I('s_add_u32 s%d, s%d, 0x%x' % (sA, sA, WS_ML))
    g.vmem('buffer_store_dwordx4 %s, v%d, %s, s%d offen sc1' % (vr(24), vVOFF, sq(SRD_WS), sA), 'clr')
    g.I('s_mov_b64 exec, -1')
    g.I('s_lshl_b32 s%d, s%d, 15' % (sA, sCB))
    g.I('s_lshl_b32 s%d, s%d, 10' % (sB, sH))
    g.I('s_add_u32 s%d, s%d, s%d' % (sA, sA, sB))
    g.I('s_add_u32 s%d, s%d, 0x%x' % (sA, sA, WS_FP))
    g.vmem('buffer_store_dwordx4 %s, v%d, %s, s%d offen sc1' % (vr(24), vVOFF, sq(SRD_WS), sA), 'clr')
    g.I('s_lshl_b32 s%d, s%d, 7' % (sF, sH))
    g.I('s_add_u32 s%d, s%d, 0x%x' % (sF, sF, WS_MB))
    g.I('s_cmp_eq_u32 s%d, 0' % sCB)
    g.I('s_cselect_b32 s%d, s%d, 0x7f000000' % (sA, sF))
    g.I('s_mov_b64 exec, 1')
    if not P['NONCE']:
        g.vmem('buffer_store_dword v%d, v%d, %s, s%d offen sc1' % (vZERO, vZERO, sq(SRD_WS), sA), 'clr')
    g.I('s_mov_b64 exec, -1')
    if P['DYN']:
        g.I('s_lshl_b32 s%d, s%d, 8' % (sA, sG))
        g.I('s_add_u32 s%d, s%d, 0x%x' % (sA, sA, WS_CT))
        g.I('s_lshl_b32 s%d, s2, 8' % sB)
        g.I('s_add_u32 s%d, s%d, 0x%x' % (sB, sB, WS_CT + 4096))
        g.I('s_and_b32 s%d, s2, 63' % sC)
        g.I('s_cmp_eq_u32 s%d, 0' % sC)
        g.I('s_cselect_b32 s%d, s%d, s%d' % (sA, sA, sB))
        g.I('v_lshlrev_b32 v%d, 7, v%d' % (vT2, vLANE))
        g.I('s_mov_b64 exec, 3')
        g.vmem('buffer_store_dword v%d, v%d, %s, s%d offen sc1' % (vZERO, vT2, sq(SRD_WS), sA), 'clr')
        g.I('s_mov_b64 exec, -1')
    g.I('ds_write_b32 v%d, v%d offset:%d' % (vZERO, vZERO, L_FLAG))
    g.I('s_waitcnt lgkmcnt(0)')
    g.I('s_barrier')
    stamp(g, 'w0_issued')
    g.vm_wait('x')
    X = SA
    for d in range(8):
        g.I('v_lshlrev_b32 v%d, 16, v%d' % (X + 2 * d, 16 + d))
        g.I('v_and_b32 v%d, 0xffff0000, v%d' % (X + 2 * d + 1, 16 + d))
    S = 48
    g.I('v_add_f32 v%d, v%d, v%d' % (S, X, X + 1))
    for i in range(2, 16):
        g.I('v_add_f32 v%d, v%d, v%d' % (S, S, X + i))

    def wave_sum(v):
        row_allreduce(g, 'v_add_f32', v)
        xrow_allreduce(g, 'v_add_f32', v, 49)
    wave_sum(S)
    MEAN = 50
    g.I('v_mul_f32 v%d, %s, v%d' % (MEAN, f32(1.0 / 1024), S))
    D = 51
    g.I('v_mov_b32 v%d, 0' % S)
    for i in range(16):
        g.I('v_sub_f32 v%d, v%d, v%d' % (D, X + i, MEAN))
        g.I('v_fmac_f32 v%d, v%d, v%d' % (S, D, D))
    wave_sum(S)
    VAR = 52
    g.I('v_mul_f32 v%d, %s, v%d' % (VAR, f32(1.0 / 1024), S))
    bf_round(g, MEAN, 53)
    bf_round(g, VAR, 53)
    g.I('v_add_f32 v%d, %s, v%d' % (VAR, f32(1e-5), VAR))
    bf_round(g, VAR, 53)
    SD = 54
    g.I('v_sqrt_f32 v%d, v%d' % (SD, VAR))
    g.I('v_rcp_f32 v%d, v%d' % (55, SD))
    g.I('v_fma_f32 v%d, -v%d, v%d, v%d' % (56, SD, SD, VAR))
    g.I('v_mul_f32 v%d, 0.5, v%d' % (55, 55))
    g.I('v_fmac_f32 v%d, v%d, v%d' % (SD, 56, 55))
    bf_round(g, SD, 53)
    RC = 55
    g.I('v_rcp_f32 v%d, v%d' % (RC, SD))
    for d in range(8):
        a, b = X + 2 * d, X + 2 * d + 1
        g.I('v_sub_f32 v%d, v%d, v%d' % (a, a, MEAN))
        g.I('v_sub_f32 v%d, v%d, v%d' % (b, b, MEAN))
        bf_round2(g, a, b, 53)
        for x in (a, b):
            g.I('v_mul_f32 v%d, v%d, v%d' % (56, x, RC))
            g.I('v_fma_f32 v%d, -v%d, v%d, v%d' % (57, 56, SD, x))
            g.I('v_fma_f32 v%d, v%d, v%d, v%d' % (x, 57, RC, 56))
        g.I('v_cvt_pk_bf16_f32 v%d, v%d, v%d' % (16 + d, a, b))
    g.I('ds_write_b128 v%d, %s offset:%d' % (vT0, vr(16), L_XN))
    g.I('ds_write_b128 v%d, %s offset:%d' % (vT0, vr(20), L_XN + 16))
    g.I('v_lshlrev_b32 v%d, 4, v%d' % (vT2, vJ))
    g.I('s_lshl_b32 s%d, s%d, 8' % (sA, sCB))
    g.I('v_add_u32 v%d, s%d, v%d' % (vT2, sA, vT2))
    g.I('s_waitcnt lgkmcnt(0)')
    for T in range(4):
        g.I('ds_read_b128 %s, v%d offset:%d' % (vr(16 + 4 * T), vT2, L_XN + 64 * T))
    g.vm_wait('clr')
    g.I('v_mov_b32 v%d, 1' % vT3)
    g.I('ds_write_b32 v%d, v%d offset:%d' % (vZERO, vT3, L_FLAG))
    g.I('s_waitcnt lgkmcnt(0)')
    ACC = SA
    for T in range(4):
        g.vm_wait('wq%d' % T)
        tile32(g, KR + T * 32, 16 + 4 * T, ACC, T == 0, frag_is_A=True, PT=VA)
    for dd in range(8):
        g.I('v_mov_b32 v%d, v%d' % (16 + dd, ACC + 4 * dd))
    stamp(g, 'w0_qproj')
    g.I('v_lshlrev_b32 v%d, 5, v%d' % (vT2, vN))
    g.I('s_lshl_b32 s%d, s%d, 15' % (sA, sG))
    g.I('s_lshl_b32 s%d, s%d, 12' % (sB, sCB))
    g.I('s_add_u32 s%d, s%d, s%d' % (sA, sA, sB))
    g.I('s_and_b32 s%d, s%d, 7' % (sB, sH))
    g.I('s_lshl_b32 s%d, s%d, 9' % (sB, sB))
    g.I('s_add_u32 s%d, s%d, s%d' % (sB, sA, sB))
    g.I('s_mov_b64 exec, 0xffff')
    g.vmem('buffer_store_dwordx4 %s, v%d, %s, s%d offen sc1' % (vr(16), vT2, sq(SRD_WS), sB), 'qp')
    g.vmem('buffer_store_dwordx4 %s, v%d, %s, s%d offen offset:16 sc1' % (vr(20), vT2, sq(SRD_WS), sB), 'qp')
    g.I('s_mov_b64 exec, -1')
    NK = 8 * (3 if P['DYN'] else 4)
    W0 = P['W0']
    if P['NONCE']:
        g.vmem('buffer_load_dwordx2 v[28:29], v%d, %s, 0 offen offset:8 sc1' % (vZERO, sq(SRD_DBG)), 'nonce')
        g.vm_wait_all()
        sv = (list(g.vm), g.vm_done)
        ok = g.newlabel('L_nok')
        lp = g.newlabel('L_npoll')
        g.I('v_readfirstlane_b32 s%d, v28' % sN0)
        g.I('v_readfirstlane_b32 s%d, v29' % sN1)
        g.I('s_nop 3')
        g.I('s_cmp_lg_u32 s%d, 0' % sN0)
        g.I('s_cbranch_scc1 %s' % ok)
        g.label(lp)
        g.I('buffer_load_dwordx2 v[28:29], v%d, %s, 0 offen offset:8 sc1' % (vZERO, sq(SRD_DBG)))
        g.I('s_waitcnt vmcnt(0)')
        g.I('v_readfirstlane_b32 s%d, v28' % sN0)
        g.I('v_readfirstlane_b32 s%d, v29' % sN1)
        g.I('s_nop 3')
        g.I('s_cmp_lg_u32 s%d, 0' % sN0)
        g.I('s_cbranch_scc1 %s' % ok)
        spin_guard(g, ok)
        g.I('s_sleep 8')
        g.I('s_branch %s' % lp)
        g.label(ok)
        g.vm, g.vm_done = sv
        g.I('s_lshl_b32 s%d, s%d, 12' % (sF, sG))
        g.I('s_add_u32 s%d, s%d, 0x%x' % (sF, sF, WS_FL))
        g.I('s_and_b32 s%d, s2, 63' % sB)
        g.I('s_lshl_b32 s%d, s%d, 3' % (sB, sB))
        g.I('s_add_u32 s%d, s%d, s%d' % (sB, sB, sF))
        g.I('s_mov_b64 exec, 1')
        g.vmem('buffer_store_dwordx2 v[28:29], v%d, %s, s%d offen sc1' % (vZERO, sq(SRD_WS), sB), 'fl')
        g.I('s_mov_b64 exec, -1')
        stamp(g, 'w0_atomic')
        for n in range(0, P['KP']):
            kload2(g, n, W0)
        g.I('v_lshlrev_b32 v%d, 3, v%d' % (vT3, vLANE))
        flag_poll(g, [sF])
        g.vm_done = len(g.vm)
    else:
        for n in range(0, 8):
            kload2(g, n, W0)
        g.vm_wait('qp')
        g.I('s_mov_b64 exec, 1')
        g.I('v_mov_b32 v%d, 1' % vT3)
        if P['NOSYNC']:
            g.vmem('buffer_load_dword v%d, v%d, %s, s%d offen sc1' % (vT3, vZERO, sq(SRD_WS), sF), 'at')
        else:
            g.vmem('buffer_atomic_add v%d, v%d, %s, 0 offen sc0' % (vT3, vZERO, sq(SRD_DBG)), 'at')
        g.I('s_mov_b64 exec, -1')
        for n in range(8, 8 + P['KA']):
            kload2(g, n, W0)
        g.vm_wait('at')
        g.I('v_readfirstlane_b32 s%d, v%d' % (sB, vT3))
        stamp(g, 'w0_atomic')
        nl = g.newlabel('L_notlast')
        g.I('s_and_b32 s%d, s%d, 255' % (sB, sB))
        g.I('s_cmp_lg_u32 s%d, 255' % sB)
        g.I('s_mov_b32 s%d, 0x%x' % (sC, WS_MB))
        g.I('s_cselect_b32 s%d, 0x7f000000, s%d' % (sB, sC))
        g.I('v_lshlrev_b32 v%d, 7, v%d' % (vT3, vLANE))
        g.I('v_mov_b32 v%d, 1' % vT4)
        g.I('s_mov_b32 exec_hi, 0')
        g.vmem('buffer_store_dword v%d, v%d, %s, s%d offen sc1' % (vT4, vT3, sq(SRD_WS), sB), 'nt')
        g.I('s_mov_b64 exec, -1')
        for n in range(8 + P['KA'], NK):
            kload2(g, n, W0)
        sv = (list(g.vm), g.vm_done)
        lp = g.newlabel('L_qpoll')
        dn = g.newlabel('L_qpolld')
        g.label(lp)
        g.I('buffer_load_dword v16, v%d, %s, s%d offen sc1' % (vZERO, sq(SRD_WS), sF))
        g.I('s_waitcnt vmcnt(0)')
        g.I('v_readfirstlane_b32 s%d, v16' % sB)
        g.I('s_nop 3')
        g.I('s_cmp_eq_u32 s%d, 1' % sB)
        g.I('s_cbranch_scc1 %s' % dn)
        if P['NOSYNC']:
            g.I('s_branch %s' % dn)
        spin_guard(g, dn)
        g.I('s_sleep %d' % P['QSLEEP'])
        g.I('s_branch %s' % lp)
        g.label(dn)
        g.vm_done = len(g.vm)
    stamp(g, 'w0_polled')
    g.I('s_lshl_b32 s%d, s%d, 15' % (sA, sG))
    QA = SA
    for half in range(2):
        for k4 in range(4):
            ks = half * 4 + k4
            g.I('s_add_u32 s%d, s%d, 0x%x' % (sT, sA, WS_QP + ks * 4096))
            for i in range(4):
                g.vmem('buffer_load_dwordx4 %s, v%d, %s, s%d offen offset:%d sc1' % (vr(VA + (k4 * 4 + i) * 4), vVOFF, sq(SRD_WS), sT, i * 1024),
                       'q%d' % ks)
        for k4 in range(4):
            ks = half * 4 + k4
            g.vm_wait('q%d' % ks)
            for r in range(16):
                if ks == 0:
                    g.I('v_mov_b32 v%d, v%d' % (QA + r, VA + r))
                else:
                    g.I('v_add_f32 v%d, v%d, v%d' % (QA + r, QA + r, VA + k4 * 16 + r))
    g.I('v_lshlrev_b32 v%d, 3, v%d' % (vT2, vLANE))
    for i in range(4):
        g.I('v_cvt_pk_bf16_f32 v%d, v%d, v%d' % (16 + 2 * i, QA + 4 * i, QA + 4 * i + 1))
        g.I('v_cvt_pk_bf16_f32 v%d, v%d, v%d' % (17 + 2 * i, QA + 4 * i + 2, QA + 4 * i + 3))
        g.I('ds_write_b64 v%d, %s offset:%d' % (vT2, vr(16 + 2 * i, 2), L_Q + i * 512))
    g.I('v_mov_b32 v%d, 2' % vT4)
    g.I('s_waitcnt lgkmcnt(0)')
    g.I('ds_write_b32 v%d, v%d offset:%d' % (vZERO, vT4, L_FLAG))
    if P['NONCE']:
        for i in range(4):
            g.I('s_mov_b32 s%d, 0x%x' % (90 + i, WS_FL + i * 4096))
        flag_poll(g, [90, 91, 92, 93])
        g.vm_done = len(g.vm)
        g.I('v_mov_b32 v%d, 3' % vT4)
        g.I('ds_write_b32 v%d, v%d offset:%d' % (vZERO, vT4, L_FLAG))
        for n in range(P['KP'], NK):
            kload2(g, n, W0)


def wait_flag(g, val):
    lp = g.newlabel('L_fl')
    dn = g.newlabel('L_fld')
    g.label(lp)
    g.I('ds_read_b32 v%d, v%d offset:%d' % (vT0, vZERO, L_FLAG))
    g.I('s_waitcnt lgkmcnt(0)')
    g.I('v_readfirstlane_b32 s%d, v%d' % (sA, vT0))
    g.I('s_nop 3')
    g.I('s_cmp_ge_u32 s%d, %d' % (sA, val))
    g.I('s_cbranch_scc1 %s' % dn)
    spin_guard(g, dn)
    g.I('s_sleep 1')
    g.I('s_branch %s' % lp)
    g.label(dn)


def main_path(g, w0):
    W = P['W0'] if w0 else P['W']
    ntk, ntv, ntw = P['NT_K'], P['NT_V'], P['NT_W']
    g.comment('---------------- main path (wave0=%s)' % w0)
    NS = 3 if P['DYN'] else 4
    stamp(g, 'main_start')

    def kload(t, i):
        if P['KL'] == 2:
            X = 2 * t + (i >> 1)
            g.I('s_add_u32 s%d, s%d, 0x%x' % (sT, sKV, X << 20))
            g.vmem('buffer_load_dwordx4 %s, v%d, %s, s%d offen offset:%d%s' % (vr(KR + (t * 4 + i) * 4), vKOFF, sq(SRD_K), sT, (i & 1) * 128, ntk),
                   'k%d' % t, W)
            return
        if i == 0:
            koff = {0: t * 4096, 1: ((t >> 1) << 22) + (t & 1) * 4096, 2: t << 21}[P['ILV']]
            g.I('s_add_u32 s%d, s%d, 0x%x' % (sT, sKV, koff))
        g.vmem('buffer_load_dwordx4 %s, v%d, %s, s%d offen offset:%d%s' % (vr(KR + (t * 4 + i) * 4), vKOFF, sq(SRD_K), sT, i * 64, ntk),
               'k%d' % t, W)

    def vbase(T):
        return VA + 32 * T if T < 2 else KR + 32 * (T - 2)

    def vload(T, e):
        if P['ILV'] == 2:
            g.I('s_add_u32 s%d, s%d, 0x%x' % (sT2, sKV, (T * 8 + e) << 19))
            g.vmem('buffer_load_dwordx4 %s, v%d, %s, s%d offen%s' % (vr(vbase(T) + e * 4), vVOFF, sq(SRD_V), sT2, ntv),
                   'v%d' % T, P['WV'] if (P['WV'] and not w0 and T >= P['WVT']) else W)
            return
        if e % 4 == 0:
            g.I('s_add_u32 s%d, s%d, 0x%x' % (sT2, sKV, ((T << 22) if P['ILV'] else T * 8192) + (e // 4) * 4096))
        g.vmem('buffer_load_dwordx4 %s, v%d, %s, s%d offen offset:%d%s' % (vr(vbase(T) + e * 4), vVOFF, sq(SRD_V), sT2, (e % 4) * 1024, ntv),
               'v%d' % T, W)

    if not w0:
        GR = VA
        vGO = vT2
        g.I('s_mov_b32 s%d, 57344' % sA)
        g.I('v_mul_lo_u32 v%d, v%d, s%d' % (vGO, vJ, sA))
        g.I('v_lshl_add_u32 v%d, v%d, 4, v%d' % (vGO, vN, vGO))
        g.I('s_mul_i32 s%d, s%d, %d' % (sA, sH, 32 * 7168))
        g.I('s_and_b32 s%d, s%d, 3' % (sB, sCB))
        g.I('s_mul_i32 s%d, s%d, 1792' % (sB, sB))
        g.I('s_add_u32 s%d, s%d, s%d' % (sA, sA, sB))
        g.I('s_lshl_b32 s%d, s%d, 8' % (sB, sWAVE))
        g.I('s_add_u32 s%d, s%d, s%d' % (sA, sA, sB))
        g.I('s_sub_u32 s%d, s%d, 256' % (sA, sA))
        for e in range(8):
            g.I('s_add_u32 s%d, s%d, %d' % (sT, sA, e * 7168))
            g.vmem('buffer_load_dwordx4 %s, v%d, %s, s%d offen%s' % (vr(GR + 4 * e), vGO, sq(SRD_GU), sT, ntw), 'g', P['WG0'])
            if e == min(P['WG0'], 8) - 1:
                g.I('s_barrier')
    n = 0
    for t in range(0 if w0 else 2 * NS):
        for i in range(4):
            kload(t, i)
            n += 1
            if not w0 and n == P['KG']:
                wait_flag(g, 1)
                stamp(g, 'xn_ready')
                g.I('v_lshlrev_b32 v%d, 4, v%d' % (vT0, vJ))
                g.I('s_lshl_b32 s%d, s%d, 6' % (sA, sH))
                g.I('v_add_u32 v%d, s%d, v%d' % (vT0, sA, vT0))
                g.I('ds_read_b128 %s, v%d offset:%d' % (vr(QF), vT0, L_XN))
                g.I('s_waitcnt lgkmcnt(0)')
                g.vm_wait('g')
                tile32(g, GR, QF, SA, True, frag_is_A=True, PT=VA + 32)
                for dd in range(8):
                    g.I('v_mov_b32 v%d, v%d' % (QF + 8 + dd, SA + 4 * dd))
                g.I('s_mul_i32 s%d, s%d, 28672' % (sA, sH))
                g.I('s_mul_i32 s%d, s%d, 3584' % (sB, sCB))
                g.I('s_add_u32 s%d, s%d, s%d' % (sA, sA, sB))
                g.I('s_lshl_b32 s%d, s%d, 9' % (sB, sWAVE))
                g.I('s_add_u32 s%d, s%d, s%d' % (sA, sA, sB))
                g.I('s_add_u32 s%d, s%d, 0x%x' % (sA, sA, WS_GP - 512))
                g.I('v_lshlrev_b32 v%d, 5, v%d' % (vT0, vN))
                g.I('s_mov_b64 exec, 0xffff')
                g.vmem('buffer_store_dwordx4 %s, v%d, %s, s%d offen sc1' % (vr(QF + 8), vT0, sq(SRD_WS), sA), 'gp')
                g.vmem('buffer_store_dwordx4 %s, v%d, %s, s%d offen offset:16 sc1' % (vr(QF + 12), vT0, sq(SRD_WS), sA), 'gp')
                g.I('s_mov_b64 exec, -1')
                stamp(g, 'gu_done')
                if i != 3:
                    koff = {0: t * 4096, 1: ((t >> 1) << 22) + (t & 1) * 4096, 2: t << 21}[P['ILV']]
                    g.I('s_add_u32 s%d, s%d, 0x%x' % (sT, sKV, koff))
    pend = [(T, e) for T in range(NS) for e in range(8)]

    def issue(nn):
        for _ in range(nn):
            if pend:
                T, e = pend.pop(0)
                vload(T, e)

    def issue_through(T):
        while pend and pend[0][0] <= T:
            issue(1)

    issue(P['QPOS0'] if w0 else P['QPOS'])
    stamp(g, 'kv_issued')
    if not w0:
        wait_flag(g, 2)
    if P['KL'] == 2:
        g.I('v_and_b32 v%d, 7, v%d' % (vT0, vN))
        g.I('v_lshlrev_b32 v%d, 8, v%d' % (vT0, vT0))
        g.I('v_lshl_add_u32 v%d, v%d, 4, v%d' % (vT0, vJ, vT0))
        g.I('v_lshrrev_b32 v%d, 3, v%d' % (vT1, vN))
        g.I('v_lshl_add_u32 v%d, v%d, 6, v%d' % (vT0, vT1, vT0))
        for i in range(2):
            g.I('ds_read_b128 %s, v%d offset:%d' % (vr(QF + 4 * i), vT0, L_Q + i * 128))
        g.I('s_waitcnt lgkmcnt(0)')
        stamp(g, 'q_ready')

        def dreg(X):
            return QF + 8 if X == 0 else KR + (X - 1) * 8

        def adds(X):
            d = dreg(X)
            g.I('v_add_f32_dpp v%d, v%d, v%d row_ror:8 row_mask:0xf bank_mask:0xf' % (SA + 2 * X, d + 1, d))
            g.I('v_add_f32_dpp v%d, v%d, v%d row_ror:8 row_mask:0xf bank_mask:0xf' % (SA + 2 * X + 1, d + 3, d + 2))
        for X in range(4 * NS):
            g.vm_wait('k%d' % (X >> 1))
            d = dreg(X)
            g.I('v_mfma_f32_16x16x32_bf16 %s, %s, %s, 0' % (vr(d), vr(KR + X * 8), vr(QF)))
            g.I('v_mfma_f32_16x16x32_bf16 %s, %s, %s, %s' % (vr(d), vr(KR + X * 8 + 4), vr(QF + 4), vr(d)))
            if X >= 3:
                adds(X - 3)
        for X in range(4 * NS - 3, 4 * NS):
            adds(X)
    else:
        g.I('v_and_b32 v%d, 7, v%d' % (vT0, vN))
        g.I('v_lshlrev_b32 v%d, 8, v%d' % (vT0, vT0))
        g.I('v_lshl_add_u32 v%d, v%d, 4, v%d' % (vT0, vJ, vT0))
        for i in range(4):
            g.I('ds_read_b128 %s, v%d offset:%d' % (vr(QF + 4 * i), vT0, L_Q + i * 64))
        g.I('s_waitcnt lgkmcnt(0)')
        stamp(g, 'q_ready')
        for t in range(8):
            g.vm_wait('k%d' % t)
            for i in range(4):
                c = '0' if i == 0 else vr(SA + 4 * t)
                g.I('v_mfma_f32_16x16x32_bf16 %s, %s, %s, %s' % (vr(SA + 4 * t), vr(KR + (t * 4 + i) * 4), vr(QF + 4 * i), c))
    stamp(g, 'qk_done')
    for r in range(0, 8 * NS, 2):
        a, b = SA + r, SA + r + 1
        bf_round2(g, a, b, vT0)
        g.I('v_mul_f32 v%d, s%d, v%d' % (a, sSCALE, a))
        g.I('v_mul_f32 v%d, s%d, v%d' % (b, sSCALE, b))
        bf_round2(g, a, b, vT1)
        if r == 0:
            g.I('v_max_f32 v%d, v%d, v%d' % (vM, a, b))
        else:
            g.I('v_max3_f32 v%d, v%d, v%d, v%d' % (vM, vM, a, b))
        if r % 8 == 6:
            issue(1)
    xrow_allreduce(g, 'v_max_f32', vM, vT0)
    for r in range(8 * NS):
        a = SA + r
        g.I('v_sub_f32 v%d, v%d, v%d' % (a, a, vM))
        g.I('v_mul_f32 v%d, s%d, v%d' % (a, sLOG2E, a))
        g.I('v_exp_f32 v%d, v%d' % (a, a))
        if r % 8 == 7:
            issue(1)
    g.I('v_add_f32 v%d, v%d, v%d' % (vL, SA, SA + 1))
    for r in range(2, 8 * NS):
        g.I('v_add_f32 v%d, v%d, v%d' % (vL, vL, SA + r))
    for r in range(0, 8 * NS, 2):
        g.I('v_cvt_pk_bf16_f32 v%d, v%d, v%d' % (PF + r // 2, SA + r, SA + r + 1))
    xrow_allreduce(g, 'v_add_f32', vL, vT0)
    WOR = SA if P['DYN'] else VA + 32
    WDR, HD = SA, SA + 16
    WDG = QF + 8
    vWOO, vWDO = vT3, vT4
    g.I('v_lshlrev_b32 v%d, 11, v%d' % (vWOO, vJ))
    g.I('v_lshl_add_u32 v%d, v%d, 4, v%d' % (vWOO, vN, vWOO))
    stamp(g, 'sm_done')
    vCL = 1

    def claim(track):
        g.I('s_mov_b64 exec, 1')
        g.I('v_mov_b32 v%d, 1' % vCL)
        t = 'buffer_atomic_add v%d, v%d, %s, s%d offen sc0' % (vCL, vZERO, sq(SRD_WS), sCT)
        if track:
            g.vmem(t, 'cl')
        else:
            g.I(t)
        g.I('s_mov_b64 exec, -1')

    def dyn_base():
        g.I('v_readfirstlane_b32 s%d, v%d' % (sDI, vCL))
        g.I('s_nop 3')
        g.I('s_and_b32 s%d, s%d, 1' % (sDB, sWAVE))
        g.I('s_lshl_b32 s%d, s%d, 8' % (sDB, sDB))
        g.I('s_add_u32 s%d, s%d, s%d' % (sDB, sDB, sDI))
        g.I('s_lshl_b32 s%d, s%d, 10' % (sDB, sDB))
        g.I('s_lshl_b32 s%d, s%d, 24' % (sA, sG))
        g.I('s_add_u32 s%d, s%d, s%d' % (sDB, sDB, sA))
        g.I('s_cmp_lt_u32 s%d, 256' % sDI)
        g.I('s_cselect_b32 s%d, s%d, 0x7f000000' % (sDB, sDB))

    def dyn_loads(track):
        for x in range(4):
            for ii in range(2):
                g.I('s_add_u32 s%d, s%d, 0x%x' % (sT, sDB, (12 + x) << 20))
                t = 'buffer_load_dwordx4 %s, v%d, %s, s%d offen offset:%d%s' % (vr(VA + (x * 2 + ii) * 4), vKOFF, sq(SRD_K), sT, ii * 128, ntk)
                if track:
                    g.vmem(t, 'dk', W)
                else:
                    g.I(t)
        for e in range(8):
            g.I('s_add_u32 s%d, s%d, 0x%x' % (sT2, sDB, (24 + e) << 19))
            t = 'buffer_load_dwordx4 %s, v%d, %s, s%d offen%s' % (vr(VA + 32 + e * 4), vVOFF, sq(SRD_V), sT2, ntv)
            if track:
                g.vmem(t, 'dv', W)
            else:
                g.I(t)

    if P['DYN']:
        g.I('s_lshl_b32 s%d, s%d, 8' % (sCT, sG))
        g.I('s_and_b32 s%d, s%d, 1' % (sA, sWAVE))
        g.I('s_lshl_b32 s%d, s%d, 7' % (sA, sA))
        g.I('s_add_u32 s%d, s%d, s%d' % (sCT, sCT, sA))
        g.I('s_add_u32 s%d, s%d, 0x%x' % (sCT, sCT, WS_CT))
    hloads = []
    if not w0:
        if P['NONCE']:
            wait_flag(g, 3)
        g.I('v_lshlrev_b32 v%d, 13, v%d' % (vWDO, vJ))
        g.I('v_lshl_add_u32 v%d, v%d, 4, v%d' % (vWDO, vN, vWDO))
        g.I('s_mul_i32 s%d, s%d, 112' % (sA, sH))
        g.I('s_lshl_b32 s%d, s%d, 4' % (sB, sWAVE))
        g.I('s_add_u32 s%d, s%d, s%d' % (sA, sA, sB))
        g.I('s_sub_u32 s%d, s%d, 16' % (sE, sA))
        g.I('s_lshl_b32 s%d, s%d, 11' % (sA, sE))
        g.I('s_lshl_b32 s%d, s%d, 8' % (sB, sCB))
        g.I('s_add_u32 s%d, s%d, s%d' % (sA, sA, sB))
        for e in range(4):
            g.I('s_add_u32 s%d, s%d, %d' % (sT, sA, e * 2048))
            g.vmem('buffer_load_dwordx4 %s, v%d, %s, s%d offen%s' % (vr(WDR + 4 * e), vWDO, sq(SRD_WD), sT, ntw), 'wd', W)
        vHO = vT5
        g.I('s_mov_b32 s%d, 28672' % sT)
        g.I('v_mul_lo_u32 v%d, v%d, s%d' % (vHO, vN, sT))
        g.I('v_lshl_add_u32 v%d, v%d, 4, v%d' % (vHO, vJ, vHO))
        g.I('s_lshl_b32 s%d, s%d, 2' % (90, sE))
        g.I('s_add_u32 s%d, s%d, 0x%x' % (90, 90, WS_GP))
        g.I('s_add_u32 s%d, s%d, %d' % (91, 90, 16 * 28672))
        g.I('s_add_u32 s%d, s%d, %d' % (92, 90, 14336))
        g.I('s_add_u32 s%d, s%d, %d' % (93, 90, 14336 + 16 * 28672))
        hloads = ['buffer_load_dwordx4 %s, v%d, %s, s%d offen sc1' % (vr(HD + 4 * i), vHO, sq(SRD_WS), 90 + i) for i in range(4)]
        for t in hloads:
            g.vmem(t, 'h', W)
    def wo_loads():
        WW = P['WT']
        g.I('s_lshl_b32 s%d, s%d, 7' % (sA, sH))
        g.I('s_lshr_b32 s%d, s%d, 1' % (sB, sWAVE))
        g.I('s_lshl_b32 s%d, s%d, 5' % (sB, sB))
        g.I('s_add_u32 s%d, s%d, s%d' % (sA, sA, sB))
        g.I('s_and_b32 s%d, s%d, 1' % (sB, sWAVE))
        g.I('s_lshl_b32 s%d, s%d, 2' % (sB, sB))
        g.I('s_add_u32 s%d, s%d, s%d' % (sA, sA, sB))
        g.I('s_lshl_b32 s%d, s%d, 11' % (sA, sA))
        g.I('s_lshl_b32 s%d, s%d, 8' % (sB, sCB))
        g.I('s_add_u32 s%d, s%d, s%d' % (sA, sA, sB))
        for e in range(4):
            g.I('s_add_u32 s%d, s%d, %d' % (sT, sA, e * 16384))
            g.vmem('buffer_load_dwordx4 %s, v%d, %s, s%d offen%s' % (vr(WOR + 4 * e), vWOO, sq(SRD_WO), sT, ntw), 'wo', WW)

    for T in range(NS):
        if P['DYN'] and T == P['TC']:
            claim(True)
        issue_through(min(T + 1, NS - 1))
        if P['DYN'] and T == 2:
            g.vm_wait('cl')
            dyn_base()
            dyn_loads(True)
        g.vm_wait('v%d' % T)
        if T == P['TH'] and not w0:
            g.vm_wait('h')
            sv = (list(g.vm), g.vm_done)
            ok = g.newlabel('L_hok')
            rs = list(range(HD, HD + 16))
            g.I('v_max_u32 v%d, v%d, v%d' % (vT1, rs[0], rs[1]))
            for i in range(2, 16, 2):
                g.I('v_max3_u32 v%d, v%d, v%d, v%d' % (vT1, vT1, rs[i], rs[i + 1]))
            g.I('v_cmp_eq_u32 vcc, -1, v%d' % vT1)
            g.I('s_cbranch_vccz %s' % ok)
            poll_valid(g, hloads, rs, vT1)
            g.label(ok)
            g.vm, g.vm_done = sv
            GG, UU = HD, HD + 8
            for c in range(4):
                g.I('v_add_f32 v%d, v%d, v%d' % (GG + c, GG + c, GG + 4 + c))
                g.I('v_add_f32 v%d, v%d, v%d' % (UU + c, UU + c, UU + 4 + c))
            row_allreduce_multi(g, 'v_add_f32', [GG + c for c in range(4)] + [UU + c for c in range(4)])
            for c in range(0, 4, 2):
                bf_round2(g, GG + c, GG + c + 1, vT0)
                bf_round2(g, UU + c, UU + c + 1, vT0)
            k0 = 0.7978845608028654
            k1 = 0.044715
            c2 = -2.0 * k0 * 1.4426950408889634
            for c in range(4):
                x = GG + c
                t = GG + 4 + c
                g.I('v_mul_f32 v%d, v%d, v%d' % (t, x, x))
                g.I('v_mul_f32 v%d, v%d, v%d' % (t, t, x))
                g.I('v_mul_f32 v%d, %s, v%d' % (t, f32(k1), t))
                g.I('v_add_f32 v%d, v%d, v%d' % (t, t, x))
                g.I('v_mul_f32 v%d, %s, v%d' % (t, f32(c2), t))
                g.I('v_exp_f32 v%d, v%d' % (t, t))
                g.I('v_add_f32 v%d, 1.0, v%d' % (t, t))
                g.I('v_rcp_f32 v%d, v%d' % (t, t))
                g.I('v_mul_f32 v%d, v%d, v%d' % (x, x, t))
            for c in range(0, 4, 2):
                bf_round2(g, GG + c, GG + c + 1, vT0)
            for c in range(4):
                g.I('v_mul_f32 v%d, v%d, v%d' % (GG + c, GG + c, UU + c))
            HFR = PT + 2
            g.I('v_cvt_pk_bf16_f32 v%d, v%d, v%d' % (HFR, GG, GG + 1))
            g.I('v_cvt_pk_bf16_f32 v%d, v%d, v%d' % (HFR + 1, GG + 2, GG + 3))
            tile16g(g, WDR, HFR, HD, WDG)
            stamp(g, 'wd_done')
        if T == P['TW'] and not P['DYN']:
            wo_loads()
        tile32(g, vbase(T), PF + 4 * T, OA, T == 0, frag_is_A=False)
    if P['DYN']:
        lp = g.newlabel('L_dyn')
        dn = g.newlabel('L_dynd')
        g.I('s_cmp_ge_u32 s%d, 256' % sDI)
        g.I('s_cbranch_scc1 %s' % dn)
        g.label(lp)
        claim(False)
        g.I('s_waitcnt vmcnt(9)')
        DS, DD = SA, SA + 8
        for x in range(4):
            d = DD + 4 * x
            g.I('v_mfma_f32_16x16x32_bf16 %s, %s, %s, 0' % (vr(d), vr(VA + x * 8), vr(QF)))
            g.I('v_mfma_f32_16x16x32_bf16 %s, %s, %s, %s' % (vr(d), vr(VA + x * 8 + 4), vr(QF + 4), vr(d)))
        for x in range(4):
            d = DD + 4 * x
            g.I('v_add_f32_dpp v%d, v%d, v%d row_ror:8 row_mask:0xf bank_mask:0xf' % (DS + 2 * x, d + 1, d))
            g.I('v_add_f32_dpp v%d, v%d, v%d row_ror:8 row_mask:0xf bank_mask:0xf' % (DS + 2 * x + 1, d + 3, d + 2))
        MN, AL, LS = DD, DD + 1, DD + 2
        for r in range(0, 8, 2):
            a_, b_ = DS + r, DS + r + 1
            bf_round2(g, a_, b_, vT0)
            g.I('v_mul_f32 v%d, s%d, v%d' % (a_, sSCALE, a_))
            g.I('v_mul_f32 v%d, s%d, v%d' % (b_, sSCALE, b_))
            bf_round2(g, a_, b_, vT1)
            g.I('v_max3_f32 v%d, v%d, v%d, v%d' % (MN, vM if r == 0 else MN, a_, b_))
        xrow_allreduce(g, 'v_max_f32', MN, vT0)
        g.I('v_sub_f32 v%d, v%d, v%d' % (AL, vM, MN))
        g.I('v_mul_f32 v%d, s%d, v%d' % (AL, sLOG2E, AL))
        g.I('v_exp_f32 v%d, v%d' % (AL, AL))
        g.I('v_mov_b32 v%d, v%d' % (vM, MN))
        for r in range(8):
            a_ = DS + r
            g.I('v_sub_f32 v%d, v%d, v%d' % (a_, a_, MN))
            g.I('v_mul_f32 v%d, s%d, v%d' % (a_, sLOG2E, a_))
            g.I('v_exp_f32 v%d, v%d' % (a_, a_))
        g.I('v_add_f32 v%d, v%d, v%d' % (LS, DS, DS + 1))
        for r in range(2, 8):
            g.I('v_add_f32 v%d, v%d, v%d' % (LS, LS, DS + r))
        for r in range(0, 8, 2):
            g.I('v_cvt_pk_bf16_f32 v%d, v%d, v%d' % (PF + r // 2, DS + r, DS + r + 1))
        xrow_allreduce(g, 'v_add_f32', LS, vT0)
        g.I('v_fma_f32 v%d, v%d, v%d, v%d' % (vL, vL, AL, LS))
        for r in range(32):
            g.I('v_mul_f32 v%d, v%d, v%d' % (OA + r, OA + r, AL))
        g.I('s_waitcnt vmcnt(1)')
        tile32(g, VA + 32, PF, OA, False, frag_is_A=False)
        g.I('s_waitcnt vmcnt(0)')
        dyn_base()
        g.I('s_cmp_ge_u32 s%d, 256' % sDI)
        g.I('s_cbranch_scc1 %s' % dn)
        dyn_loads(False)
        g.I('s_branch %s' % lp)
        g.label(dn)
        g.vm_reset()
        wo_loads()
    stamp(g, 'pv_done')
    g.I('s_mul_i32 s%d, s%d, 4224' % (sA, sWAVE))
    g.I('v_mul_u32_u24 v%d, 528, v%d' % (vT0, vN))
    g.I('v_lshl_add_u32 v%d, v%d, 7, v%d' % (vT0, vJ, vT0))
    g.I('v_add_u32 v%d, s%d, v%d' % (vT0, sA, vT0))
    g.I('s_mov_b32 s%d, 0x00ff00ff' % sEX)
    g.I('s_mov_b32 s%d, 0x00ff00ff' % (sEX + 1))
    g.I('s_mov_b64 exec, s[%d:%d]' % (sEX, sEX + 1))
    for dd in range(8):
        g.I('ds_write_b128 v%d, %s offset:%d' % (vT0, vr(OA + 4 * dd), L_OW + dd * 16))
    g.I('s_mov_b64 exec, 0xff')
    g.I('s_lshl_b32 s%d, s%d, 6' % (sA, sWAVE))
    g.I('v_lshlrev_b32 v%d, 3, v%d' % (vT1, vLANE))
    g.I('v_add_u32 v%d, s%d, v%d' % (vT1, sA, vT1))
    g.I('ds_write_b64 v%d, %s offset:%d' % (vT1, vr(vM, 2), L_ML))
    g.I('s_mov_b64 exec, -1')
    g.I('s_waitcnt lgkmcnt(0)')
    g.I('s_barrier')
    stamp(g, 'b3')
    CO = OA
    CM = OA + 16
    g.I('s_mul_i32 s%d, s%d, 528' % (sA, sWAVE))
    g.I('v_lshlrev_b32 v%d, 3, v%d' % (vT0, vLANE))
    g.I('v_add_u32 v%d, s%d, v%d' % (vT1, sA, vT0))
    g.I('s_lshl_b32 s%d, s%d, 3' % (sA, sWAVE))
    g.I('v_mov_b32 v%d, s%d' % (vT5, sA))
    for w in range(8):
        g.I('ds_read_b64 %s, v%d offset:%d' % (vr(CM + 2 * w, 2), vT5, L_ML + w * 64))
    for w in range(8):
        g.I('ds_read_b64 %s, v%d offset:%d' % (vr(CO + 2 * w, 2), vT1, L_OW + w * 4224))
    g.I('s_waitcnt lgkmcnt(0)')
    g.I('v_max3_f32 v%d, v%d, v%d, v%d' % (vM, CM, CM + 2, CM + 4))
    g.I('v_max3_f32 v%d, v%d, v%d, v%d' % (vM, vM, CM + 6, CM + 8))
    g.I('v_max3_f32 v%d, v%d, v%d, v%d' % (vM, vM, CM + 10, CM + 12))
    g.I('v_max_f32 v%d, v%d, v%d' % (vM, vM, CM + 14))
    for w in range(8):
        m = CM + 2 * w
        g.I('v_sub_f32 v%d, v%d, v%d' % (m, m, vM))
        g.I('v_mul_f32 v%d, s%d, v%d' % (m, sLOG2E, m))
        g.I('v_exp_f32 v%d, v%d' % (m, m))
    R0, R1 = PT, PT + 1
    for w in range(8):
        m = CM + 2 * w
        if w == 0:
            g.I('v_mul_f32 v%d, v%d, v%d' % (R0, m, CO))
            g.I('v_mul_f32 v%d, v%d, v%d' % (R1, m, CO + 1))
            g.I('v_mul_f32 v%d, v%d, v%d' % (vL, m, m + 1))
        else:
            g.I('v_fmac_f32 v%d, v%d, v%d' % (R0, m, CO + 2 * w))
            g.I('v_fmac_f32 v%d, v%d, v%d' % (R1, m, CO + 2 * w + 1))
            g.I('v_fmac_f32 v%d, v%d, v%d' % (vL, m, m + 1))
    g.I('v_lshrrev_b32 v%d, 3, v%d' % (vT0, vLANE))
    g.I('v_lshlrev_b32 v%d, 12, v%d' % (vT0, vT0))
    g.I('v_and_b32 v%d, 7, v%d' % (vT1, vLANE))
    g.I('v_lshl_add_u32 v%d, v%d, 3, v%d' % (vT0, vT1, vT0))
    g.I('s_lshl_b32 s%d, s%d, 18' % (sA, sG))
    g.I('s_lshl_b32 s%d, s%d, 15' % (sB, sWAVE))
    g.I('s_add_u32 s%d, s%d, s%d' % (sA, sA, sB))
    g.I('s_and_b32 s%d, s2, 63' % sB)
    g.I('s_lshl_b32 s%d, s%d, 6' % (sB, sB))
    g.I('s_add_u32 s%d, s%d, s%d' % (sA, sA, sB))
    g.I('s_add_u32 s%d, s%d, 0x%x' % (sA, sA, WS_AP))
    g.vmem('buffer_store_dwordx2 %s, v%d, %s, s%d offen sc1' % (vr(R0, 2), vT0, sq(SRD_WS), sA), 'ap')
    g.I('s_lshl_b32 s%d, s%d, 9' % (sB, sWAVE))
    g.I('s_lshl_b32 s%d, s%d, 12' % (sA, sG))
    g.I('s_add_u32 s%d, s%d, s%d' % (sA, sA, sB))
    g.I('s_and_b32 s%d, s2, 63' % sB)
    g.I('s_lshl_b32 s%d, s%d, 3' % (sB, sB))
    g.I('s_add_u32 s%d, s%d, s%d' % (sA, sA, sB))
    g.I('s_add_u32 s%d, s%d, 0x%x' % (sA, sA, WS_ML))
    g.I('s_mov_b64 exec, 1')
    g.vmem('buffer_store_dwordx2 %s, v%d, %s, s%d offen sc1' % (vr(vM, 2), vZERO, sq(SRD_WS), sA), 'ml')
    g.I('s_mov_b64 exec, -1')
    stamp(g, 'ap_stored')
    WDA = KR
    MLr = KR + 32
    AD = KR + 40
    g.I('s_lshl_b32 s%d, s%d, 9' % (sF, sH))
    g.I('s_add_u32 s%d, s%d, 0x%x' % (sF, sF, WS_ML))
    if w0:
        PR = PT
        g.I('v_lshlrev_b32 v%d, 3, v%d' % (vT3, vLANE))
        if P['THR']:
            lp = g.newlabel('L_tp')
            dn = g.newlabel('L_tpd')
            g.label(lp)
            g.I('buffer_load_dwordx2 %s, v%d, %s, s%d offen sc1' % (vr(PR, 2), vT3, sq(SRD_WS), sF))
            g.I('s_waitcnt vmcnt(0)')
            g.I('v_max_u32 v%d, v%d, v%d' % (vT1, PR, PR + 1))
            g.I('v_cmp_eq_u32 vcc, -1, v%d' % vT1)
            g.I('s_nop 3')
            g.I('s_bcnt1_i32_b64 s%d, vcc' % sA)
            g.I('s_cmp_le_u32 s%d, %d' % (sA, P['THR']))
            g.I('s_cbranch_scc1 %s' % dn)
            spin_guard(g, dn)
            g.I('s_sleep %d' % P['TSLEEP'])
            g.I('s_branch %s' % lp)
            g.label(dn)
            g.vm_reset()
        else:
            poll_valid(g, ['buffer_load_dwordx2 %s, v%d, %s, s%d offen sc1' % (vr(PR, 2), vT3, sq(SRD_WS), sF)],
                       range(PR, PR + 2), vT1, sleep=P['TSLEEP'])
    stamp(g, 'pre_b5')
    g.I('s_barrier')
    loads = []
    g.I('v_lshlrev_b32 v%d, 3, v%d' % (vT0, vN))
    loads += ['buffer_load_dwordx2 %s, v%d, %s, s%d offen offset:%d sc1' % (vr(MLr + 2 * i, 2), vT0, sq(SRD_WS), sF, i * 128)
              for i in range(4)]
    g.I('v_lshlrev_b32 v%d, 6, v%d' % (vT2, vN))
    g.I('v_lshl_add_u32 v%d, v%d, 4, v%d' % (vT2, vJ, vT2))
    g.I('s_lshl_b32 s%d, s%d, 15' % (sA, sH))
    g.I('s_lshl_b32 s%d, s%d, 12' % (sB, sWAVE))
    g.I('s_add_u32 s%d, s%d, s%d' % (sA, sA, sB))
    g.I('s_add_u32 s%d, s%d, 0x%x' % (sA, sA, WS_AP))
    loads += ['buffer_load_dwordx4 %s, v%d, %s, s%d offen offset:%d sc1' % (vr(AD + 4 * i), vT2, sq(SRD_WS), sA, i * 1024)
              for i in range(4)]
    poll_valid(g, loads, range(MLr, MLr + 24), vT1, plain_first=True)
    stamp(g, 'ml_ok')
    g.I('v_max3_f32 v%d, v%d, v%d, v%d' % (vM, MLr, MLr + 2, MLr + 4))
    g.I('v_max_f32 v%d, v%d, v%d' % (vM, vM, MLr + 6))
    row_allreduce(g, 'v_max_f32', vM)
    for i in range(4):
        m = MLr + 2 * i
        g.I('v_sub_f32 v%d, v%d, v%d' % (m, m, vM))
        g.I('v_mul_f32 v%d, s%d, v%d' % (m, sLOG2E, m))
        g.I('v_exp_f32 v%d, v%d' % (m, m))
    OC = QF
    for i in range(4):
        m = MLr + 2 * i
        op = 'v_mul_f32' if i == 0 else 'v_fmac_f32'
        g.I('%s v%d, v%d, v%d' % (op, vL, m, m + 1))
        for c in range(4):
            g.I('%s v%d, v%d, v%d' % (op, OC + c, m, AD + 4 * i + c))
    row_allreduce_multi(g, 'v_add_f32', [vL, OC, OC + 1, OC + 2, OC + 3])
    g.I('v_rcp_f32 v%d, v%d' % (vT0, vL))
    for c in range(4):
        x = OC + c
        g.I('v_mul_f32 v%d, v%d, v%d' % (vT1, x, vT0))
        g.I('v_fma_f32 v%d, -v%d, v%d, v%d' % (vT5, vT1, vL, x))
        g.I('v_fma_f32 v%d, v%d, v%d, v%d' % (x, vT5, vT0, vT1))
    OFR = QF + 4
    g.I('v_cvt_pk_bf16_f32 v%d, v%d, v%d' % (OFR, OC, OC + 1))
    g.I('v_cvt_pk_bf16_f32 v%d, v%d, v%d' % (OFR + 1, OC + 2, OC + 3))
    WOA = OA
    tile16(g, WOR, OFR, WOA)
    stamp(g, 'wo_done')
    F = VA
    for dd in range(8):
        g.I('v_mov_b32 v%d, v%d' % (F + dd, WOA + 4 * dd))
    for dd in range(8):
        if w0:
            g.I('v_mov_b32 v%d, 0' % (F + 8 + dd))
        else:
            g.I('v_mov_b32 v%d, v%d' % (F + 8 + dd, WDG + dd))
    g.I('s_lshl_b32 s%d, s%d, 10' % (sA, sWAVE))
    g.I('v_lshlrev_b32 v%d, 5, v%d' % (vT0, vN))
    g.I('v_add_u32 v%d, s%d, v%d' % (vT0, sA, vT0))
    g.I('s_mov_b64 exec, 0xffff')
    g.I('ds_write_b128 v%d, %s offset:%d' % (vT0, vr(F), L_FR))
    g.I('ds_write_b128 v%d, %s offset:%d' % (vT0, vr(F + 4), L_FR + 16))
    g.I('ds_write_b128 v%d, %s offset:%d' % (vT0, vr(F + 8), L_FR + 512))
    g.I('ds_write_b128 v%d, %s offset:%d' % (vT0, vr(F + 12), L_FR + 528))
    g.I('s_mov_b64 exec, -1')
    g.I('s_waitcnt lgkmcnt(0)')
    g.I('s_barrier')
    stamp(g, 'b4')
    if not w0:
        stamp_store(g)
        g.I('s_endpgm')
        return
    g.I('s_lshl_b32 s%d, s%d, 8' % (sF, sCB))
    g.I('s_lshl_b32 s%d, s%d, 3' % (sB, sH))
    g.I('s_add_u32 s%d, s%d, s%d' % (sF, sF, sB))
    XV = QF + 8
    g.vmem('buffer_load_dwordx2 %s, v%d, %s, s%d offen' % (vr(XV, 2), vZERO, sq(SRD_X), sF), 'xv')
    RD = KR
    for w in range(8):
        g.I('ds_read_b128 %s, v%d offset:%d' % (vr(RD + 4 * w), vVOFF, L_FR + w * 1024))
    g.I('s_waitcnt lgkmcnt(0)')
    for w in range(1, 8):
        for c in range(4):
            g.I('v_add_f32 v%d, v%d, v%d' % (RD + c, RD + c, RD + 4 * w + c))
    g.I('s_lshl_b32 s%d, s%d, 15' % (sA, sCB))
    g.I('s_add_u32 s%d, s%d, 0x%x' % (sA, sA, WS_FP))
    g.I('s_lshl_b32 s%d, s%d, 10' % (sB, sH))
    g.I('s_add_u32 s%d, s%d, s%d' % (sB, sA, sB))
    g.vmem('buffer_store_dwordx4 %s, v%d, %s, s%d offen sc1' % (vr(RD), vVOFF, sq(SRD_WS), sB), 'fp')
    g.I('v_and_b32 v%d, 31, v%d' % (vT0, vLANE))
    g.I('v_lshlrev_b32 v%d, 10, v%d' % (vT0, vT0))
    g.I('v_lshrrev_b32 v%d, 5, v%d' % (vT1, vLANE))
    g.I('v_lshl_add_u32 v%d, v%d, 9, v%d' % (vT0, vT1, vT0))
    g.I('s_lshl_b32 s%d, s%d, 4' % (sB, sH))
    g.I('s_add_u32 s%d, s%d, s%d' % (sA, sA, sB))
    FD = KR + 32
    poll_valid(g, ['buffer_load_dwordx4 %s, v%d, %s, s%d offen sc1' % (vr(FD), vT0, sq(SRD_WS), sA)], range(FD, FD + 4), vT1)
    row_allreduce_multi(g, 'v_add_f32', [FD + c for c in range(4)])
    FE = FD + 4
    for c in range(4):
        g.I('v_mov_b32 v%d, v%d' % (FE + c, FD + c))
    for c in range(4):
        g.I('v_permlane16_swap_b32 v%d, v%d' % (FD + c, FE + c))
    for c in range(4):
        g.I('v_add_f32 v%d, v%d, v%d' % (FD + c, FD + c, FE + c))
    for c in range(4):
        g.I('v_mov_b32 v%d, v%d' % (FE + c, FD + c))
    for c in range(4):
        g.I('v_permlane32_swap_b32 v%d, v%d' % (FD + c, FE + c))
    XF = FD + 8
    for d in range(2):
        g.I('v_lshlrev_b32 v%d, 16, v%d' % (XF + 2 * d, XV + d))
        g.I('v_and_b32 v%d, 0xffff0000, v%d' % (XF + 2 * d + 1, XV + d))
    for c in range(0, 4, 2):
        bf_round2(g, FD + c, FD + c + 1, vT0)
        bf_round2(g, FE + c, FE + c + 1, vT0)
    for c in range(4):
        g.I('v_add_f32 v%d, v%d, v%d' % (FD + c, FD + c, XF + c))
    for c in range(0, 4, 2):
        bf_round2(g, FD + c, FD + c + 1, vT0)
    for c in range(4):
        g.I('v_add_f32 v%d, v%d, v%d' % (FD + c, FD + c, FE + c))
    g.I('v_cvt_pk_bf16_f32 v%d, v%d, v%d' % (XF, FD, FD + 1))
    g.I('v_cvt_pk_bf16_f32 v%d, v%d, v%d' % (XF + 1, FD + 2, FD + 3))
    g.I('s_mov_b64 exec, 1')
    g.I('buffer_store_dwordx2 %s, v%d, %s, s%d offen' % (vr(XF, 2), vZERO, sq(SRD_OUT), sF))
    stamp(g, 'end')
    stamp_store(g, True)
    g.I('s_endpgm')


def build():
    g = Gen()
    hdr = open('cdna_kernels/%s.s.ref' % NAME).read().split('\n')
    out = []
    for ln in hdr:
        if ln.startswith('; @launch'):
            out.append('; @launch grid=(256,1,1) block=(512,1,1) lds=%d' % LDS_BYTES)
        elif ln.startswith(';'):
            out.append(ln)
        else:
            break
    out.append('.amdgcn_target "amdgcn-amd-amdhsa--gfx950"')
    out.append('.text')
    out.append('.globl %s_kernel' % NAME)
    out.append('.p2align 8')
    out.append('.type %s_kernel,@function' % NAME)
    out.append('%s_kernel:' % NAME)
    g.I('s_cmp_ge_u32 s2, 256')
    g.I('s_cbranch_scc1 L_end')
    g.I('s_load_dwordx16 s[8:23], s[0:1], 0')
    g.I('s_load_dwordx8 s[24:31], s[0:1], 64')
    if P['REMAP'] == 2:
        g.I('s_and_b32 s%d, s2, 7' % sT)
        g.I('s_lshl_b32 s%d, s%d, 3' % (sT, sT))
        g.I('s_lshr_b32 s%d, s2, 3' % sT2)
        g.I('s_and_b32 s2, s%d, 7' % sT2)
        g.I('s_add_u32 s2, s2, s%d' % sT)
        g.I('s_lshr_b32 s%d, s%d, 3' % (sT2, sT2))
        g.I('s_lshl_b32 s%d, s%d, 6' % (sT2, sT2))
        g.I('s_add_u32 s2, s2, s%d' % sT2)
    elif P['REMAP']:
        g.I('s_and_b32 s%d, s2, 7' % sT)
        g.I('s_lshl_b32 s%d, s%d, 5' % (sT, sT))
        g.I('s_lshr_b32 s2, s2, 3')
        g.I('s_add_u32 s2, s2, s%d' % sT)
    g.I('v_lshrrev_b32 v1, 6, v0')
    g.I('v_and_b32 v0, 63, v0')
    g.I('v_readfirstlane_b32 s%d, v1' % sWAVE)
    g.I('v_and_b32 v%d, 15, v0' % vN)
    g.I('v_lshrrev_b32 v%d, 4, v0' % vJ)
    if P['KL'] == 2:
        g.I('v_bfe_u32 v%d, v%d, 1, 1' % (vKOFF, vN))
        g.I('v_lshlrev_b32 v%d, 19, v%d' % (vKOFF, vKOFF))
        g.I('v_and_b32 v%d, 1, v%d' % (vT0, vN))
        g.I('v_lshl_add_u32 v%d, v%d, 6, v%d' % (vKOFF, vT0, vKOFF))
    else:
        g.I('v_and_b32 v%d, 3, v%d' % (vKOFF, vN))
        g.I('v_lshlrev_b32 v%d, %d, v%d' % (vKOFF, 19 if P['ILV'] == 2 else 10, vKOFF))
    g.I('v_lshrrev_b32 v%d, 2, v%d' % (vT0, vN))
    g.I('v_lshl_add_u32 v%d, v%d, 8, v%d' % (vKOFF, vT0, vKOFF))
    g.I('v_lshl_add_u32 v%d, v%d, 4, v%d' % (vKOFF, vJ, vKOFF))
    g.I('v_lshlrev_b32 v%d, 4, v0' % vVOFF)
    g.I('v_mov_b32 v%d, 0' % vZERO)
    if P['ILV']:
        sh = 3 if P['ILV'] == 2 else 0
        g.I('s_lshr_b32 s%d, s2, 6' % sKV)
        g.I('s_lshl_b32 s%d, s%d, 24' % (sKV, sKV))
        g.I('s_and_b32 s%d, s2, 63' % sT)
        g.I('s_lshl_b32 s%d, s%d, %d' % (sT, sT, 16 - sh))
        g.I('s_add_u32 s%d, s%d, s%d' % (sKV, sKV, sT))
        g.I('s_lshl_b32 s%d, s%d, %d' % (sT, sWAVE, 13 - sh))
        g.I('s_add_u32 s%d, s%d, s%d' % (sKV, sKV, sT))
    else:
        g.I('s_lshl_b32 s%d, s2, 18' % sKV)
        g.I('s_lshl_b32 s%d, s%d, 15' % (sT, sWAVE))
        g.I('s_add_u32 s%d, s%d, s%d' % (sKV, sKV, sT))
    g.I('s_lshr_b32 s%d, s2, 3' % sH)
    g.I('s_and_b32 s%d, s2, 7' % sCB)
    g.I('s_lshr_b32 s%d, s2, 6' % sG)
    g.I('s_mov_b32 s%d, 0' % sCNT)
    g.I('s_mov_b32 s%d, 0x05040100' % sSEL0)
    g.I('s_mov_b32 s%d, 0x07060302' % sSEL1)
    g.I('s_mov_b32 s%d, %s' % (sSCALE, f32(128 ** -0.5)))
    g.I('s_mov_b32 s%d, %s' % (sLOG2E, f32(1.4426950408889634)))
    g.I('s_waitcnt lgkmcnt(0)')
    srd(g, SRD_K, 10, 1 << 26)
    srd(g, SRD_V, 12, 1 << 26)
    srd(g, SRD_X, 8, 2048)
    srd(g, SRD_WQ, 14, 1 << 23)
    srd(g, SRD_WO, 16, 1 << 23)
    g.I('s_cmp_lt_u32 s%d, 4' % sCB)
    g.I('s_cselect_b32 s%d, s20, s22' % SRD_GU)
    g.I('s_cselect_b32 s%d, s21, s23' % (SRD_GU + 1))
    g.I('s_and_b32 s%d, s%d, 0xffff' % (SRD_GU + 1, SRD_GU + 1))
    g.I('s_mov_b32 s%d, 0x%x' % (SRD_GU + 2, 1024 * 3584 * 2))
    g.I('s_mov_b32 s%d, 0x00020000' % (SRD_GU + 3))
    srd(g, SRD_WD, 24, 3584 * 1024 * 2)
    srd(g, SRD_OUT, 26, 2048)
    srd(g, SRD_DBG, 28, 256)
    srd(g, SRD_WS, 30, WS_SIZE)
    g.I('v_mov_b32 v%d, 0' % vST)
    stamp(g, 'entry')
    g.I('s_cmp_eq_u32 s%d, 0' % sWAVE)
    g.I('s_cbranch_scc1 L_wave0')
    g.fence()
    main_path(g, False)
    g.label('L_wave0')
    g.vm_reset()
    prologue_wave0(g)
    main_path(g, True)
    g.label('L_end')
    g.I('s_endpgm')
    out.append(g.text())
    out.append('.section .rodata,"a"')
    out.append('.p2align 6')
    out.append('.amdhsa_kernel %s_kernel' % NAME)
    out.append('  .amdhsa_next_free_vgpr 256')
    out.append('  .amdhsa_next_free_sgpr 102')
    out.append('  .amdhsa_accum_offset 256')
    out.append('  .amdhsa_group_segment_fixed_size 0')
    out.append('  .amdhsa_kernarg_size 96')
    out.append('  .amdhsa_user_sgpr_count 2')
    out.append('  .amdhsa_user_sgpr_kernarg_segment_ptr 1')
    out.append('  .amdhsa_system_sgpr_workgroup_id_x 1')
    out.append('  .amdhsa_float_denorm_mode_32 3')
    out.append('.end_amdhsa_kernel')
    return '\n'.join(out) + '\n'


if __name__ == '__main__':
    dst = sys.argv[1] if len(sys.argv) > 1 else 'cdna_kernels/%s.s' % NAME
    open(dst, 'w').write(build())
    print('wrote', dst)
    if P.get('STAMPS'):
        open(dst + '.stamps', 'w').write('\n'.join(STAMP_NAMES))
```

```python
import sys
import struct
from dsl import Gen

NAME = 'parallel_sum__gqa_block_cached__geglu_ffn__decode'

P = dict(
    W=4,
    W0=8,
    WP=16,
    NT_K=' nt',
    NT_V=' nt',
    NT_W=' nt',
    SLEEP=1,
    QSLEEP=4,
    TW=3,
    TH=2,
    KA=6,
    WG0=4,
    THR=4,
    KP=16,
    TC=1,
    WT=8,
    KG=16,
    REMAP=2,
    DYN=0,
    NONCE=1,
    NOCLR=0,
    NOSYNC=0,
    PLAIN=0,
    KL=2,
    WV=0,
    WVT=2,
    QPOS=6,
    QPOS0=8,
    TSLEEP=4,
    ILV=2,
    QPOLL=' sc1',
)
for a in sys.argv[2:]:
    k, v = a.split('=')
    P[k] = int(v) if v.lstrip('-').isdigit() else v


def f32(x):
    return '0x%08x' % struct.unpack('<I', struct.pack('<f', x))[0]


L_XN = 0
L_Q = 2048
L_FLAG = 4096
L_OW = 8192
L_ML = L_OW + 8 * 4224
L_FR = L_ML + 512
LDS_BYTES = L_FR + 8192

WS_QP = 0
WS_AP = 0x100000
WS_ML = 0x200000
WS_GP = 0x300000
WS_FP = 0x400000
WS_MB = 0x440000
WS_CT = 0x460000
WS_FL = 0x470000
WS_SIZE = 0x500000

sWAVE = 3
sKV = 4
sT = 5
sT2 = 6
sCNT = 7
SRD_K, SRD_V, SRD_WQ, SRD_WO, SRD_GU, SRD_WD, SRD_WS, SRD_X, SRD_OUT, SRD_DBG = 32, 36, 40, 44, 48, 52, 56, 60, 64, 68
sSEL0, sSEL1 = 72, 73
sSCALE, sLOG2E = 74, 75
sH = 76
sCB = 77
sG = 78
sA, sB, sC, sD = 80, 81, 82, 83
sE, sF = 84, 85
sEX = 86
sDI = 94
sDB = 95
sCT = 96
sN0, sN1 = 98, 99

vLANE, vN, vJ = 0, 2, 3
vKOFF, vVOFF = 4, 5
vT0, vT1, vT2, vT3, vT4, vT5 = 6, 7, 8, 9, 10, 11
vZERO = 12
vM, vL = 14, 15
QF = 16
SA = 32
VA = 64
KR = 128
OA = 192
PT = 224
PF = 240

SPIN_MAX = 200000


def srd(g, d, ptr, size):
    g.I('s_mov_b32 s%d, s%d' % (d, ptr))
    g.I('s_and_b32 s%d, s%d, 0xffff' % (d + 1, ptr + 1))
    g.I('s_mov_b32 s%d, 0x%x' % (d + 2, size))
    g.I('s_mov_b32 s%d, 0x00020000' % (d + 3))


def vr(a, n=4):
    return 'v[%d:%d]' % (a, a + n - 1)


def sq(d):
    return 's[%d:%d]' % (d, d + 3)


def row_allreduce(g, op, v, tmp=None):
    for r in (1, 2, 4, 8):
        g.I('%s_dpp v%d, v%d, v%d row_ror:%d row_mask:0xf bank_mask:0xf' % (op, v, v, v, r))


def row_allreduce_multi(g, op, vs):
    for r in (1, 2, 4, 8):
        for v in vs:
            g.I('%s_dpp v%d, v%d, v%d row_ror:%d row_mask:0xf bank_mask:0xf' % (op, v, v, v, r))


def xrow_allreduce(g, op, v, t):
    g.I('v_mov_b32 v%d, v%d' % (t, v))
    g.I('v_permlane16_swap_b32 v%d, v%d' % (v, t))
    g.I('%s v%d, v%d, v%d' % (op, v, v, t))
    g.I('v_mov_b32 v%d, v%d' % (t, v))
    g.I('v_permlane32_swap_b32 v%d, v%d' % (v, t))
    g.I('%s v%d, v%d, v%d' % (op, v, v, t))


def bf_round(g, v, t):
    g.I('v_cvt_pk_bf16_f32 v%d, v%d, v%d' % (t, v, v))
    g.I('v_lshlrev_b32 v%d, 16, v%d' % (v, t))


def bf_round2(g, a, b, t):
    g.I('v_cvt_pk_bf16_f32 v%d, v%d, v%d' % (t, a, b))
    g.I('v_lshlrev_b32 v%d, 16, v%d' % (a, t))
    g.I('v_and_b32 v%d, 0xffff0000, v%d' % (b, t))


def tile32(g, R, frag, acc, first, frag_is_A=False, PT=PT):
    def perms(dd):
        t = PT + (dd & 3) * 4
        for q in range(4):
            g.I('v_perm_b32 v%d, v%d, v%d, s%d' % (t + q, R + (2 * q + 1) * 4 + (dd >> 1), R + (2 * q) * 4 + (dd >> 1),
                                                  sSEL1 if dd & 1 else sSEL0))
    perms(0)
    for dd in range(8):
        if dd < 7:
            perms(dd + 1)
        t = PT + (dd & 3) * 4
        c = '0' if first else vr(acc + 4 * dd)
        if frag_is_A:
            g.I('v_mfma_f32_16x16x32_bf16 %s, %s, %s, %s' % (vr(acc + 4 * dd), vr(frag), vr(t), c))
        else:
            g.I('v_mfma_f32_16x16x32_bf16 %s, %s, %s, %s' % (vr(acc + 4 * dd), vr(t), vr(frag), c))


def tile16(g, R, frag, acc):
    def perms(dd):
        t = PT + (dd & 3) * 4
        for q in range(2):
            g.I('v_perm_b32 v%d, v%d, v%d, s%d' % (t + q, R + (2 * q + 1) * 4 + (dd >> 1), R + (2 * q) * 4 + (dd >> 1),
                                                  sSEL1 if dd & 1 else sSEL0))
    perms(0)
    perms(1)
    for dd in range(8):
        if dd < 6:
            perms(dd + 2)
        t = PT + (dd & 3) * 4
        g.I('v_mfma_f32_16x16x16_bf16 %s, %s, %s, 0' % (vr(acc + 4 * dd), vr(frag, 2), vr(t, 2)))


def tile16g(g, R, frag, rot, out):
    def perms(dd):
        t = PT + (dd & 3) * 4
        for q in range(2):
            g.I('v_perm_b32 v%d, v%d, v%d, s%d' % (t + q, R + (2 * q + 1) * 4 + (dd >> 1), R + (2 * q) * 4 + (dd >> 1),
                                                  sSEL1 if dd & 1 else sSEL0))
    perms(0)
    perms(1)
    for dd in range(8):
        if dd < 6:
            perms(dd + 2)
        if dd >= 4:
            g.I('v_mov_b32 v%d, v%d' % (out + dd - 4, rot + 4 * (dd & 3)))
        t = PT + (dd & 3) * 4
        g.I('v_mfma_f32_16x16x16_bf16 %s, %s, %s, 0' % (vr(rot + 4 * (dd & 3)), vr(frag, 2), vr(t, 2)))
    for dd in range(4, 8):
        g.I('v_mov_b32 v%d, v%d' % (out + dd, rot + 4 * (dd & 3)))


vST = 13
WS_ST = 0x480000
STAMP_NAMES = []


DBG_NAMES = ['entry', 'w0_issued', 'w0_qproj', 'w0_atomic', 'w0_polled', 'main_start', 'q_ready', 'sm_done', 'pv_done', 'b3', 'pre_b5', 'ml_ok', 'b4', 'end']


def stamp(g, name):
    if P.get('DBGST'):
        if name in DBG_NAMES:
            g.I('s_memrealtime s[88:89]')
            g.I('s_waitcnt lgkmcnt(0)')
            g.I('v_writelane_b32 v%d, s88, %d' % (vST, 1 + DBG_NAMES.index(name)))
        return
    if not P.get('STAMPS'):
        return
    if name not in STAMP_NAMES:
        STAMP_NAMES.append(name)
    k = STAMP_NAMES.index(name)
    g.I('s_memrealtime s[88:89]')
    g.I('s_waitcnt lgkmcnt(0)')
    g.I('v_writelane_b32 v%d, s88, %d' % (vST, k))


def stamp_store(g, final=False):
    if P.get('DBGST'):
        if final:
            lb = g.newlabel('L_dbg')
            g.I('s_mov_b64 exec, 1')
            g.I('v_mov_b32 v1, s88')
            g.I('buffer_atomic_umax v1, v%d, %s, 0 offen offset:60' % (vZERO, sq(SRD_DBG)))
            g.I('s_cmp_lg_u32 s2, %d' % P.get('DBGWG', 0))
            g.I('s_cbranch_scc1 %s' % lb)
            g.I('s_mov_b64 exec, 0x7ffe')
            g.I('v_lshlrev_b32 v1, 2, v0')
            g.I('s_nop 4')
            g.I('buffer_store_dword v%d, v1, %s, 0 offen' % (vST, sq(SRD_DBG)))
            g.label(lb)
        return
    if not P.get('STAMPS'):
        return
    g.I('s_mov_b64 exec, -1')
    g.I('s_lshl_b32 s88, s2, 11')
    g.I('s_lshl_b32 s89, s%d, 8' % sWAVE)
    g.I('s_add_u32 s88, s88, s89')
    g.I('s_add_u32 s88, s88, 0x%x' % WS_ST)
    g.I('v_lshlrev_b32 v1, 2, v0')
    g.I('s_nop 4')
    g.I('buffer_store_dword v%d, v1, %s, s88 offen' % (vST, sq(SRD_WS)))


def spin_guard(g, done_label):
    g.I('s_add_u32 s%d, s%d, 1' % (sCNT, sCNT))
    g.I('s_cmp_ge_u32 s%d, %d' % (sCNT, SPIN_MAX))
    g.I('s_cbranch_scc1 %s' % done_label)


def poll_valid(g, loads, regs, tmp, sleep=None, plain_first=False):
    lp = g.newlabel('L_poll')
    dn = g.newlabel('L_polld')

    def check():
        g.I('s_waitcnt vmcnt(0)')
        rs = list(regs)
        g.I('v_max_u32 v%d, v%d, v%d' % (tmp, rs[0], rs[1]))
        i = 2
        while i < len(rs):
            if i + 1 < len(rs):
                g.I('v_max3_u32 v%d, v%d, v%d, v%d' % (tmp, tmp, rs[i], rs[i + 1]))
                i += 2
            else:
                g.I('v_max_u32 v%d, v%d, v%d' % (tmp, tmp, rs[i]))
                i += 1
        g.I('v_cmp_eq_u32 vcc, -1, v%d' % tmp)
        g.I('s_cbranch_vccz %s' % dn)
    if plain_first and P['PLAIN']:
        for t in loads:
            g.I(t.replace(' sc1', ''))
        check()
    g.label(lp)
    for t in loads:
        g.I(t)
    check()
    spin_guard(g, dn)
    g.I('s_sleep %d' % (P['SLEEP'] if sleep is None else sleep))
    g.I('s_branch %s' % lp)
    g.label(dn)
    g.vm_reset()


def kload2(g, n, W):
    t, i = n >> 2, n & 3
    X = 2 * t + (i >> 1)
    g.I('s_add_u32 s%d, s%d, 0x%x' % (sT, sKV, X << 20))
    g.vmem('buffer_load_dwordx4 %s, v%d, %s, s%d offen offset:%d%s' % (vr(KR + n * 4), vKOFF, sq(SRD_K), sT, (i & 1) * 128, P['NT_K']),
           'k%d' % t, W)


def flag_poll(g, bases):
    lp = g.newlabel('L_fpoll')
    dn = g.newlabel('L_fpolld')
    g.label(lp)
    for i, sb in enumerate(bases):
        g.I('buffer_load_dwordx2 %s, v%d, %s, s%d offen sc1' % (vr(16 + 2 * i, 2), vT3, sq(SRD_WS), sb))
    g.I('s_waitcnt vmcnt(0)')
    for i in range(len(bases)):
        g.I('v_xor_b32 v%d, s%d, v%d' % (16 + 2 * i, sN0, 16 + 2 * i))
        g.I('v_xor_b32 v%d, s%d, v%d' % (17 + 2 * i, sN1, 17 + 2 * i))
    for i in range(1, 2 * len(bases)):
        g.I('v_or_b32 v16, v16, v%d' % (16 + i))
    g.I('v_cmp_ne_u32 vcc, 0, v16')
    g.I('s_cbranch_vccz %s' % dn)
    spin_guard(g, dn)
    g.I('s_sleep %d' % P['QSLEEP'])
    g.I('s_branch %s' % lp)
    g.label(dn)


def prologue_wave0(g):
    if P['NOCLR']:
        orig = g.vmem
        def vm2(text, tag=None, window=None):
            if tag == 'clr':
                g.vm.append(tag) if False else None
                return
            orig(text, tag, window)
        g.vmem = vm2
        ow = g.vm_wait
        def w2(tag):
            if tag == 'clr':
                return
            ow(tag)
        g.vm_wait = w2
    ntw = P['NT_W']
    g.I('v_lshlrev_b32 v%d, 5, v%d' % (vT0, vLANE))
    g.vmem('buffer_load_dwordx4 %s, v%d, %s, 0 offen' % (vr(16), vT0, sq(SRD_X)), 'x')
    g.vmem('buffer_load_dwordx4 %s, v%d, %s, 0 offen offset:16' % (vr(20), vT0, sq(SRD_X)), 'x')
    if P['NONCE']:
        lb = g.newlabel('L_nonce')
        g.I('s_cmp_lg_u32 s2, 0')
        g.I('s_cbranch_scc1 %s' % lb)
        g.I('s_memrealtime s[%d:%d]' % (sN0, sN1))
        g.I('s_waitcnt lgkmcnt(0)')
        g.I('s_or_b32 s%d, s%d, 1' % (sN0, sN0))
        g.I('v_mov_b32 v28, s%d' % sN0)
        g.I('v_mov_b32 v29, s%d' % sN1)
        g.I('s_mov_b64 exec, 1')
        g.I('buffer_store_dwordx2 v[28:29], v%d, %s, 0 offen offset:8 sc1' % (vZERO, sq(SRD_DBG)))
        g.I('s_mov_b64 exec, -1')
        g.I('s_waitcnt vmcnt(0)')
        g.label(lb)
        g.vm_done = 0
    g.I('v_lshlrev_b32 v%d, 16, v%d' % (vT1, vJ))
    g.I('v_lshl_add_u32 v%d, v%d, 4, v%d' % (vT1, vN, vT1))
    g.I('s_lshl_b32 s%d, s%d, 20' % (sA, sCB))
    g.I('s_lshl_b32 s%d, s%d, 8' % (sB, sH))
    g.I('s_add_u32 s%d, s%d, s%d' % (sA, sA, sB))
    for T in range(4):
        for e in range(8):
            g.I('s_add_u32 s%d, s%d, 0x%x' % (sT, sA, (32 * T + e) * 8192))
            g.vmem('buffer_load_dwordx4 %s, v%d, %s, s%d offen%s' % (vr(KR + (T * 8 + e) * 4), vT1, sq(SRD_WQ), sT, ntw),
                   'wq%d' % T, P['WP'])
    for i in range(4):
        g.I('v_mov_b32 v%d, -1' % (24 + i))
    g.I('s_lshl_b32 s%d, s2, 12' % sA)
    g.I('s_add_u32 s%d, s%d, 0x%x' % (sA, sA, WS_AP))
    for i in range(4):
        g.vmem('buffer_store_dwordx4 %s, v%d, %s, s%d offen offset:%d sc1' % (vr(24), vVOFF, sq(SRD_WS), sA, i * 1024), 'clr')
    g.I('s_mul_i32 s%d, s%d, 28672' % (sA, sH))
    g.I('s_mul_i32 s%d, s%d, 3584' % (sB, sCB))
    g.I('s_add_u32 s%d, s%d, s%d' % (sA, sA, sB))
    g.I('s_add_u32 s%d, s%d, 0x%x' % (sA, sA, WS_GP))
    for i in range(3):
        g.vmem('buffer_store_dwordx4 %s, v%d, %s, s%d offen offset:%d sc1' % (vr(24), vVOFF, sq(SRD_WS), sA, i * 1024), 'clr')
    g.I('s_mov_b32 exec_lo, -1')
    g.I('s_mov_b32 exec_hi, 0')
    g.vmem('buffer_store_dwordx4 %s, v%d, %s, s%d offen offset:%d sc1' % (vr(24), vVOFF, sq(SRD_WS), sA, 3072), 'clr')
    g.I('s_mov_b64 exec, 0xf')
    g.I('s_lshl_b32 s%d, s2, 6' % sA)
    g.I('s_add_u32 s%d, s%d, 0x%x' % (sA, sA, WS_ML))
    g.vmem('buffer_store_dwordx4 %s, v%d, %s, s%d offen sc1' % (vr(24), vVOFF, sq(SRD_WS), sA), 'clr')
    g.I('s_mov_b64 exec, -1')
    g.I('s_lshl_b32 s%d, s%d, 15' % (sA, sCB))
    g.I('s_lshl_b32 s%d, s%d, 10' % (sB, sH))
    g.I('s_add_u32 s%d, s%d, s%d' % (sA, sA, sB))
    g.I('s_add_u32 s%d, s%d, 0x%x' % (sA, sA, WS_FP))
    g.vmem('buffer_store_dwordx4 %s, v%d, %s, s%d offen sc1' % (vr(24), vVOFF, sq(SRD_WS), sA), 'clr')
    g.I('s_lshl_b32 s%d, s%d, 7' % (sF, sH))
    g.I('s_add_u32 s%d, s%d, 0x%x' % (sF, sF, WS_MB))
    g.I('s_cmp_eq_u32 s%d, 0' % sCB)
    g.I('s_cselect_b32 s%d, s%d, 0x7f000000' % (sA, sF))
    g.I('s_mov_b64 exec, 1')
    if not P['NONCE']:
        g.vmem('buffer_store_dword v%d, v%d, %s, s%d offen sc1' % (vZERO, vZERO, sq(SRD_WS), sA), 'clr')
    g.I('s_mov_b64 exec, -1')
    if P['DYN']:
        g.I('s_lshl_b32 s%d, s%d, 8' % (sA, sG))
        g.I('s_add_u32 s%d, s%d, 0x%x' % (sA, sA, WS_CT))
        g.I('s_lshl_b32 s%d, s2, 8' % sB)
        g.I('s_add_u32 s%d, s%d, 0x%x' % (sB, sB, WS_CT + 4096))
        g.I('s_and_b32 s%d, s2, 63' % sC)
        g.I('s_cmp_eq_u32 s%d, 0' % sC)
        g.I('s_cselect_b32 s%d, s%d, s%d' % (sA, sA, sB))
        g.I('v_lshlrev_b32 v%d, 7, v%d' % (vT2, vLANE))
        g.I('s_mov_b64 exec, 3')
        g.vmem('buffer_store_dword v%d, v%d, %s, s%d offen sc1' % (vZERO, vT2, sq(SRD_WS), sA), 'clr')
        g.I('s_mov_b64 exec, -1')
    g.I('ds_write_b32 v%d, v%d offset:%d' % (vZERO, vZERO, L_FLAG))
    g.I('s_waitcnt lgkmcnt(0)')
    g.I('s_barrier')
    stamp(g, 'w0_issued')
    g.vm_wait('x')
    X = SA
    for d in range(8):
        g.I('v_lshlrev_b32 v%d, 16, v%d' % (X + 2 * d, 16 + d))
        g.I('v_and_b32 v%d, 0xffff0000, v%d' % (X + 2 * d + 1, 16 + d))
    S = 48
    g.I('v_add_f32 v%d, v%d, v%d' % (S, X, X + 1))
    for i in range(2, 16):
        g.I('v_add_f32 v%d, v%d, v%d' % (S, S, X + i))

    def wave_sum(v):
        row_allreduce(g, 'v_add_f32', v)
        xrow_allreduce(g, 'v_add_f32', v, 49)
    wave_sum(S)
    MEAN = 50
    g.I('v_mul_f32 v%d, %s, v%d' % (MEAN, f32(1.0 / 1024), S))
    D = 51
    g.I('v_mov_b32 v%d, 0' % S)
    for i in range(16):
        g.I('v_sub_f32 v%d, v%d, v%d' % (D, X + i, MEAN))
        g.I('v_fmac_f32 v%d, v%d, v%d' % (S, D, D))
    wave_sum(S)
    VAR = 52
    g.I('v_mul_f32 v%d, %s, v%d' % (VAR, f32(1.0 / 1024), S))
    bf_round(g, MEAN, 53)
    bf_round(g, VAR, 53)
    g.I('v_add_f32 v%d, %s, v%d' % (VAR, f32(1e-5), VAR))
    bf_round(g, VAR, 53)
    SD = 54
    g.I('v_sqrt_f32 v%d, v%d' % (SD, VAR))
    g.I('v_rcp_f32 v%d, v%d' % (55, SD))
    g.I('v_fma_f32 v%d, -v%d, v%d, v%d' % (56, SD, SD, VAR))
    g.I('v_mul_f32 v%d, 0.5, v%d' % (55, 55))
    g.I('v_fmac_f32 v%d, v%d, v%d' % (SD, 56, 55))
    bf_round(g, SD, 53)
    RC = 55
    g.I('v_rcp_f32 v%d, v%d' % (RC, SD))
    for d in range(8):
        a, b = X + 2 * d, X + 2 * d + 1
        g.I('v_sub_f32 v%d, v%d, v%d' % (a, a, MEAN))
        g.I('v_sub_f32 v%d, v%d, v%d' % (b, b, MEAN))
        bf_round2(g, a, b, 53)
        for x in (a, b):
            g.I('v_mul_f32 v%d, v%d, v%d' % (56, x, RC))
            g.I('v_fma_f32 v%d, -v%d, v%d, v%d' % (57, 56, SD, x))
            g.I('v_fma_f32 v%d, v%d, v%d, v%d' % (x, 57, RC, 56))
        g.I('v_cvt_pk_bf16_f32 v%d, v%d, v%d' % (16 + d, a, b))
    g.I('ds_write_b128 v%d, %s offset:%d' % (vT0, vr(16), L_XN))
    g.I('ds_write_b128 v%d, %s offset:%d' % (vT0, vr(20), L_XN + 16))
    g.I('v_lshlrev_b32 v%d, 4, v%d' % (vT2, vJ))
    g.I('s_lshl_b32 s%d, s%d, 8' % (sA, sCB))
    g.I('v_add_u32 v%d, s%d, v%d' % (vT2, sA, vT2))
    g.I('s_waitcnt lgkmcnt(0)')
    for T in range(4):
        g.I('ds_read_b128 %s, v%d offset:%d' % (vr(16 + 4 * T), vT2, L_XN + 64 * T))
    g.vm_wait('clr')
    g.I('v_mov_b32 v%d, 1' % vT3)
    g.I('ds_write_b32 v%d, v%d offset:%d' % (vZERO, vT3, L_FLAG))
    g.I('s_waitcnt lgkmcnt(0)')
    ACC = SA
    for T in range(4):
        g.vm_wait('wq%d' % T)
        tile32(g, KR + T * 32, 16 + 4 * T, ACC, T == 0, frag_is_A=True, PT=VA)
    for dd in range(8):
        g.I('v_mov_b32 v%d, v%d' % (16 + dd, ACC + 4 * dd))
    stamp(g, 'w0_qproj')
    g.I('v_lshlrev_b32 v%d, 5, v%d' % (vT2, vN))
    g.I('s_lshl_b32 s%d, s%d, 15' % (sA, sG))
    g.I('s_lshl_b32 s%d, s%d, 12' % (sB, sCB))
    g.I('s_add_u32 s%d, s%d, s%d' % (sA, sA, sB))
    g.I('s_and_b32 s%d, s%d, 7' % (sB, sH))
    g.I('s_lshl_b32 s%d, s%d, 9' % (sB, sB))
    g.I('s_add_u32 s%d, s%d, s%d' % (sB, sA, sB))
    g.I('s_mov_b64 exec, 0xffff')
    g.vmem('buffer_store_dwordx4 %s, v%d, %s, s%d offen sc1' % (vr(16), vT2, sq(SRD_WS), sB), 'qp')
    g.vmem('buffer_store_dwordx4 %s, v%d, %s, s%d offen offset:16 sc1' % (vr(20), vT2, sq(SRD_WS), sB), 'qp')
    g.I('s_mov_b64 exec, -1')
    NK = 8 * (3 if P['DYN'] else 4)
    W0 = P['W0']
    if P['NONCE']:
        g.vmem('buffer_load_dwordx2 v[28:29], v%d, %s, 0 offen offset:8 sc1' % (vZERO, sq(SRD_DBG)), 'nonce')
        g.vm_wait_all()
        sv = (list(g.vm), g.vm_done)
        ok = g.newlabel('L_nok')
        lp = g.newlabel('L_npoll')
        g.I('v_readfirstlane_b32 s%d, v28' % sN0)
        g.I('v_readfirstlane_b32 s%d, v29' % sN1)
        g.I('s_nop 3')
        g.I('s_cmp_lg_u32 s%d, 0' % sN0)
        g.I('s_cbranch_scc1 %s' % ok)
        g.label(lp)
        g.I('buffer_load_dwordx2 v[28:29], v%d, %s, 0 offen offset:8 sc1' % (vZERO, sq(SRD_DBG)))
        g.I('s_waitcnt vmcnt(0)')
        g.I('v_readfirstlane_b32 s%d, v28' % sN0)
        g.I('v_readfirstlane_b32 s%d, v29' % sN1)
        g.I('s_nop 3')
        g.I('s_cmp_lg_u32 s%d, 0' % sN0)
        g.I('s_cbranch_scc1 %s' % ok)
        spin_guard(g, ok)
        g.I('s_sleep 8')
        g.I('s_branch %s' % lp)
        g.label(ok)
        g.vm, g.vm_done = sv
        g.I('s_lshl_b32 s%d, s%d, 12' % (sF, sG))
        g.I('s_add_u32 s%d, s%d, 0x%x' % (sF, sF, WS_FL))
        g.I('s_and_b32 s%d, s2, 63' % sB)
        g.I('s_lshl_b32 s%d, s%d, 3' % (sB, sB))
        g.I('s_add_u32 s%d, s%d, s%d' % (sB, sB, sF))
        g.I('s_mov_b64 exec, 1')
        g.vmem('buffer_store_dwordx2 v[28:29], v%d, %s, s%d offen sc1' % (vZERO, sq(SRD_WS), sB), 'fl')
        g.I('s_mov_b64 exec, -1')
        stamp(g, 'w0_atomic')
        for n in range(0, P['KP']):
            kload2(g, n, W0)
        g.I('v_lshlrev_b32 v%d, 3, v%d' % (vT3, vLANE))
        flag_poll(g, [sF])
        g.vm_done = len(g.vm)
    else:
        for n in range(0, 8):
            kload2(g, n, W0)
        g.vm_wait('qp')
        g.I('s_mov_b64 exec, 1')
        g.I('v_mov_b32 v%d, 1' % vT3)
        if P['NOSYNC']:
            g.vmem('buffer_load_dword v%d, v%d, %s, s%d offen sc1' % (vT3, vZERO, sq(SRD_WS), sF), 'at')
        else:
            g.vmem('buffer_atomic_add v%d, v%d, %s, 0 offen sc0' % (vT3, vZERO, sq(SRD_DBG)), 'at')
        g.I('s_mov_b64 exec, -1')
        for n in range(8, 8 + P['KA']):
            kload2(g, n, W0)
        g.vm_wait('at')
        g.I('v_readfirstlane_b32 s%d, v%d' % (sB, vT3))
        stamp(g, 'w0_atomic')
        nl = g.newlabel('L_notlast')
        g.I('s_and_b32 s%d, s%d, 255' % (sB, sB))
        g.I('s_cmp_lg_u32 s%d, 255' % sB)
        g.I('s_mov_b32 s%d, 0x%x' % (sC, WS_MB))
        g.I('s_cselect_b32 s%d, 0x7f000000, s%d' % (sB, sC))
        g.I('v_lshlrev_b32 v%d, 7, v%d' % (vT3, vLANE))
        g.I('v_mov_b32 v%d, 1' % vT4)
        g.I('s_mov_b32 exec_hi, 0')
        g.vmem('buffer_store_dword v%d, v%d, %s, s%d offen sc1' % (vT4, vT3, sq(SRD_WS), sB), 'nt')
        g.I('s_mov_b64 exec, -1')
        for n in range(8 + P['KA'], NK):
            kload2(g, n, W0)
        sv = (list(g.vm), g.vm_done)
        lp = g.newlabel('L_qpoll')
        dn = g.newlabel('L_qpolld')
        g.label(lp)
        g.I('buffer_load_dword v16, v%d, %s, s%d offen sc1' % (vZERO, sq(SRD_WS), sF))
        g.I('s_waitcnt vmcnt(0)')
        g.I('v_readfirstlane_b32 s%d, v16' % sB)
        g.I('s_nop 3')
        g.I('s_cmp_eq_u32 s%d, 1' % sB)
        g.I('s_cbranch_scc1 %s' % dn)
        if P['NOSYNC']:
            g.I('s_branch %s' % dn)
        spin_guard(g, dn)
        g.I('s_sleep %d' % P['QSLEEP'])
        g.I('s_branch %s' % lp)
        g.label(dn)
        g.vm_done = len(g.vm)
    stamp(g, 'w0_polled')
    g.I('s_lshl_b32 s%d, s%d, 15' % (sA, sG))
    QA = SA
    for half in range(2):
        for k4 in range(4):
            ks = half * 4 + k4
            g.I('s_add_u32 s%d, s%d, 0x%x' % (sT, sA, WS_QP + ks * 4096))
            for i in range(4):
                g.vmem('buffer_load_dwordx4 %s, v%d, %s, s%d offen offset:%d sc1' % (vr(VA + (k4 * 4 + i) * 4), vVOFF, sq(SRD_WS), sT, i * 1024),
                       'q%d' % ks)
        for k4 in range(4):
            ks = half * 4 + k4
            g.vm_wait('q%d' % ks)
            for r in range(16):
                if ks == 0:
                    g.I('v_mov_b32 v%d, v%d' % (QA + r, VA + r))
                else:
                    g.I('v_add_f32 v%d, v%d, v%d' % (QA + r, QA + r, VA + k4 * 16 + r))
    g.I('v_lshlrev_b32 v%d, 3, v%d' % (vT2, vLANE))
    for i in range(4):
        g.I('v_cvt_pk_bf16_f32 v%d, v%d, v%d' % (16 + 2 * i, QA + 4 * i, QA + 4 * i + 1))
        g.I('v_cvt_pk_bf16_f32 v%d, v%d, v%d' % (17 + 2 * i, QA + 4 * i + 2, QA + 4 * i + 3))
        g.I('ds_write_b64 v%d, %s offset:%d' % (vT2, vr(16 + 2 * i, 2), L_Q + i * 512))
    g.I('v_mov_b32 v%d, 2' % vT4)
    g.I('s_waitcnt lgkmcnt(0)')
    g.I('ds_write_b32 v%d, v%d offset:%d' % (vZERO, vT4, L_FLAG))
    if P['NONCE']:
        for i in range(4):
            g.I('s_mov_b32 s%d, 0x%x' % (90 + i, WS_FL + i * 4096))
        flag_poll(g, [90, 91, 92, 93])
        g.vm_done = len(g.vm)
        g.I('v_mov_b32 v%d, 3' % vT4)
        g.I('ds_write_b32 v%d, v%d offset:%d' % (vZERO, vT4, L_FLAG))
        for n in range(P['KP'], NK):
            kload2(g, n, W0)


def wait_flag(g, val):
    lp = g.newlabel('L_fl')
    dn = g.newlabel('L_fld')
    g.label(lp)
    g.I('ds_read_b32 v%d, v%d offset:%d' % (vT0, vZERO, L_FLAG))
    g.I('s_waitcnt lgkmcnt(0)')
    g.I('v_readfirstlane_b32 s%d, v%d' % (sA, vT0))
    g.I('s_nop 3')
    g.I('s_cmp_ge_u32 s%d, %d' % (sA, val))
    g.I('s_cbranch_scc1 %s' % dn)
    spin_guard(g, dn)
    g.I('s_sleep 1')
    g.I('s_branch %s' % lp)
    g.label(dn)


def main_path(g, w0):
    W = P['W0'] if w0 else P['W']
    ntk, ntv, ntw = P['NT_K'], P['NT_V'], P['NT_W']
    g.comment('---------------- main path (wave0=%s)' % w0)
    NS = 3 if P['DYN'] else 4
    stamp(g, 'main_start')

    def kload(t, i):
        if P['KL'] == 2:
            X = 2 * t + (i >> 1)
            g.I('s_add_u32 s%d, s%d, 0x%x' % (sT, sKV, X << 20))
            g.vmem('buffer_load_dwordx4 %s, v%d, %s, s%d offen offset:%d%s' % (vr(KR + (t * 4 + i) * 4), vKOFF, sq(SRD_K), sT, (i & 1) * 128, ntk),
                   'k%d' % t, W)
            return
        if i == 0:
            koff = {0: t * 4096, 1: ((t >> 1) << 22) + (t & 1) * 4096, 2: t << 21}[P['ILV']]
            g.I('s_add_u32 s%d, s%d, 0x%x' % (sT, sKV, koff))
        g.vmem('buffer_load_dwordx4 %s, v%d, %s, s%d offen offset:%d%s' % (vr(KR + (t * 4 + i) * 4), vKOFF, sq(SRD_K), sT, i * 64, ntk),
               'k%d' % t, W)

    def vbase(T):
        return VA + 32 * T if T < 2 else KR + 32 * (T - 2)

    def vload(T, e):
        if P['ILV'] == 2:
            g.I('s_add_u32 s%d, s%d, 0x%x' % (sT2, sKV, (T * 8 + e) << 19))
            g.vmem('buffer_load_dwordx4 %s, v%d, %s, s%d offen%s' % (vr(vbase(T) + e * 4), vVOFF, sq(SRD_V), sT2, ntv),
                   'v%d' % T, P['WV'] if (P['WV'] and not w0 and T >= P['WVT']) else W)
            return
        if e % 4 == 0:
            g.I('s_add_u32 s%d, s%d, 0x%x' % (sT2, sKV, ((T << 22) if P['ILV'] else T * 8192) + (e // 4) * 4096))
        g.vmem('buffer_load_dwordx4 %s, v%d, %s, s%d offen offset:%d%s' % (vr(vbase(T) + e * 4), vVOFF, sq(SRD_V), sT2, (e % 4) * 1024, ntv),
               'v%d' % T, W)

    if not w0:
        GR = VA
        vGO = vT2
        g.I('s_mov_b32 s%d, 57344' % sA)
        g.I('v_mul_lo_u32 v%d, v%d, s%d' % (vGO, vJ, sA))
        g.I('v_lshl_add_u32 v%d, v%d, 4, v%d' % (vGO, vN, vGO))
        g.I('s_mul_i32 s%d, s%d, %d' % (sA, sH, 32 * 7168))
        g.I('s_and_b32 s%d, s%d, 3' % (sB, sCB))
        g.I('s_mul_i32 s%d, s%d, 1792' % (sB, sB))
        g.I('s_add_u32 s%d, s%d, s%d' % (sA, sA, sB))
        g.I('s_lshl_b32 s%d, s%d, 8' % (sB, sWAVE))
        g.I('s_add_u32 s%d, s%d, s%d' % (sA, sA, sB))
        g.I('s_sub_u32 s%d, s%d, 256' % (sA, sA))
        for e in range(8):
            g.I('s_add_u32 s%d, s%d, %d' % (sT, sA, e * 7168))
            g.vmem('buffer_load_dwordx4 %s, v%d, %s, s%d offen%s' % (vr(GR + 4 * e), vGO, sq(SRD_GU), sT, ntw), 'g', P['WG0'])
            if e == min(P['WG0'], 8) - 1:
                g.I('s_barrier')
    n = 0
    for t in range(0 if w0 else 2 * NS):
        for i in range(4):
            kload(t, i)
            n += 1
            if not w0 and n == P['KG']:
                wait_flag(g, 1)
                stamp(g, 'xn_ready')
                g.I('v_lshlrev_b32 v%d, 4, v%d' % (vT0, vJ))
                g.I('s_lshl_b32 s%d, s%d, 6' % (sA, sH))
                g.I('v_add_u32 v%d, s%d, v%d' % (vT0, sA, vT0))
                g.I('ds_read_b128 %s, v%d offset:%d' % (vr(QF), vT0, L_XN))
                g.I('s_waitcnt lgkmcnt(0)')
                g.vm_wait('g')
                tile32(g, GR, QF, SA, True, frag_is_A=True, PT=VA + 32)
                for dd in range(8):
                    g.I('v_mov_b32 v%d, v%d' % (QF + 8 + dd, SA + 4 * dd))
                g.I('s_mul_i32 s%d, s%d, 28672' % (sA, sH))
                g.I('s_mul_i32 s%d, s%d, 3584' % (sB, sCB))
                g.I('s_add_u32 s%d, s%d, s%d' % (sA, sA, sB))
                g.I('s_lshl_b32 s%d, s%d, 9' % (sB, sWAVE))
                g.I('s_add_u32 s%d, s%d, s%d' % (sA, sA, sB))
                g.I('s_add_u32 s%d, s%d, 0x%x' % (sA, sA, WS_GP - 512))
                g.I('v_lshlrev_b32 v%d, 5, v%d' % (vT0, vN))
                g.I('s_mov_b64 exec, 0xffff')
                g.vmem('buffer_store_dwordx4 %s, v%d, %s, s%d offen sc1' % (vr(QF + 8), vT0, sq(SRD_WS), sA), 'gp')
                g.vmem('buffer_store_dwordx4 %s, v%d, %s, s%d offen offset:16 sc1' % (vr(QF + 12), vT0, sq(SRD_WS), sA), 'gp')
                g.I('s_mov_b64 exec, -1')
                stamp(g, 'gu_done')
                if i != 3:
                    koff = {0: t * 4096, 1: ((t >> 1) << 22) + (t & 1) * 4096, 2: t << 21}[P['ILV']]
                    g.I('s_add_u32 s%d, s%d, 0x%x' % (sT, sKV, koff))
    pend = [(T, e) for T in range(NS) for e in range(8)]

    def issue(nn):
        for _ in range(nn):
            if pend:
                T, e = pend.pop(0)
                vload(T, e)

    def issue_through(T):
        while pend and pend[0][0] <= T:
            issue(1)

    issue(P['QPOS0'] if w0 else P['QPOS'])
    stamp(g, 'kv_issued')
    if not w0:
        wait_flag(g, 2)
    if P['KL'] == 2:
        g.I('v_and_b32 v%d, 7, v%d' % (vT0, vN))
        g.I('v_lshlrev_b32 v%d, 8, v%d' % (vT0, vT0))
        g.I('v_lshl_add_u32 v%d, v%d, 4, v%d' % (vT0, vJ, vT0))
        g.I('v_lshrrev_b32 v%d, 3, v%d' % (vT1, vN))
        g.I('v_lshl_add_u32 v%d, v%d, 6, v%d' % (vT0, vT1, vT0))
        for i in range(2):
            g.I('ds_read_b128 %s, v%d offset:%d' % (vr(QF + 4 * i), vT0, L_Q + i * 128))
        g.I('s_waitcnt lgkmcnt(0)')
        stamp(g, 'q_ready')

        def dreg(X):
            return QF + 8 if X == 0 else KR + (X - 1) * 8

        def adds(X):
            d = dreg(X)
            g.I('v_add_f32_dpp v%d, v%d, v%d row_ror:8 row_mask:0xf bank_mask:0xf' % (SA + 2 * X, d + 1, d))
            g.I('v_add_f32_dpp v%d, v%d, v%d row_ror:8 row_mask:0xf bank_mask:0xf' % (SA + 2 * X + 1, d + 3, d + 2))
        for X in range(4 * NS):
            g.vm_wait('k%d' % (X >> 1))
            d = dreg(X)
            g.I('v_mfma_f32_16x16x32_bf16 %s, %s, %s, 0' % (vr(d), vr(KR + X * 8), vr(QF)))
            g.I('v_mfma_f32_16x16x32_bf16 %s, %s, %s, %s' % (vr(d), vr(KR + X * 8 + 4), vr(QF + 4), vr(d)))
            if X >= 3:
                adds(X - 3)
        for X in range(4 * NS - 3, 4 * NS):
            adds(X)
    else:
        g.I('v_and_b32 v%d, 7, v%d' % (vT0, vN))
        g.I('v_lshlrev_b32 v%d, 8, v%d' % (vT0, vT0))
        g.I('v_lshl_add_u32 v%d, v%d, 4, v%d' % (vT0, vJ, vT0))
        for i in range(4):
            g.I('ds_read_b128 %s, v%d offset:%d' % (vr(QF + 4 * i), vT0, L_Q + i * 64))
        g.I('s_waitcnt lgkmcnt(0)')
        stamp(g, 'q_ready')
        for t in range(8):
            g.vm_wait('k%d' % t)
            for i in range(4):
                c = '0' if i == 0 else vr(SA + 4 * t)
                g.I('v_mfma_f32_16x16x32_bf16 %s, %s, %s, %s' % (vr(SA + 4 * t), vr(KR + (t * 4 + i) * 4), vr(QF + 4 * i), c))
    stamp(g, 'qk_done')
    for r in range(0, 8 * NS, 2):
        a, b = SA + r, SA + r + 1
        bf_round2(g, a, b, vT0)
        g.I('v_mul_f32 v%d, s%d, v%d' % (a, sSCALE, a))
        g.I('v_mul_f32 v%d, s%d, v%d' % (b, sSCALE, b))
        bf_round2(g, a, b, vT1)
        if r == 0:
            g.I('v_max_f32 v%d, v%d, v%d' % (vM, a, b))
        else:
            g.I('v_max3_f32 v%d, v%d, v%d, v%d' % (vM, vM, a, b))
        if r % 8 == 6:
            issue(1)
    xrow_allreduce(g, 'v_max_f32', vM, vT0)
    for r in range(8 * NS):
        a = SA + r
        g.I('v_sub_f32 v%d, v%d, v%d' % (a, a, vM))
        g.I('v_mul_f32 v%d, s%d, v%d' % (a, sLOG2E, a))
        g.I('v_exp_f32 v%d, v%d' % (a, a))
        if r % 8 == 7:
            issue(1)
    g.I('v_add_f32 v%d, v%d, v%d' % (vL, SA, SA + 1))
    for r in range(2, 8 * NS):
        g.I('v_add_f32 v%d, v%d, v%d' % (vL, vL, SA + r))
    for r in range(0, 8 * NS, 2):
        g.I('v_cvt_pk_bf16_f32 v%d, v%d, v%d' % (PF + r // 2, SA + r, SA + r + 1))
    xrow_allreduce(g, 'v_add_f32', vL, vT0)
    WOR = SA if P['DYN'] else VA + 32
    WDR, HD = SA, SA + 16
    WDG = QF + 8
    vWOO, vWDO = vT3, vT4
    g.I('v_lshlrev_b32 v%d, 11, v%d' % (vWOO, vJ))
    g.I('v_lshl_add_u32 v%d, v%d, 4, v%d' % (vWOO, vN, vWOO))
    stamp(g, 'sm_done')
    vCL = 1

    def claim(track):
        g.I('s_mov_b64 exec, 1')
        g.I('v_mov_b32 v%d, 1' % vCL)
        t = 'buffer_atomic_add v%d, v%d, %s, s%d offen sc0' % (vCL, vZERO, sq(SRD_WS), sCT)
        if track:
            g.vmem(t, 'cl')
        else:
            g.I(t)
        g.I('s_mov_b64 exec, -1')

    def dyn_base():
        g.I('v_readfirstlane_b32 s%d, v%d' % (sDI, vCL))
        g.I('s_nop 3')
        g.I('s_and_b32 s%d, s%d, 1' % (sDB, sWAVE))
        g.I('s_lshl_b32 s%d, s%d, 8' % (sDB, sDB))
        g.I('s_add_u32 s%d, s%d, s%d' % (sDB, sDB, sDI))
        g.I('s_lshl_b32 s%d, s%d, 10' % (sDB, sDB))
        g.I('s_lshl_b32 s%d, s%d, 24' % (sA, sG))
        g.I('s_add_u32 s%d, s%d, s%d' % (sDB, sDB, sA))
        g.I('s_cmp_lt_u32 s%d, 256' % sDI)
        g.I('s_cselect_b32 s%d, s%d, 0x7f000000' % (sDB, sDB))

    def dyn_loads(track):
        for x in range(4):
            for ii in range(2):
                g.I('s_add_u32 s%d, s%d, 0x%x' % (sT, sDB, (12 + x) << 20))
                t = 'buffer_load_dwordx4 %s, v%d, %s, s%d offen offset:%d%s' % (vr(VA + (x * 2 + ii) * 4), vKOFF, sq(SRD_K), sT, ii * 128, ntk)
                if track:
                    g.vmem(t, 'dk', W)
                else:
                    g.I(t)
        for e in range(8):
            g.I('s_add_u32 s%d, s%d, 0x%x' % (sT2, sDB, (24 + e) << 19))
            t = 'buffer_load_dwordx4 %s, v%d, %s, s%d offen%s' % (vr(VA + 32 + e * 4), vVOFF, sq(SRD_V), sT2, ntv)
            if track:
                g.vmem(t, 'dv', W)
            else:
                g.I(t)

    if P['DYN']:
        g.I('s_lshl_b32 s%d, s%d, 8' % (sCT, sG))
        g.I('s_and_b32 s%d, s%d, 1' % (sA, sWAVE))
        g.I('s_lshl_b32 s%d, s%d, 7' % (sA, sA))
        g.I('s_add_u32 s%d, s%d, s%d' % (sCT, sCT, sA))
        g.I('s_add_u32 s%d, s%d, 0x%x' % (sCT, sCT, WS_CT))
    hloads = []
    if not w0:
        if P['NONCE']:
            wait_flag(g, 3)
        g.I('v_lshlrev_b32 v%d, 13, v%d' % (vWDO, vJ))
        g.I('v_lshl_add_u32 v%d, v%d, 4, v%d' % (vWDO, vN, vWDO))
        g.I('s_mul_i32 s%d, s%d, 112' % (sA, sH))
        g.I('s_lshl_b32 s%d, s%d, 4' % (sB, sWAVE))
        g.I('s_add_u32 s%d, s%d, s%d' % (sA, sA, sB))
        g.I('s_sub_u32 s%d, s%d, 16' % (sE, sA))
        g.I('s_lshl_b32 s%d, s%d, 11' % (sA, sE))
        g.I('s_lshl_b32 s%d, s%d, 8' % (sB, sCB))
        g.I('s_add_u32 s%d, s%d, s%d' % (sA, sA, sB))
        for e in range(4):
            g.I('s_add_u32 s%d, s%d, %d' % (sT, sA, e * 2048))
            g.vmem('buffer_load_dwordx4 %s, v%d, %s, s%d offen%s' % (vr(WDR + 4 * e), vWDO, sq(SRD_WD), sT, ntw), 'wd', W)
        vHO = vT5
        g.I('s_mov_b32 s%d, 28672' % sT)
        g.I('v_mul_lo_u32 v%d, v%d, s%d' % (vHO, vN, sT))
        g.I('v_lshl_add_u32 v%d, v%d, 4, v%d' % (vHO, vJ, vHO))
        g.I('s_lshl_b32 s%d, s%d, 2' % (90, sE))
        g.I('s_add_u32 s%d, s%d, 0x%x' % (90, 90, WS_GP))
        g.I('s_add_u32 s%d, s%d, %d' % (91, 90, 16 * 28672))
        g.I('s_add_u32 s%d, s%d, %d' % (92, 90, 14336))
        g.I('s_add_u32 s%d, s%d, %d' % (93, 90, 14336 + 16 * 28672))
        hloads = ['buffer_load_dwordx4 %s, v%d, %s, s%d offen sc1' % (vr(HD + 4 * i), vHO, sq(SRD_WS), 90 + i) for i in range(4)]
        for t in hloads:
            g.vmem(t, 'h', W)
    def wo_loads():
        WW = P['WT']
        g.I('s_lshl_b32 s%d, s%d, 7' % (sA, sH))
        g.I('s_lshr_b32 s%d, s%d, 1' % (sB, sWAVE))
        g.I('s_lshl_b32 s%d, s%d, 5' % (sB, sB))
        g.I('s_add_u32 s%d, s%d, s%d' % (sA, sA, sB))
        g.I('s_and_b32 s%d, s%d, 1' % (sB, sWAVE))
        g.I('s_lshl_b32 s%d, s%d, 2' % (sB, sB))
        g.I('s_add_u32 s%d, s%d, s%d' % (sA, sA, sB))
        g.I('s_lshl_b32 s%d, s%d, 11' % (sA, sA))
        g.I('s_lshl_b32 s%d, s%d, 8' % (sB, sCB))
        g.I('s_add_u32 s%d, s%d, s%d' % (sA, sA, sB))
        for e in range(4):
            g.I('s_add_u32 s%d, s%d, %d' % (sT, sA, e * 16384))
            g.vmem('buffer_load_dwordx4 %s, v%d, %s, s%d offen%s' % (vr(WOR + 4 * e), vWOO, sq(SRD_WO), sT, ntw), 'wo', WW)

    for T in range(NS):
        if P['DYN'] and T == P['TC']:
            claim(True)
        issue_through(min(T + 1, NS - 1))
        if P['DYN'] and T == 2:
            g.vm_wait('cl')
            dyn_base()
            dyn_loads(True)
        g.vm_wait('v%d' % T)
        if T == P['TH'] and not w0:
            g.vm_wait('h')
            sv = (list(g.vm), g.vm_done)
            ok = g.newlabel('L_hok')
            rs = list(range(HD, HD + 16))
            g.I('v_max_u32 v%d, v%d, v%d' % (vT1, rs[0], rs[1]))
            for i in range(2, 16, 2):
                g.I('v_max3_u32 v%d, v%d, v%d, v%d' % (vT1, vT1, rs[i], rs[i + 1]))
            g.I('v_cmp_eq_u32 vcc, -1, v%d' % vT1)
            g.I('s_cbranch_vccz %s' % ok)
            poll_valid(g, hloads, rs, vT1)
            g.label(ok)
            g.vm, g.vm_done = sv
            GG, UU = HD, HD + 8
            for c in range(4):
                g.I('v_add_f32 v%d, v%d, v%d' % (GG + c, GG + c, GG + 4 + c))
                g.I('v_add_f32 v%d, v%d, v%d' % (UU + c, UU + c, UU + 4 + c))
            row_allreduce_multi(g, 'v_add_f32', [GG + c for c in range(4)] + [UU + c for c in range(4)])
            for c in range(0, 4, 2):
                bf_round2(g, GG + c, GG + c + 1, vT0)
                bf_round2(g, UU + c, UU + c + 1, vT0)
            k0 = 0.7978845608028654
            k1 = 0.044715
            c2 = -2.0 * k0 * 1.4426950408889634
            for c in range(4):
                x = GG + c
                t = GG + 4 + c
                g.I('v_mul_f32 v%d, v%d, v%d' % (t, x, x))
                g.I('v_mul_f32 v%d, v%d, v%d' % (t, t, x))
                g.I('v_mul_f32 v%d, %s, v%d' % (t, f32(k1), t))
                g.I('v_add_f32 v%d, v%d, v%d' % (t, t, x))
                g.I('v_mul_f32 v%d, %s, v%d' % (t, f32(c2), t))
                g.I('v_exp_f32 v%d, v%d' % (t, t))
                g.I('v_add_f32 v%d, 1.0, v%d' % (t, t))
                g.I('v_rcp_f32 v%d, v%d' % (t, t))
                g.I('v_mul_f32 v%d, v%d, v%d' % (x, x, t))
            for c in range(0, 4, 2):
                bf_round2(g, GG + c, GG + c + 1, vT0)
            for c in range(4):
                g.I('v_mul_f32 v%d, v%d, v%d' % (GG + c, GG + c, UU + c))
            HFR = PT + 2
            g.I('v_cvt_pk_bf16_f32 v%d, v%d, v%d' % (HFR, GG, GG + 1))
            g.I('v_cvt_pk_bf16_f32 v%d, v%d, v%d' % (HFR + 1, GG + 2, GG + 3))
            tile16g(g, WDR, HFR, HD, WDG)
            stamp(g, 'wd_done')
        if T == P['TW'] and not P['DYN']:
            wo_loads()
        tile32(g, vbase(T), PF + 4 * T, OA, T == 0, frag_is_A=False)
    if P['DYN']:
        lp = g.newlabel('L_dyn')
        dn = g.newlabel('L_dynd')
        g.I('s_cmp_ge_u32 s%d, 256' % sDI)
        g.I('s_cbranch_scc1 %s' % dn)
        g.label(lp)
        claim(False)
        g.I('s_waitcnt vmcnt(9)')
        DS, DD = SA, SA + 8
        for x in range(4):
            d = DD + 4 * x
            g.I('v_mfma_f32_16x16x32_bf16 %s, %s, %s, 0' % (vr(d), vr(VA + x * 8), vr(QF)))
            g.I('v_mfma_f32_16x16x32_bf16 %s, %s, %s, %s' % (vr(d), vr(VA + x * 8 + 4), vr(QF + 4), vr(d)))
        for x in range(4):
            d = DD + 4 * x
            g.I('v_add_f32_dpp v%d, v%d, v%d row_ror:8 row_mask:0xf bank_mask:0xf' % (DS + 2 * x, d + 1, d))
            g.I('v_add_f32_dpp v%d, v%d, v%d row_ror:8 row_mask:0xf bank_mask:0xf' % (DS + 2 * x + 1, d + 3, d + 2))
        MN, AL, LS = DD, DD + 1, DD + 2
        for r in range(0, 8, 2):
            a_, b_ = DS + r, DS + r + 1
            bf_round2(g, a_, b_, vT0)
            g.I('v_mul_f32 v%d, s%d, v%d' % (a_, sSCALE, a_))
            g.I('v_mul_f32 v%d, s%d, v%d' % (b_, sSCALE, b_))
            bf_round2(g, a_, b_, vT1)
            g.I('v_max3_f32 v%d, v%d, v%d, v%d' % (MN, vM if r == 0 else MN, a_, b_))
        xrow_allreduce(g, 'v_max_f32', MN, vT0)
        g.I('v_sub_f32 v%d, v%d, v%d' % (AL, vM, MN))
        g.I('v_mul_f32 v%d, s%d, v%d' % (AL, sLOG2E, AL))
        g.I('v_exp_f32 v%d, v%d' % (AL, AL))
        g.I('v_mov_b32 v%d, v%d' % (vM, MN))
        for r in range(8):
            a_ = DS + r
            g.I('v_sub_f32 v%d, v%d, v%d' % (a_, a_, MN))
            g.I('v_mul_f32 v%d, s%d, v%d' % (a_, sLOG2E, a_))
            g.I('v_exp_f32 v%d, v%d' % (a_, a_))
        g.I('v_add_f32 v%d, v%d, v%d' % (LS, DS, DS + 1))
        for r in range(2, 8):
            g.I('v_add_f32 v%d, v%d, v%d' % (LS, LS, DS + r))
        for r in range(0, 8, 2):
            g.I('v_cvt_pk_bf16_f32 v%d, v%d, v%d' % (PF + r // 2, DS + r, DS + r + 1))
        xrow_allreduce(g, 'v_add_f32', LS, vT0)
        g.I('v_fma_f32 v%d, v%d, v%d, v%d' % (vL, vL, AL, LS))
        for r in range(32):
            g.I('v_mul_f32 v%d, v%d, v%d' % (OA + r, OA + r, AL))
        g.I('s_waitcnt vmcnt(1)')
        tile32(g, VA + 32, PF, OA, False, frag_is_A=False)
        g.I('s_waitcnt vmcnt(0)')
        dyn_base()
        g.I('s_cmp_ge_u32 s%d, 256' % sDI)
        g.I('s_cbranch_scc1 %s' % dn)
        dyn_loads(False)
        g.I('s_branch %s' % lp)
        g.label(dn)
        g.vm_reset()
        wo_loads()
    stamp(g, 'pv_done')
    g.I('s_mul_i32 s%d, s%d, 4224' % (sA, sWAVE))
    g.I('v_mul_u32_u24 v%d, 528, v%d' % (vT0, vN))
    g.I('v_lshl_add_u32 v%d, v%d, 7, v%d' % (vT0, vJ, vT0))
    g.I('v_add_u32 v%d, s%d, v%d' % (vT0, sA, vT0))
    g.I('s_mov_b32 s%d, 0x00ff00ff' % sEX)
    g.I('s_mov_b32 s%d, 0x00ff00ff' % (sEX + 1))
    g.I('s_mov_b64 exec, s[%d:%d]' % (sEX, sEX + 1))
    for dd in range(8):
        g.I('ds_write_b128 v%d, %s offset:%d' % (vT0, vr(OA + 4 * dd), L_OW + dd * 16))
    g.I('s_mov_b64 exec, 0xff')
    g.I('s_lshl_b32 s%d, s%d, 6' % (sA, sWAVE))
    g.I('v_lshlrev_b32 v%d, 3, v%d' % (vT1, vLANE))
    g.I('v_add_u32 v%d, s%d, v%d' % (vT1, sA, vT1))
    g.I('ds_write_b64 v%d, %s offset:%d' % (vT1, vr(vM, 2), L_ML))
    g.I('s_mov_b64 exec, -1')
    g.I('s_waitcnt lgkmcnt(0)')
    g.I('s_barrier')
    stamp(g, 'b3')
    CO = OA
    CM = OA + 16
    g.I('s_mul_i32 s%d, s%d, 528' % (sA, sWAVE))
    g.I('v_lshlrev_b32 v%d, 3, v%d' % (vT0, vLANE))
    g.I('v_add_u32 v%d, s%d, v%d' % (vT1, sA, vT0))
    g.I('s_lshl_b32 s%d, s%d, 3' % (sA, sWAVE))
    g.I('v_mov_b32 v%d, s%d' % (vT5, sA))
    for w in range(8):
        g.I('ds_read_b64 %s, v%d offset:%d' % (vr(CM + 2 * w, 2), vT5, L_ML + w * 64))
    for w in range(8):
        g.I('ds_read_b64 %s, v%d offset:%d' % (vr(CO + 2 * w, 2), vT1, L_OW + w * 4224))
    g.I('s_waitcnt lgkmcnt(0)')
    g.I('v_max3_f32 v%d, v%d, v%d, v%d' % (vM, CM, CM + 2, CM + 4))
    g.I('v_max3_f32 v%d, v%d, v%d, v%d' % (vM, vM, CM + 6, CM + 8))
    g.I('v_max3_f32 v%d, v%d, v%d, v%d' % (vM, vM, CM + 10, CM + 12))
    g.I('v_max_f32 v%d, v%d, v%d' % (vM, vM, CM + 14))
    for w in range(8):
        m = CM + 2 * w
        g.I('v_sub_f32 v%d, v%d, v%d' % (m, m, vM))
        g.I('v_mul_f32 v%d, s%d, v%d' % (m, sLOG2E, m))
        g.I('v_exp_f32 v%d, v%d' % (m, m))
    R0, R1 = PT, PT + 1
    for w in range(8):
        m = CM + 2 * w
        if w == 0:
            g.I('v_mul_f32 v%d, v%d, v%d' % (R0, m, CO))
            g.I('v_mul_f32 v%d, v%d, v%d' % (R1, m, CO + 1))
            g.I('v_mul_f32 v%d, v%d, v%d' % (vL, m, m + 1))
        else:
            g.I('v_fmac_f32 v%d, v%d, v%d' % (R0, m, CO + 2 * w))
            g.I('v_fmac_f32 v%d, v%d, v%d' % (R1, m, CO + 2 * w + 1))
            g.I('v_fmac_f32 v%d, v%d, v%d' % (vL, m, m + 1))
    g.I('v_lshrrev_b32 v%d, 3, v%d' % (vT0, vLANE))
    g.I('v_lshlrev_b32 v%d, 12, v%d' % (vT0, vT0))
    g.I('v_and_b32 v%d, 7, v%d' % (vT1, vLANE))
    g.I('v_lshl_add_u32 v%d, v%d, 3, v%d' % (vT0, vT1, vT0))
    g.I('s_lshl_b32 s%d, s%d, 18' % (sA, sG))
    g.I('s_lshl_b32 s%d, s%d, 15' % (sB, sWAVE))
    g.I('s_add_u32 s%d, s%d, s%d' % (sA, sA, sB))
    g.I('s_and_b32 s%d, s2, 63' % sB)
    g.I('s_lshl_b32 s%d, s%d, 6' % (sB, sB))
    g.I('s_add_u32 s%d, s%d, s%d' % (sA, sA, sB))
    g.I('s_add_u32 s%d, s%d, 0x%x' % (sA, sA, WS_AP))
    g.vmem('buffer_store_dwordx2 %s, v%d, %s, s%d offen sc1' % (vr(R0, 2), vT0, sq(SRD_WS), sA), 'ap')
    g.I('s_lshl_b32 s%d, s%d, 9' % (sB, sWAVE))
    g.I('s_lshl_b32 s%d, s%d, 12' % (sA, sG))
    g.I('s_add_u32 s%d, s%d, s%d' % (sA, sA, sB))
    g.I('s_and_b32 s%d, s2, 63' % sB)
    g.I('s_lshl_b32 s%d, s%d, 3' % (sB, sB))
    g.I('s_add_u32 s%d, s%d, s%d' % (sA, sA, sB))
    g.I('s_add_u32 s%d, s%d, 0x%x' % (sA, sA, WS_ML))
    g.I('s_mov_b64 exec, 1')
    g.vmem('buffer_store_dwordx2 %s, v%d, %s, s%d offen sc1' % (vr(vM, 2), vZERO, sq(SRD_WS), sA), 'ml')
    g.I('s_mov_b64 exec, -1')
    stamp(g, 'ap_stored')
    WDA = KR
    MLr = KR + 32
    AD = KR + 40
    g.I('s_lshl_b32 s%d, s%d, 9' % (sF, sH))
    g.I('s_add_u32 s%d, s%d, 0x%x' % (sF, sF, WS_ML))
    if w0:
        PR = PT
        g.I('v_lshlrev_b32 v%d, 3, v%d' % (vT3, vLANE))
        if P['THR']:
            lp = g.newlabel('L_tp')
            dn = g.newlabel('L_tpd')
            g.label(lp)
            g.I('buffer_load_dwordx2 %s, v%d, %s, s%d offen sc1' % (vr(PR, 2), vT3, sq(SRD_WS), sF))
            g.I('s_waitcnt vmcnt(0)')
            g.I('v_max_u32 v%d, v%d, v%d' % (vT1, PR, PR + 1))
            g.I('v_cmp_eq_u32 vcc, -1, v%d' % vT1)
            g.I('s_nop 3')
            g.I('s_bcnt1_i32_b64 s%d, vcc' % sA)
            g.I('s_cmp_le_u32 s%d, %d' % (sA, P['THR']))
            g.I('s_cbranch_scc1 %s' % dn)
            spin_guard(g, dn)
            g.I('s_sleep %d' % P['TSLEEP'])
            g.I('s_branch %s' % lp)
            g.label(dn)
            g.vm_reset()
        else:
            poll_valid(g, ['buffer_load_dwordx2 %s, v%d, %s, s%d offen sc1' % (vr(PR, 2), vT3, sq(SRD_WS), sF)],
                       range(PR, PR + 2), vT1, sleep=P['TSLEEP'])
    stamp(g, 'pre_b5')
    g.I('s_barrier')
    loads = []
    g.I('v_lshlrev_b32 v%d, 3, v%d' % (vT0, vN))
    loads += ['buffer_load_dwordx2 %s, v%d, %s, s%d offen offset:%d sc1' % (vr(MLr + 2 * i, 2), vT0, sq(SRD_WS), sF, i * 128)
              for i in range(4)]
    g.I('v_lshlrev_b32 v%d, 6, v%d' % (vT2, vN))
    g.I('v_lshl_add_u32 v%d, v%d, 4, v%d' % (vT2, vJ, vT2))
    g.I('s_lshl_b32 s%d, s%d, 15' % (sA, sH))
    g.I('s_lshl_b32 s%d, s%d, 12' % (sB, sWAVE))
    g.I('s_add_u32 s%d, s%d, s%d' % (sA, sA, sB))
    g.I('s_add_u32 s%d, s%d, 0x%x' % (sA, sA, WS_AP))
    loads += ['buffer_load_dwordx4 %s, v%d, %s, s%d offen offset:%d sc1' % (vr(AD + 4 * i), vT2, sq(SRD_WS), sA, i * 1024)
              for i in range(4)]
    poll_valid(g, loads, range(MLr, MLr + 24), vT1, plain_first=True)
    stamp(g, 'ml_ok')
    g.I('v_max3_f32 v%d, v%d, v%d, v%d' % (vM, MLr, MLr + 2, MLr + 4))
    g.I('v_max_f32 v%d, v%d, v%d' % (vM, vM, MLr + 6))
    row_allreduce(g, 'v_max_f32', vM)
    for i in range(4):
        m = MLr + 2 * i
        g.I('v_sub_f32 v%d, v%d, v%d' % (m, m, vM))
        g.I('v_mul_f32 v%d, s%d, v%d' % (m, sLOG2E, m))
        g.I('v_exp_f32 v%d, v%d' % (m, m))
    OC = QF
    for i in range(4):
        m = MLr + 2 * i
        op = 'v_mul_f32' if i == 0 else 'v_fmac_f32'
        g.I('%s v%d, v%d, v%d' % (op, vL, m, m + 1))
        for c in range(4):
            g.I('%s v%d, v%d, v%d' % (op, OC + c, m, AD + 4 * i + c))
    row_allreduce_multi(g, 'v_add_f32', [vL, OC, OC + 1, OC + 2, OC + 3])
    g.I('v_rcp_f32 v%d, v%d' % (vT0, vL))
    for c in range(4):
        x = OC + c
        g.I('v_mul_f32 v%d, v%d, v%d' % (vT1, x, vT0))
        g.I('v_fma_f32 v%d, -v%d, v%d, v%d' % (vT5, vT1, vL, x))
        g.I('v_fma_f32 v%d, v%d, v%d, v%d' % (x, vT5, vT0, vT1))
    OFR = QF + 4
    g.I('v_cvt_pk_bf16_f32 v%d, v%d, v%d' % (OFR, OC, OC + 1))
    g.I('v_cvt_pk_bf16_f32 v%d, v%d, v%d' % (OFR + 1, OC + 2, OC + 3))
    WOA = OA
    tile16(g, WOR, OFR, WOA)
    stamp(g, 'wo_done')
    F = VA
    for dd in range(8):
        g.I('v_mov_b32 v%d, v%d' % (F + dd, WOA + 4 * dd))
    for dd in range(8):
        if w0:
            g.I('v_mov_b32 v%d, 0' % (F + 8 + dd))
        else:
            g.I('v_mov_b32 v%d, v%d' % (F + 8 + dd, WDG + dd))
    g.I('s_lshl_b32 s%d, s%d, 10' % (sA, sWAVE))
    g.I('v_lshlrev_b32 v%d, 5, v%d' % (vT0, vN))
    g.I('v_add_u32 v%d, s%d, v%d' % (vT0, sA, vT0))
    g.I('s_mov_b64 exec, 0xffff')
    g.I('ds_write_b128 v%d, %s offset:%d' % (vT0, vr(F), L_FR))
    g.I('ds_write_b128 v%d, %s offset:%d' % (vT0, vr(F + 4), L_FR + 16))
    g.I('ds_write_b128 v%d, %s offset:%d' % (vT0, vr(F + 8), L_FR + 512))
    g.I('ds_write_b128 v%d, %s offset:%d' % (vT0, vr(F + 12), L_FR + 528))
    g.I('s_mov_b64 exec, -1')
    g.I('s_waitcnt lgkmcnt(0)')
    g.I('s_barrier')
    stamp(g, 'b4')
    if not w0:
        stamp_store(g)
        g.I('s_endpgm')
        return
    g.I('s_lshl_b32 s%d, s%d, 8' % (sF, sCB))
    g.I('s_lshl_b32 s%d, s%d, 3' % (sB, sH))
    g.I('s_add_u32 s%d, s%d, s%d' % (sF, sF, sB))
    XV = QF + 8
    g.vmem('buffer_load_dwordx2 %s, v%d, %s, s%d offen' % (vr(XV, 2), vZERO, sq(SRD_X), sF), 'xv')
    RD = KR
    for w in range(8):
        g.I('ds_read_b128 %s, v%d offset:%d' % (vr(RD + 4 * w), vVOFF, L_FR + w * 1024))
    g.I('s_waitcnt lgkmcnt(0)')
    for w in range(1, 8):
        for c in range(4):
            g.I('v_add_f32 v%d, v%d, v%d' % (RD + c, RD + c, RD + 4 * w + c))
    g.I('s_lshl_b32 s%d, s%d, 15' % (sA, sCB))
    g.I('s_add_u32 s%d, s%d, 0x%x' % (sA, sA, WS_FP))
    g.I('s_lshl_b32 s%d, s%d, 10' % (sB, sH))
    g.I('s_add_u32 s%d, s%d, s%d' % (sB, sA, sB))
    g.vmem('buffer_store_dwordx4 %s, v%d, %s, s%d offen sc1' % (vr(RD), vVOFF, sq(SRD_WS), sB), 'fp')
    g.I('v_and_b32 v%d, 31, v%d' % (vT0, vLANE))
    g.I('v_lshlrev_b32 v%d, 10, v%d' % (vT0, vT0))
    g.I('v_lshrrev_b32 v%d, 5, v%d' % (vT1, vLANE))
    g.I('v_lshl_add_u32 v%d, v%d, 9, v%d' % (vT0, vT1, vT0))
    g.I('s_lshl_b32 s%d, s%d, 4' % (sB, sH))
    g.I('s_add_u32 s%d, s%d, s%d' % (sA, sA, sB))
    FD = KR + 32
    poll_valid(g, ['buffer_load_dwordx4 %s, v%d, %s, s%d offen sc1' % (vr(FD), vT0, sq(SRD_WS), sA)], range(FD, FD + 4), vT1)
    row_allreduce_multi(g, 'v_add_f32', [FD + c for c in range(4)])
    FE = FD + 4
    for c in range(4):
        g.I('v_mov_b32 v%d, v%d' % (FE + c, FD + c))
    for c in range(4):
        g.I('v_permlane16_swap_b32 v%d, v%d' % (FD + c, FE + c))
    for c in range(4):
        g.I('v_add_f32 v%d, v%d, v%d' % (FD + c, FD + c, FE + c))
    for c in range(4):
        g.I('v_mov_b32 v%d, v%d' % (FE + c, FD + c))
    for c in range(4):
        g.I('v_permlane32_swap_b32 v%d, v%d' % (FD + c, FE + c))
    XF = FD + 8
    for d in range(2):
        g.I('v_lshlrev_b32 v%d, 16, v%d' % (XF + 2 * d, XV + d))
        g.I('v_and_b32 v%d, 0xffff0000, v%d' % (XF + 2 * d + 1, XV + d))
    for c in range(0, 4, 2):
        bf_round2(g, FD + c, FD + c + 1, vT0)
        bf_round2(g, FE + c, FE + c + 1, vT0)
    for c in range(4):
        g.I('v_add_f32 v%d, v%d, v%d' % (FD + c, FD + c, XF + c))
    for c in range(0, 4, 2):
        bf_round2(g, FD + c, FD + c + 1, vT0)
    for c in range(4):
        g.I('v_add_f32 v%d, v%d, v%d' % (FD + c, FD + c, FE + c))
    g.I('v_cvt_pk_bf16_f32 v%d, v%d, v%d' % (XF, FD, FD + 1))
    g.I('v_cvt_pk_bf16_f32 v%d, v%d, v%d' % (XF + 1, FD + 2, FD + 3))
    g.I('s_mov_b64 exec, 1')
    g.I('buffer_store_dwordx2 %s, v%d, %s, s%d offen' % (vr(XF, 2), vZERO, sq(SRD_OUT), sF))
    stamp(g, 'end')
    stamp_store(g, True)
    g.I('s_endpgm')


def build():
    g = Gen()
    hdr = open('cdna_kernels/%s.s.ref' % NAME).read().split('\n')
    out = []
    for ln in hdr:
        if ln.startswith('; @launch'):
            out.append('; @launch grid=(256,1,1) block=(512,1,1) lds=%d' % LDS_BYTES)
        elif ln.startswith(';'):
            out.append(ln)
        else:
            break
    out.append('.amdgcn_target "amdgcn-amd-amdhsa--gfx950"')
    out.append('.text')
    out.append('.globl %s_kernel' % NAME)
    out.append('.p2align 8')
    out.append('.type %s_kernel,@function' % NAME)
    out.append('%s_kernel:' % NAME)
    g.I('s_cmp_ge_u32 s2, 256')
    g.I('s_cbranch_scc1 L_end')
    g.I('s_load_dwordx16 s[8:23], s[0:1], 0')
    g.I('s_load_dwordx8 s[24:31], s[0:1], 64')
    if P['REMAP'] == 2:
        g.I('s_and_b32 s%d, s2, 7' % sT)
        g.I('s_lshl_b32 s%d, s%d, 3' % (sT, sT))
        g.I('s_lshr_b32 s%d, s2, 3' % sT2)
        g.I('s_and_b32 s2, s%d, 7' % sT2)
        g.I('s_add_u32 s2, s2, s%d' % sT)
        g.I('s_lshr_b32 s%d, s%d, 3' % (sT2, sT2))
        g.I('s_lshl_b32 s%d, s%d, 6' % (sT2, sT2))
        g.I('s_add_u32 s2, s2, s%d' % sT2)
    elif P['REMAP']:
        g.I('s_and_b32 s%d, s2, 7' % sT)
        g.I('s_lshl_b32 s%d, s%d, 5' % (sT, sT))
        g.I('s_lshr_b32 s2, s2, 3')
        g.I('s_add_u32 s2, s2, s%d' % sT)
    g.I('v_lshrrev_b32 v1, 6, v0')
    g.I('v_and_b32 v0, 63, v0')
    g.I('v_readfirstlane_b32 s%d, v1' % sWAVE)
    g.I('v_and_b32 v%d, 15, v0' % vN)
    g.I('v_lshrrev_b32 v%d, 4, v0' % vJ)
    if P['KL'] == 2:
        g.I('v_bfe_u32 v%d, v%d, 1, 1' % (vKOFF, vN))
        g.I('v_lshlrev_b32 v%d, 19, v%d' % (vKOFF, vKOFF))
        g.I('v_and_b32 v%d, 1, v%d' % (vT0, vN))
        g.I('v_lshl_add_u32 v%d, v%d, 6, v%d' % (vKOFF, vT0, vKOFF))
    else:
        g.I('v_and_b32 v%d, 3, v%d' % (vKOFF, vN))
        g.I('v_lshlrev_b32 v%d, %d, v%d' % (vKOFF, 19 if P['ILV'] == 2 else 10, vKOFF))
    g.I('v_lshrrev_b32 v%d, 2, v%d' % (vT0, vN))
    g.I('v_lshl_add_u32 v%d, v%d, 8, v%d' % (vKOFF, vT0, vKOFF))
    g.I('v_lshl_add_u32 v%d, v%d, 4, v%d' % (vKOFF, vJ, vKOFF))
    g.I('v_lshlrev_b32 v%d, 4, v0' % vVOFF)
    g.I('v_mov_b32 v%d, 0' % vZERO)
    if P['ILV']:
        sh = 3 if P['ILV'] == 2 else 0
        g.I('s_lshr_b32 s%d, s2, 6' % sKV)
        g.I('s_lshl_b32 s%d, s%d, 24' % (sKV, sKV))
        g.I('s_and_b32 s%d, s2, 63' % sT)
        g.I('s_lshl_b32 s%d, s%d, %d' % (sT, sT, 16 - sh))
        g.I('s_add_u32 s%d, s%d, s%d' % (sKV, sKV, sT))
        g.I('s_lshl_b32 s%d, s%d, %d' % (sT, sWAVE, 13 - sh))
        g.I('s_add_u32 s%d, s%d, s%d' % (sKV, sKV, sT))
    else:
        g.I('s_lshl_b32 s%d, s2, 18' % sKV)
        g.I('s_lshl_b32 s%d, s%d, 15' % (sT, sWAVE))
        g.I('s_add_u32 s%d, s%d, s%d' % (sKV, sKV, sT))
    g.I('s_lshr_b32 s%d, s2, 3' % sH)
    g.I('s_and_b32 s%d, s2, 7' % sCB)
    g.I('s_lshr_b32 s%d, s2, 6' % sG)
    g.I('s_mov_b32 s%d, 0' % sCNT)
    g.I('s_mov_b32 s%d, 0x05040100' % sSEL0)
    g.I('s_mov_b32 s%d, 0x07060302' % sSEL1)
    g.I('s_mov_b32 s%d, %s' % (sSCALE, f32(128 ** -0.5)))
    g.I('s_mov_b32 s%d, %s' % (sLOG2E, f32(1.4426950408889634)))
    g.I('s_waitcnt lgkmcnt(0)')
    srd(g, SRD_K, 10, 1 << 26)
    srd(g, SRD_V, 12, 1 << 26)
    srd(g, SRD_X, 8, 2048)
    srd(g, SRD_WQ, 14, 1 << 23)
    srd(g, SRD_WO, 16, 1 << 23)
    g.I('s_cmp_lt_u32 s%d, 4' % sCB)
    g.I('s_cselect_b32 s%d, s20, s22' % SRD_GU)
    g.I('s_cselect_b32 s%d, s21, s23' % (SRD_GU + 1))
    g.I('s_and_b32 s%d, s%d, 0xffff' % (SRD_GU + 1, SRD_GU + 1))
    g.I('s_mov_b32 s%d, 0x%x' % (SRD_GU + 2, 1024 * 3584 * 2))
    g.I('s_mov_b32 s%d, 0x00020000' % (SRD_GU + 3))
    srd(g, SRD_WD, 24, 3584 * 1024 * 2)
    srd(g, SRD_OUT, 26, 2048)
    srd(g, SRD_DBG, 28, 256)
    srd(g, SRD_WS, 30, WS_SIZE)
    g.I('v_mov_b32 v%d, 0' % vST)
    stamp(g, 'entry')
    g.I('s_cmp_eq_u32 s%d, 0' % sWAVE)
    g.I('s_cbranch_scc1 L_wave0')
    g.fence()
    for dup in range(1, P.get('DUP', 1)):
        g.I('s_and_b32 s%d, s%d, %d' % (sA, sWAVE, P['DUP'] - 1))
        g.I('s_cmp_eq_u32 s%d, %d' % (sA, dup))
        g.I('s_cbranch_scc1 L_dup%d' % dup)
    main_path(g, False)
    for dup in range(1, P.get('DUP', 1)):
        g.label('L_dup%d' % dup)
        g.vm_reset()
        main_path(g, False)
    g.label('L_wave0')
    g.vm_reset()
    prologue_wave0(g)
    main_path(g, True)
    g.label('L_end')
    g.I('s_endpgm')
    out.append(g.text())
    out.append('.section .rodata,"a"')
    out.append('.p2align 6')
    out.append('.amdhsa_kernel %s_kernel' % NAME)
    out.append('  .amdhsa_next_free_vgpr 256')
    out.append('  .amdhsa_next_free_sgpr 102')
    out.append('  .amdhsa_accum_offset 256')
    out.append('  .amdhsa_group_segment_fixed_size 0')
    out.append('  .amdhsa_kernarg_size 96')
    out.append('  .amdhsa_user_sgpr_count 2')
    out.append('  .amdhsa_user_sgpr_kernarg_segment_ptr 1')
    out.append('  .amdhsa_system_sgpr_workgroup_id_x 1')
    out.append('  .amdhsa_float_denorm_mode_32 3')
    out.append('.end_amdhsa_kernel')
    return '\n'.join(out) + '\n'


if __name__ == '__main__':
    dst = sys.argv[1] if len(sys.argv) > 1 else 'cdna_kernels/%s.s' % NAME
    open(dst, 'w').write(build())
    print('wrote', dst)
    if P.get('STAMPS'):
        open(dst + '.stamps', 'w').write('\n'.join(STAMP_NAMES))
```

```python
import sys
import struct
from dsl import Gen

NAME = 'parallel_sum__gqa_block_cached__geglu_ffn__decode'

P = dict(
    W=4,
    W0=8,
    WP=16,
    WT=8,
    NT=' nt',
    SLEEP=1, QSLEEP=4, TSLEEP=4,
    KG=16,
    QPOS=6, QPOS0=8,
    TH=2,
    KP=16,
    THR=4,
    GL=0,
    STAMPS=0,
    SKIP=0,
    DEL=0,
)
for a in sys.argv[2:]:
    k, v = a.split('=')
    P[k] = int(v) if v.lstrip('-').isdigit() else v


def f32(x):
    return '0x%08x' % struct.unpack('<I', struct.pack('<f', x))[0]


L_XN = 0
L_Q = 2048
L_FLAG = 4096
L_OW = 8192
L_ML = L_OW + 8 * 4224
L_FR = L_ML + 512
L_GB = L_FR + 8192
L_HB = L_GB + 3584
LDS_BYTES = L_HB + 256
L_CNT = L_FLAG + 4

WS_QP = 0
WS_AP = 0x100000
WS_ML = 0x200000
WS_GP = 0x300000
WS_FP = 0x400000
WS_FL = 0x470000
WS_ST = 0x480000
WS_SIZE = 0x500000

sWAVE, sKV, sT, sT2, sCNT = 3, 4, 5, 6, 7
SRD_K, SRD_V, SRD_WQ, SRD_WO, SRD_GU, SRD_WD, SRD_WS, SRD_X, SRD_OUT, SRD_DBG = 32, 36, 40, 44, 48, 52, 56, 60, 64, 68
sSEL0, sSEL1, sSCALE, sLOG2E = 72, 73, 74, 75
sH, sCB, sG = 76, 77, 78
sA, sB, sC, sD, sE, sF = 80, 81, 82, 83, 84, 85
sEX = 86
sN0, sN1 = 98, 99

vLANE, vN, vJ = 0, 2, 3
vKOFF, vVOFF = 4, 5
vT0, vT1, vT2, vT3, vT4, vT5 = 6, 7, 8, 9, 10, 11
vZERO, vST = 12, 13
vM, vL = 14, 15
QF, SA, VA, KR = 16, 32, 64, 128
OA, PT, PF = 192, 224, 240

SPIN_MAX = 200000
STAMP_NAMES = []


def srd(g, d, ptr, size):
    g.I('s_mov_b32 s%d, s%d' % (d, ptr))
    g.I('s_and_b32 s%d, s%d, 0xffff' % (d + 1, ptr + 1))
    g.I('s_mov_b32 s%d, 0x%x' % (d + 2, size))
    g.I('s_mov_b32 s%d, 0x00020000' % (d + 3))


def vr(a, n=4):
    return 'v[%d:%d]' % (a, a + n - 1)


def sq(d):
    return 's[%d:%d]' % (d, d + 3)


def row_allreduce(g, op, vs):
    for r in (1, 2, 4, 8):
        for v in vs:
            g.I('%s_dpp v%d, v%d, v%d row_ror:%d row_mask:0xf bank_mask:0xf' % (op, v, v, v, r))


def xrow_allreduce(g, op, v, t):
    g.I('v_mov_b32 v%d, v%d' % (t, v))
    g.I('v_permlane16_swap_b32 v%d, v%d' % (v, t))
    g.I('%s v%d, v%d, v%d' % (op, v, v, t))
    g.I('v_mov_b32 v%d, v%d' % (t, v))
    g.I('v_permlane32_swap_b32 v%d, v%d' % (v, t))
    g.I('%s v%d, v%d, v%d' % (op, v, v, t))


def bf_round(g, v, t):
    g.I('v_cvt_pk_bf16_f32 v%d, v%d, v%d' % (t, v, v))
    g.I('v_lshlrev_b32 v%d, 16, v%d' % (v, t))


def bf_round2(g, a, b, t):
    g.I('v_cvt_pk_bf16_f32 v%d, v%d, v%d' % (t, a, b))
    g.I('v_lshlrev_b32 v%d, 16, v%d' % (a, t))
    g.I('v_and_b32 v%d, 0xffff0000, v%d' % (b, t))


def tile32(g, R, frag, acc, first, frag_is_A=False, PT=PT):
    def perms(dd):
        t = PT + (dd & 3) * 4
        for q in range(4):
            g.I('v_perm_b32 v%d, v%d, v%d, s%d' % (t + q, R + (2 * q + 1) * 4 + (dd >> 1), R + (2 * q) * 4 + (dd >> 1),
                                                  sSEL1 if dd & 1 else sSEL0))
    perms(0)
    for dd in range(8):
        if dd < 7:
            perms(dd + 1)
        t = PT + (dd & 3) * 4
        c = '0' if first else vr(acc + 4 * dd)
        if frag_is_A:
            g.I('v_mfma_f32_16x16x32_bf16 %s, %s, %s, %s' % (vr(acc + 4 * dd), vr(frag), vr(t), c))
        else:
            g.I('v_mfma_f32_16x16x32_bf16 %s, %s, %s, %s' % (vr(acc + 4 * dd), vr(t), vr(frag), c))


def tile16g(g, R, frag, rot, out):
    def perms(dd):
        t = PT + (dd & 3) * 4
        for q in range(2):
            g.I('v_perm_b32 v%d, v%d, v%d, s%d' % (t + q, R + (2 * q + 1) * 4 + (dd >> 1), R + (2 * q) * 4 + (dd >> 1),
                                                  sSEL1 if dd & 1 else sSEL0))
    perms(0)
    perms(1)
    for dd in range(8):
        if dd < 6:
            perms(dd + 2)
        if dd >= 4:
            g.I('v_mov_b32 v%d, v%d' % (out + dd - 4, rot + 4 * (dd & 3)))
        t = PT + (dd & 3) * 4
        g.I('v_mfma_f32_16x16x16_bf16 %s, %s, %s, 0' % (vr(rot + 4 * (dd & 3)), vr(frag, 2), vr(t, 2)))
    for dd in range(4, 8):
        g.I('v_mov_b32 v%d, v%d' % (out + dd, rot + 4 * (dd & 3)))


def stamp(g, name):
    if not P['STAMPS']:
        return
    if name not in STAMP_NAMES:
        STAMP_NAMES.append(name)
    g.I('s_memrealtime s[88:89]')
    g.I('s_waitcnt lgkmcnt(0)')
    g.I('v_writelane_b32 v%d, s88, %d' % (vST, STAMP_NAMES.index(name)))


def stamp_store(g):
    if not P['STAMPS']:
        return
    g.I('s_mov_b64 exec, -1')
    g.I('s_lshl_b32 s88, s2, 11')
    g.I('s_lshl_b32 s89, s%d, 8' % sWAVE)
    g.I('s_add_u32 s88, s88, s89')
    g.I('s_add_u32 s88, s88, 0x%x' % WS_ST)
    g.I('v_lshlrev_b32 v1, 2, v0')
    g.I('s_nop 4')
    g.I('buffer_store_dword v%d, v1, %s, s88 offen' % (vST, sq(SRD_WS)))


def spin_guard(g, done_label):
    g.I('s_add_u32 s%d, s%d, 1' % (sCNT, sCNT))
    g.I('s_cmp_ge_u32 s%d, %d' % (sCNT, SPIN_MAX))
    g.I('s_cbranch_scc1 %s' % done_label)


def umax_tree(g, rs, tmp):
    rs = list(rs)
    g.I('v_max_u32 v%d, v%d, v%d' % (tmp, rs[0], rs[1]))
    i = 2
    while i < len(rs):
        if i + 1 < len(rs):
            g.I('v_max3_u32 v%d, v%d, v%d, v%d' % (tmp, tmp, rs[i], rs[i + 1]))
            i += 2
        else:
            g.I('v_max_u32 v%d, v%d, v%d' % (tmp, tmp, rs[i]))
            i += 1


def poll_valid(g, loads, regs, tmp, sleep=None, thr=0):
    lp = g.newlabel('L_poll')
    dn = g.newlabel('L_polld')
    g.label(lp)
    for t in loads:
        g.I(t)
    g.I('s_waitcnt vmcnt(0)')
    umax_tree(g, regs, tmp)
    g.I('v_cmp_eq_u32 vcc, -1, v%d' % tmp)
    if thr:
        g.I('s_nop 3')
        g.I('s_bcnt1_i32_b64 s%d, vcc' % sA)
        g.I('s_cmp_le_u32 s%d, %d' % (sA, thr))
        g.I('s_cbranch_scc1 %s' % dn)
    else:
        g.I('s_cbranch_vccz %s' % dn)
    spin_guard(g, dn)
    g.I('s_sleep %d' % (P['SLEEP'] if sleep is None else sleep))
    g.I('s_branch %s' % lp)
    g.label(dn)
    g.vm_reset()


def flag_poll(g, bases):
    if P['SKIP'] & 2:
        return
    lp = g.newlabel('L_fpoll')
    dn = g.newlabel('L_fpolld')
    g.label(lp)
    for i, sb in enumerate(bases):
        g.I('buffer_load_dwordx2 %s, v%d, %s, s%d offen sc1' % (vr(16 + 2 * i, 2), vT3, sq(SRD_WS), sb))
    g.I('s_waitcnt vmcnt(0)')
    for i in range(len(bases)):
        g.I('v_xor_b32 v%d, s%d, v%d' % (16 + 2 * i, sN0, 16 + 2 * i))
        g.I('v_xor_b32 v%d, s%d, v%d' % (17 + 2 * i, sN1, 17 + 2 * i))
    for i in range(1, 2 * len(bases)):
        g.I('v_or_b32 v16, v16, v%d' % (16 + i))
    g.I('v_cmp_ne_u32 vcc, 0, v16')
    g.I('s_cbranch_vccz %s' % dn)
    spin_guard(g, dn)
    g.I('s_sleep %d' % P['QSLEEP'])
    g.I('s_branch %s' % lp)
    g.label(dn)
    g.vm_done = len(g.vm)


def wait_flag(g, val, off=None):
    lp = g.newlabel('L_fl')
    dn = g.newlabel('L_fld')
    g.label(lp)
    g.I('ds_read_b32 v%d, v%d offset:%d' % (vT0, vZERO, L_FLAG if off is None else off))
    g.I('s_waitcnt lgkmcnt(0)')
    g.I('v_readfirstlane_b32 s%d, v%d' % (sA, vT0))
    g.I('s_nop 3')
    g.I('s_cmp_ge_u32 s%d, %d' % (sA, val))
    g.I('s_cbranch_scc1 %s' % dn)
    spin_guard(g, dn)
    g.I('s_sleep 1')
    g.I('s_branch %s' % lp)
    g.label(dn)


def kload(g, n, W):
    X = n >> 1
    g.I('s_add_u32 s%d, s%d, 0x%x' % (sT, sKV, X << 20))
    g.vmem('buffer_load_dwordx4 %s, v%d, %s, s%d offen offset:%d%s' % (vr(KR + n * 4), vKOFF, sq(SRD_K), sT, (n & 1) * 128, P['NT']),
           'k%d' % X, W)


def prologue_wave0(g):
    orig = g.vmem
    ow = g.vm_wait
    def vm2(text, tag=None, window=None):
        if (tag == 'clr' and P['SKIP'] & 1) or (tag and tag.startswith('q') and tag != 'qp' and P['SKIP'] & 2) or (tag and tag.startswith('wq') and P['SKIP'] & 16):
            return
        orig(text, tag, window)
    def w2(tag):
        if tag not in g.vm:
            g.vm_wait_all()
            return
        ow(tag)
    g.vmem = vm2
    g.vm_wait = w2
    nt = P['NT']
    W0 = P['W0']
    g.I('v_lshlrev_b32 v%d, 5, v%d' % (vT0, vLANE))
    g.vmem('buffer_load_dwordx4 %s, v%d, %s, 0 offen' % (vr(16), vT0, sq(SRD_X)), 'x')
    g.vmem('buffer_load_dwordx4 %s, v%d, %s, 0 offen offset:16' % (vr(20), vT0, sq(SRD_X)), 'x')
    lb = g.newlabel('L_nonce')
    g.I('s_cmp_lg_u32 s2, 0')
    g.I('s_cbranch_scc1 %s' % lb)
    g.I('s_memrealtime s[%d:%d]' % (sN0, sN1))
    g.I('s_waitcnt lgkmcnt(0)')
    g.I('s_or_b32 s%d, s%d, 1' % (sN0, sN0))
    g.I('v_mov_b32 v28, s%d' % sN0)
    g.I('v_mov_b32 v29, s%d' % sN1)
    g.I('s_mov_b64 exec, 1')
    g.I('buffer_store_dwordx2 v[28:29], v%d, %s, 0 offen offset:8 sc1' % (vZERO, sq(SRD_DBG)))
    g.I('s_mov_b64 exec, -1')
    g.I('s_waitcnt vmcnt(0)')
    g.label(lb)
    g.vm_done = 0
    g.I('v_lshlrev_b32 v%d, 16, v%d' % (vT1, vJ))
    g.I('v_lshl_add_u32 v%d, v%d, 4, v%d' % (vT1, vN, vT1))
    g.I('s_lshl_b32 s%d, s%d, 20' % (sA, sCB))
    g.I('s_lshl_b32 s%d, s%d, 8' % (sB, sH))
    g.I('s_add_u32 s%d, s%d, s%d' % (sA, sA, sB))
    for T in range(4):
        for e in range(8):
            g.I('s_add_u32 s%d, s%d, 0x%x' % (sT, sA, (32 * T + e) * 8192))
            g.vmem('buffer_load_dwordx4 %s, v%d, %s, s%d offen%s' % (vr(KR + (T * 8 + e) * 4), vT1, sq(SRD_WQ), sT, nt),
                   'wq%d' % T, P['WP'])
    for i in range(4):
        g.I('v_mov_b32 v%d, -1' % (24 + i))
    g.I('s_lshl_b32 s%d, s2, 12' % sA)
    g.I('s_add_u32 s%d, s%d, 0x%x' % (sA, sA, WS_AP))
    for i in range(4):
        g.vmem('buffer_store_dwordx4 %s, v%d, %s, s%d offen offset:%d sc1' % (vr(24), vVOFF, sq(SRD_WS), sA, i * 1024), 'clr')
    g.I('s_mul_i32 s%d, s%d, 28672' % (sA, sH))
    g.I('s_mul_i32 s%d, s%d, 3584' % (sB, sCB))
    g.I('s_add_u32 s%d, s%d, s%d' % (sA, sA, sB))
    g.I('s_add_u32 s%d, s%d, 0x%x' % (sA, sA, WS_GP))
    for i in range(3):
        g.vmem('buffer_store_dwordx4 %s, v%d, %s, s%d offen offset:%d sc1' % (vr(24), vVOFF, sq(SRD_WS), sA, i * 1024), 'clr')
    g.I('s_mov_b32 exec_hi, 0')
    g.vmem('buffer_store_dwordx4 %s, v%d, %s, s%d offen offset:%d sc1' % (vr(24), vVOFF, sq(SRD_WS), sA, 3072), 'clr')
    g.I('s_mov_b64 exec, 0xf')
    g.I('s_lshl_b32 s%d, s2, 6' % sA)
    g.I('s_add_u32 s%d, s%d, 0x%x' % (sA, sA, WS_ML))
    g.vmem('buffer_store_dwordx4 %s, v%d, %s, s%d offen sc1' % (vr(24), vVOFF, sq(SRD_WS), sA), 'clr')
    g.I('s_mov_b64 exec, -1')
    g.I('s_lshl_b32 s%d, s2, 10' % sA)
    g.I('s_add_u32 s%d, s%d, 0x%x' % (sA, sA, WS_FP))
    g.vmem('buffer_store_dwordx4 %s, v%d, %s, s%d offen sc1' % (vr(24), vVOFF, sq(SRD_WS), sA), 'clr')
    g.I('ds_write_b32 v%d, v%d offset:%d' % (vZERO, vZERO, L_FLAG))
    g.I('ds_write_b32 v%d, v%d offset:%d' % (vZERO, vZERO, L_CNT))
    g.I('s_waitcnt lgkmcnt(0)')
    g.I('s_barrier')
    stamp(g, 'w0_issued')
    g.vm_wait('x')
    X = SA
    for d in range(8):
        g.I('v_lshlrev_b32 v%d, 16, v%d' % (X + 2 * d, 16 + d))
        g.I('v_and_b32 v%d, 0xffff0000, v%d' % (X + 2 * d + 1, 16 + d))
    S = 48
    g.I('v_add_f32 v%d, v%d, v%d' % (S, X, X + 1))
    for i in range(2, 16):
        g.I('v_add_f32 v%d, v%d, v%d' % (S, S, X + i))

    def wave_sum(v):
        row_allreduce(g, 'v_add_f32', [v])
        xrow_allreduce(g, 'v_add_f32', v, 49)
    wave_sum(S)
    MEAN, D, VAR, SD, RC = 50, 51, 52, 54, 55
    g.I('v_mul_f32 v%d, %s, v%d' % (MEAN, f32(1.0 / 1024), S))
    g.I('v_mov_b32 v%d, 0' % S)
    for i in range(16):
        g.I('v_sub_f32 v%d, v%d, v%d' % (D, X + i, MEAN))
        g.I('v_fmac_f32 v%d, v%d, v%d' % (S, D, D))
    wave_sum(S)
    g.I('v_mul_f32 v%d, %s, v%d' % (VAR, f32(1.0 / 1024), S))
    bf_round(g, MEAN, 53)
    bf_round(g, VAR, 53)
    g.I('v_add_f32 v%d, %s, v%d' % (VAR, f32(1e-5), VAR))
    bf_round(g, VAR, 53)
    g.I('v_sqrt_f32 v%d, v%d' % (SD, VAR))
    g.I('v_rcp_f32 v%d, v%d' % (55, SD))
    g.I('v_fma_f32 v%d, -v%d, v%d, v%d' % (56, SD, SD, VAR))
    g.I('v_mul_f32 v%d, 0.5, v%d' % (55, 55))
    g.I('v_fmac_f32 v%d, v%d, v%d' % (SD, 56, 55))
    bf_round(g, SD, 53)
    g.I('v_rcp_f32 v%d, v%d' % (RC, SD))
    for d in range(8):
        a, b = X + 2 * d, X + 2 * d + 1
        g.I('v_sub_f32 v%d, v%d, v%d' % (a, a, MEAN))
        g.I('v_sub_f32 v%d, v%d, v%d' % (b, b, MEAN))
        bf_round2(g, a, b, 53)
        for x in (a, b):
            g.I('v_mul_f32 v%d, v%d, v%d' % (56, x, RC))
            g.I('v_fma_f32 v%d, -v%d, v%d, v%d' % (57, 56, SD, x))
            g.I('v_fma_f32 v%d, v%d, v%d, v%d' % (x, 57, RC, 56))
        g.I('v_cvt_pk_bf16_f32 v%d, v%d, v%d' % (16 + d, a, b))
    g.I('ds_write_b128 v%d, %s offset:%d' % (vT0, vr(16), L_XN))
    g.I('ds_write_b128 v%d, %s offset:%d' % (vT0, vr(20), L_XN + 16))
    g.I('v_lshlrev_b32 v%d, 4, v%d' % (vT2, vJ))
    g.I('s_lshl_b32 s%d, s%d, 8' % (sA, sCB))
    g.I('v_add_u32 v%d, s%d, v%d' % (vT2, sA, vT2))
    g.I('s_waitcnt lgkmcnt(0)')
    g.vm_wait('clr')
    for T in range(4):
        g.I('ds_read_b128 %s, v%d offset:%d' % (vr(16 + 4 * T), vT2, L_XN + 64 * T))
    g.I('v_mov_b32 v%d, 1' % vT3)
    g.I('ds_write_b32 v%d, v%d offset:%d' % (vZERO, vT3, L_FLAG))
    g.I('s_waitcnt lgkmcnt(0)')
    ACC = SA
    for T in range(4):
        tile32(g, KR + T * 32, 16 + 4 * T, ACC, T == 0, frag_is_A=True, PT=VA)
    for dd in range(8):
        g.I('v_mov_b32 v%d, v%d' % (16 + dd, ACC + 4 * dd))
    stamp(g, 'w0_qproj')
    g.I('v_lshlrev_b32 v%d, 5, v%d' % (vT2, vN))
    g.I('s_lshl_b32 s%d, s%d, 15' % (sA, sG))
    g.I('s_lshl_b32 s%d, s%d, 12' % (sB, sCB))
    g.I('s_add_u32 s%d, s%d, s%d' % (sA, sA, sB))
    g.I('s_and_b32 s%d, s%d, 7' % (sB, sH))
    g.I('s_lshl_b32 s%d, s%d, 9' % (sB, sB))
    g.I('s_add_u32 s%d, s%d, s%d' % (sB, sA, sB))
    g.I('s_mov_b64 exec, 0xffff')
    g.vmem('buffer_store_dwordx4 %s, v%d, %s, s%d offen sc1' % (vr(16), vT2, sq(SRD_WS), sB), 'qp')
    g.vmem('buffer_store_dwordx4 %s, v%d, %s, s%d offen offset:16 sc1' % (vr(20), vT2, sq(SRD_WS), sB), 'qp')
    g.I('s_mov_b64 exec, -1')
    ok = g.newlabel('L_nok')
    lp = g.newlabel('L_npoll')
    g.label(lp)
    g.I('buffer_load_dwordx2 v[28:29], v%d, %s, 0 offen offset:8 sc1' % (vZERO, sq(SRD_DBG)))
    g.I('s_waitcnt vmcnt(0)')
    g.I('v_readfirstlane_b32 s%d, v28' % sN0)
    g.I('v_readfirstlane_b32 s%d, v29' % sN1)
    g.I('s_nop 3')
    g.I('s_cmp_lg_u32 s%d, 0' % sN0)
    g.I('s_cbranch_scc1 %s' % ok)
    spin_guard(g, ok)
    g.I('s_sleep 8')
    g.I('s_branch %s' % lp)
    g.label(ok)
    g.vm_reset()
    g.I('s_lshl_b32 s%d, s%d, 12' % (sF, sG))
    g.I('s_add_u32 s%d, s%d, 0x%x' % (sF, sF, WS_FL))
    g.I('s_and_b32 s%d, s2, 63' % sB)
    g.I('s_lshl_b32 s%d, s%d, 3' % (sB, sB))
    g.I('s_add_u32 s%d, s%d, s%d' % (sB, sB, sF))
    g.I('s_mov_b64 exec, 1')
    g.vmem('buffer_store_dwordx2 v[28:29], v%d, %s, s%d offen sc1' % (vZERO, sq(SRD_WS), sB), 'fl')
    g.I('s_mov_b64 exec, -1')
    stamp(g, 'w0_flag')
    for n in range(0, P['KP']):
        kload(g, n, W0)
    g.I('v_lshlrev_b32 v%d, 3, v%d' % (vT3, vLANE))
    flag_poll(g, [sF])
    stamp(g, 'w0_polled')
    g.I('s_lshl_b32 s%d, s%d, 15' % (sA, sG))
    QA = SA
    for half in range(2):
        for k4 in range(4):
            ks = half * 4 + k4
            g.I('s_add_u32 s%d, s%d, 0x%x' % (sT, sA, WS_QP + ks * 4096))
            for i in range(4):
                g.vmem('buffer_load_dwordx4 %s, v%d, %s, s%d offen offset:%d sc1' % (vr(VA + (k4 * 4 + i) * 4), vVOFF, sq(SRD_WS), sT, i * 1024),
                       'q%d' % ks)
        for k4 in range(4):
            ks = half * 4 + k4
            g.vm_wait('q%d' % ks)
            for r in range(16):
                if ks == 0:
                    g.I('v_mov_b32 v%d, v%d' % (QA + r, VA + r))
                else:
                    g.I('v_add_f32 v%d, v%d, v%d' % (QA + r, QA + r, VA + k4 * 16 + r))
    g.I('v_lshlrev_b32 v%d, 3, v%d' % (vT2, vLANE))
    for i in range(4):
        g.I('v_cvt_pk_bf16_f32 v%d, v%d, v%d' % (16 + 2 * i, QA + 4 * i, QA + 4 * i + 1))
        g.I('v_cvt_pk_bf16_f32 v%d, v%d, v%d' % (17 + 2 * i, QA + 4 * i + 2, QA + 4 * i + 3))
        g.I('ds_write_b64 v%d, %s offset:%d' % (vT2, vr(16 + 2 * i, 2), L_Q + i * 512))
    g.I('v_mov_b32 v%d, 2' % vT4)
    g.I('s_waitcnt lgkmcnt(0)')
    g.I('ds_write_b32 v%d, v%d offset:%d' % (vZERO, vT4, L_FLAG))
    for i in range(4):
        g.I('s_mov_b32 s%d, 0x%x' % (90 + i, WS_FL + i * 4096))
    flag_poll(g, [90, 91, 92, 93])
    g.I('v_mov_b32 v%d, 3' % vT4)
    g.I('ds_write_b32 v%d, v%d offset:%d' % (vZERO, vT4, L_FLAG))
    if P['DEL'] and not P['GL']:
        wait_flag(g, 7, L_CNT)
        for i in range(4):
            g.I('ds_read_b128 %s, v%d offset:%d' % (vr(16 + 4 * i), vVOFF, L_GB + i * 1024))
        g.I('s_mul_i32 s%d, s%d, 28672' % (sA, sH))
        g.I('s_mul_i32 s%d, s%d, 3584' % (sB, sCB))
        g.I('s_add_u32 s%d, s%d, s%d' % (sA, sA, sB))
        g.I('s_add_u32 s%d, s%d, 0x%x' % (sA, sA, WS_GP))
        g.I('s_waitcnt lgkmcnt(0)')
        for i in range(3):
            g.vmem('buffer_store_dwordx4 %s, v%d, %s, s%d offen offset:%d sc1' % (vr(16 + 4 * i), vVOFF, sq(SRD_WS), sA, i * 1024), 'gp')
        g.I('s_mov_b32 exec_hi, 0')
        g.vmem('buffer_store_dwordx4 %s, v%d, %s, s%d offen offset:%d sc1' % (vr(28), vVOFF, sq(SRD_WS), sA, 3072), 'gp')
        g.I('s_mov_b64 exec, -1')
        stamp(g, 'w0_gp')
    for n in range(P['KP'], 32):
        kload(g, n, W0)


def main_path(g, w0):
    W = P['W0'] if w0 else P['W']
    nt = P['NT']
    GL = P['GL']
    g.comment('---------------- main path (wave0=%s)' % w0)
    stamp(g, 'main_start')

    def vbase(T):
        return VA + 32 * T if T < 2 else KR + 32 * (T - 2)

    def vload(T, e):
        g.I('s_add_u32 s%d, s%d, 0x%x' % (sT2, sKV, (T * 8 + e) << 19))
        g.vmem('buffer_load_dwordx4 %s, v%d, %s, s%d offen%s' % (vr(vbase(T) + e * 4), vVOFF, sq(SRD_V), sT2, nt), 'v%d' % T, W)

    GR = VA

    def g_loads(win, b0=False):
        g.I('s_mov_b32 s%d, 57344' % sA)
        g.I('v_mul_lo_u32 v%d, v%d, s%d' % (vT2, vJ, sA))
        g.I('v_lshl_add_u32 v%d, v%d, 4, v%d' % (vT2, vN, vT2))
        g.I('s_mul_i32 s%d, s%d, %d' % (sA, sH, 32 * 7168))
        g.I('s_and_b32 s%d, s%d, 3' % (sB, sCB))
        g.I('s_mul_i32 s%d, s%d, 1792' % (sB, sB))
        g.I('s_add_u32 s%d, s%d, s%d' % (sA, sA, sB))
        g.I('s_lshl_b32 s%d, s%d, 8' % (sB, sWAVE))
        g.I('s_add_u32 s%d, s%d, s%d' % (sA, sA, sB))
        g.I('s_sub_u32 s%d, s%d, 256' % (sA, sA))
        for e in range(8):
            g.I('s_add_u32 s%d, s%d, %d' % (sT, sA, e * 7168))
            g.vmem('buffer_load_dwordx4 %s, v%d, %s, s%d offen%s' % (vr(GR + 4 * e), vT2, sq(SRD_GU), sT, nt), 'g', win)
            if b0 and e == min(win, 8) - 1:
                g.I('s_barrier')

    def g_tile(frag, acc, tmp, gat):
        g.I('v_lshlrev_b32 v%d, 4, v%d' % (vT0, vJ))
        g.I('s_lshl_b32 s%d, s%d, 6' % (sA, sH))
        g.I('v_add_u32 v%d, s%d, v%d' % (vT0, sA, vT0))
        g.I('ds_read_b128 %s, v%d offset:%d' % (vr(frag), vT0, L_XN))
        g.I('s_waitcnt lgkmcnt(0)')
        g.vm_wait('g')
        tile32(g, GR, frag, acc, True, frag_is_A=True, PT=tmp)
        for dd in range(8):
            g.I('v_mov_b32 v%d, v%d' % (gat + dd, acc + 4 * dd))
        if P['DEL'] and not GL:
            g.I('s_lshl_b32 s%d, s%d, 9' % (sB, sWAVE))
            g.I('v_lshlrev_b32 v%d, 5, v%d' % (vT0, vN))
            g.I('v_add_u32 v%d, s%d, v%d' % (vT0, sB, vT0))
            g.I('s_mov_b64 exec, 0xffff')
            g.I('ds_write_b128 v%d, %s offset:%d' % (vT0, vr(gat), L_GB - 512))
            g.I('ds_write_b128 v%d, %s offset:%d' % (vT0, vr(gat + 4), L_GB - 512 + 16))
            g.I('s_mov_b64 exec, 1')
            g.I('v_mov_b32 v%d, 1' % vT1)
            g.I('s_waitcnt lgkmcnt(0)')
            g.I('ds_add_u32 v%d, v%d offset:%d' % (vZERO, vT1, L_CNT))
            g.I('s_mov_b64 exec, -1')
            stamp(g, 'gu_done')
            return
        g.I('s_mul_i32 s%d, s%d, 28672' % (sA, sH))
        g.I('s_mul_i32 s%d, s%d, 3584' % (sB, sCB))
        g.I('s_add_u32 s%d, s%d, s%d' % (sA, sA, sB))
        g.I('s_lshl_b32 s%d, s%d, 9' % (sB, sWAVE))
        g.I('s_add_u32 s%d, s%d, s%d' % (sA, sA, sB))
        g.I('s_add_u32 s%d, s%d, 0x%x' % (sA, sA, WS_GP - 512))
        g.I('v_lshlrev_b32 v%d, 5, v%d' % (vT0, vN))
        g.I('s_mov_b64 exec, 0xffff')
        if not P['SKIP'] & 32:
            g.vmem('buffer_store_dwordx4 %s, v%d, %s, s%d offen sc1' % (vr(gat), vT0, sq(SRD_WS), sA), 'gp')
            g.vmem('buffer_store_dwordx4 %s, v%d, %s, s%d offen offset:16 sc1' % (vr(gat + 4), vT0, sq(SRD_WS), sA), 'gp')
        g.I('s_mov_b64 exec, -1')
        stamp(g, 'gu_done')

    def wd_loads(WDR, win):
        g.I('v_lshlrev_b32 v%d, 13, v%d' % (vT4, vJ))
        g.I('v_lshl_add_u32 v%d, v%d, 4, v%d' % (vT4, vN, vT4))
        g.I('s_mul_i32 s%d, s%d, 112' % (sA, sH))
        g.I('s_lshl_b32 s%d, s%d, 4' % (sB, sWAVE))
        g.I('s_add_u32 s%d, s%d, s%d' % (sA, sA, sB))
        g.I('s_sub_u32 s%d, s%d, 16' % (sE, sA))
        g.I('s_lshl_b32 s%d, s%d, 11' % (sA, sE))
        g.I('s_lshl_b32 s%d, s%d, 8' % (sB, sCB))
        g.I('s_add_u32 s%d, s%d, s%d' % (sA, sA, sB))
        for e in range(4):
            g.I('s_add_u32 s%d, s%d, %d' % (sT, sA, e * 2048))
            g.vmem('buffer_load_dwordx4 %s, v%d, %s, s%d offen%s' % (vr(WDR + 4 * e), vT4, sq(SRD_WD), sT, nt), 'wd', win)

    def h_load_list(HD):
        g.I('s_mov_b32 s%d, 28672' % sT)
        g.I('v_mul_lo_u32 v%d, v%d, s%d' % (vT5, vN, sT))
        g.I('v_lshl_add_u32 v%d, v%d, 4, v%d' % (vT5, vJ, vT5))
        g.I('s_lshl_b32 s%d, s%d, 2' % (90, sE))
        g.I('s_add_u32 s%d, s%d, 0x%x' % (90, 90, WS_GP))
        g.I('s_add_u32 s%d, s%d, %d' % (91, 90, 16 * 28672))
        g.I('s_add_u32 s%d, s%d, %d' % (92, 90, 14336))
        g.I('s_add_u32 s%d, s%d, %d' % (93, 90, 14336 + 16 * 28672))
        return ['buffer_load_dwordx4 %s, v%d, %s, s%d offen sc1' % (vr(HD + 4 * i), vT5, sq(SRD_WS), 90 + i) for i in range(4)]

    def h_compute(HD, HFR):
        GG, UU = HD, HD + 8
        for c in range(4):
            g.I('v_add_f32 v%d, v%d, v%d' % (GG + c, GG + c, GG + 4 + c))
            g.I('v_add_f32 v%d, v%d, v%d' % (UU + c, UU + c, UU + 4 + c))
        row_allreduce(g, 'v_add_f32', [GG + c for c in range(4)] + [UU + c for c in range(4)])
        for c in range(0, 4, 2):
            bf_round2(g, GG + c, GG + c + 1, vT0)
            bf_round2(g, UU + c, UU + c + 1, vT0)
        k0, k1 = 0.7978845608028654, 0.044715
        c2 = -2.0 * k0 * 1.4426950408889634
        for c in range(4):
            x, t = GG + c, GG + 4 + c
            g.I('v_mul_f32 v%d, v%d, v%d' % (t, x, x))
            g.I('v_mul_f32 v%d, v%d, v%d' % (t, t, x))
            g.I('v_mul_f32 v%d, %s, v%d' % (t, f32(k1), t))
            g.I('v_add_f32 v%d, v%d, v%d' % (t, t, x))
            g.I('v_mul_f32 v%d, %s, v%d' % (t, f32(c2), t))
            g.I('v_exp_f32 v%d, v%d' % (t, t))
            g.I('v_add_f32 v%d, 1.0, v%d' % (t, t))
            g.I('v_rcp_f32 v%d, v%d' % (t, t))
            g.I('v_mul_f32 v%d, v%d, v%d' % (x, x, t))
        for c in range(0, 4, 2):
            bf_round2(g, GG + c, GG + c + 1, vT0)
        for c in range(4):
            g.I('v_mul_f32 v%d, v%d, v%d' % (GG + c, GG + c, UU + c))
        g.I('v_cvt_pk_bf16_f32 v%d, v%d, v%d' % (HFR, GG, GG + 1))
        g.I('v_cvt_pk_bf16_f32 v%d, v%d, v%d' % (HFR + 1, GG + 2, GG + 3))

    def wo_loads(WOR, win):
        g.I('v_lshlrev_b32 v%d, 11, v%d' % (vT3, vJ))
        g.I('v_lshl_add_u32 v%d, v%d, 4, v%d' % (vT3, vN, vT3))
        g.I('s_lshl_b32 s%d, s%d, 7' % (sA, sH))
        g.I('s_lshr_b32 s%d, s%d, 1' % (sB, sWAVE))
        g.I('s_lshl_b32 s%d, s%d, 5' % (sB, sB))
        g.I('s_add_u32 s%d, s%d, s%d' % (sA, sA, sB))
        g.I('s_and_b32 s%d, s%d, 1' % (sB, sWAVE))
        g.I('s_lshl_b32 s%d, s%d, 2' % (sB, sB))
        g.I('s_add_u32 s%d, s%d, s%d' % (sA, sA, sB))
        g.I('s_lshl_b32 s%d, s%d, 11' % (sA, sA))
        g.I('s_lshl_b32 s%d, s%d, 8' % (sB, sCB))
        g.I('s_add_u32 s%d, s%d, s%d' % (sA, sA, sB))
        for e in range(4):
            g.I('s_add_u32 s%d, s%d, %d' % (sT, sA, e * 16384))
            g.vmem('buffer_load_dwordx4 %s, v%d, %s, s%d offen%s' % (vr(WOR + 4 * e), vT3, sq(SRD_WO), sT, nt), 'wo', win)

    if not w0:
        if not GL and not P['SKIP'] & 4:
            g_loads(W, b0=True)
        for n in range(32):
            kload(g, n, W)
            if (GL or P['SKIP'] & 4) and n == W - 1:
                g.I('s_barrier')
            if not GL and n + 1 == P['KG'] and not P['SKIP'] & 4:
                wait_flag(g, 1)
                g_tile(QF, SA, VA + 32, QF + 8)
    pend = [(T, e) for T in range(4) for e in range(8)]

    def issue(nn):
        for _ in range(nn):
            if pend:
                T, e = pend.pop(0)
                vload(T, e)

    def issue_through(T):
        while pend and pend[0][0] <= T:
            issue(1)

    issue(P['QPOS0'] if w0 else P['QPOS'])
    stamp(g, 'kv_issued')
    if not w0:
        wait_flag(g, 2)
    g.I('v_and_b32 v%d, 7, v%d' % (vT0, vN))
    g.I('v_lshlrev_b32 v%d, 8, v%d' % (vT0, vT0))
    g.I('v_lshl_add_u32 v%d, v%d, 4, v%d' % (vT0, vJ, vT0))
    g.I('v_lshrrev_b32 v%d, 3, v%d' % (vT1, vN))
    g.I('v_lshl_add_u32 v%d, v%d, 6, v%d' % (vT0, vT1, vT0))
    for i in range(2):
        g.I('ds_read_b128 %s, v%d offset:%d' % (vr(QF + 4 * i), vT0, L_Q + i * 128))
    g.I('s_waitcnt lgkmcnt(0)')
    stamp(g, 'q_ready')

    def dreg(X):
        return QF + 8 if X == 0 else KR + (X - 1) * 8

    def adds(X):
        d = dreg(X)
        g.I('v_add_f32_dpp v%d, v%d, v%d row_ror:8 row_mask:0xf bank_mask:0xf' % (SA + 2 * X, d + 1, d))
        g.I('v_add_f32_dpp v%d, v%d, v%d row_ror:8 row_mask:0xf bank_mask:0xf' % (SA + 2 * X + 1, d + 3, d + 2))
    for X in range(16):
        g.vm_wait('k%d' % X)
        d = dreg(X)
        g.I('v_mfma_f32_16x16x32_bf16 %s, %s, %s, 0' % (vr(d), vr(KR + X * 8), vr(QF)))
        g.I('v_mfma_f32_16x16x32_bf16 %s, %s, %s, %s' % (vr(d), vr(KR + X * 8 + 4), vr(QF + 4), vr(d)))
        if X >= 3:
            adds(X - 3)
    for X in range(13, 16):
        adds(X)
    stamp(g, 'qk_done')
    for r in range(0, 32, 2):
        a, b = SA + r, SA + r + 1
        bf_round2(g, a, b, vT0)
        g.I('v_mul_f32 v%d, s%d, v%d' % (a, sSCALE, a))
        g.I('v_mul_f32 v%d, s%d, v%d' % (b, sSCALE, b))
        bf_round2(g, a, b, vT1)
        if r == 0:
            g.I('v_max_f32 v%d, v%d, v%d' % (vM, a, b))
        else:
            g.I('v_max3_f32 v%d, v%d, v%d, v%d' % (vM, vM, a, b))
        if r % 8 == 6:
            issue(1)
    xrow_allreduce(g, 'v_max_f32', vM, vT0)
    for r in range(32):
        a = SA + r
        g.I('v_sub_f32 v%d, v%d, v%d' % (a, a, vM))
        g.I('v_mul_f32 v%d, s%d, v%d' % (a, sLOG2E, a))
        g.I('v_exp_f32 v%d, v%d' % (a, a))
        if r % 8 == 7:
            issue(1)
    g.I('v_add_f32 v%d, v%d, v%d' % (vL, SA, SA + 1))
    for r in range(2, 32):
        g.I('v_add_f32 v%d, v%d, v%d' % (vL, vL, SA + r))
    for r in range(0, 32, 2):
        g.I('v_cvt_pk_bf16_f32 v%d, v%d, v%d' % (PF + r // 2, SA + r, SA + r + 1))
    xrow_allreduce(g, 'v_add_f32', vL, vT0)
    stamp(g, 'sm_done')
    WOR = VA + 32
    WDG = QF + 8
    WOG = VA
    HFR = PT + 2
    hloads = []
    if not w0 and not GL and not P['SKIP'] & 8:
        WDR, HD = SA, SA + 16
        if P['DEL'] == 1:
            wd_loads(WDR, W)
        else:
            wait_flag(g, 3)
            wd_loads(WDR, W)
            hloads = h_load_list(HD)
            for t in hloads:
                g.vmem(t, 'h', W)
    for T in range(4):
        issue_through(min(T + 1, 3))
        if GL and T == 3 and not w0:
            g_loads(P['WT'] + 4)
        g.vm_wait('v%d' % T)
        if not GL and T == P['TH'] and not w0 and not P['SKIP'] & 8 and P['DEL'] != 1:
            g.vm_wait('h')
            sv = (list(g.vm), g.vm_done)
            ok = g.newlabel('L_hok')
            umax_tree(g, range(HD, HD + 16), vT1)
            g.I('v_cmp_eq_u32 vcc, -1, v%d' % vT1)
            g.I('s_cbranch_vccz %s' % ok)
            poll_valid(g, hloads, range(HD, HD + 16), vT1)
            g.label(ok)
            g.vm, g.vm_done = sv
            h_compute(HD, HFR)
            tile16g(g, WDR, HFR, HD, WDG)
            stamp(g, 'wd_done')
        if T == 3 and not GL:
            wo_loads(WOR, P['WT'])
        tile32(g, vbase(T), PF + 4 * T, OA, T == 0, frag_is_A=False)
    stamp(g, 'pv_done')
    if w0 and P['DEL'] == 1 and not GL:
        HB = VA - 32
        bases = [32, 48, 64, 80, 128, 144, 160]
        g.I('s_mov_b32 s%d, 28672' % sT)
        g.I('v_mul_lo_u32 v%d, v%d, s%d' % (vT5, vN, sT))
        g.I('v_lshl_add_u32 v%d, v%d, 4, v%d' % (vT5, vJ, vT5))
        g.I('s_mul_i32 s%d, s%d, 448' % (90, sH))
        g.I('s_add_u32 s%d, s%d, 0x%x' % (90, 90, WS_GP))
        g.I('s_add_u32 s%d, s%d, %d' % (91, 90, 16 * 28672))
        g.I('s_add_u32 s%d, s%d, %d' % (92, 90, 14336))
        g.I('s_add_u32 s%d, s%d, %d' % (93, 90, 14336 + 16 * 28672))
        hl = []
        regs = []
        for wq_ in range(7):
            hl += ['buffer_load_dwordx4 %s, v%d, %s, s%d offen offset:%d sc1' % (vr(bases[wq_] + 4 * i), vT5, sq(SRD_WS), 90 + i, wq_ * 64)
                   for i in range(4)]
            regs += list(range(bases[wq_], bases[wq_] + 16))
        poll_valid(g, hl, regs, vT1)
        g.I('v_lshlrev_b32 v%d, 3, v%d' % (vT2, vJ))
        g.I('s_mov_b32 s%d, 0x00010001' % sEX)
        g.I('s_mov_b32 s%d, 0x00010001' % (sEX + 1))
        for wq_ in range(7):
            h_compute(bases[wq_], HFR)
            g.I('s_mov_b64 exec, s[%d:%d]' % (sEX, sEX + 1))
            g.I('ds_write_b64 v%d, %s offset:%d' % (vT2, vr(HFR, 2), L_HB + wq_ * 32))
            g.I('s_mov_b64 exec, -1')
        g.I('v_mov_b32 v%d, 4' % vT4)
        g.I('s_waitcnt lgkmcnt(0)')
        g.I('ds_write_b32 v%d, v%d offset:%d' % (vZERO, vT4, L_FLAG))
        stamp(g, 'w0_h')
    g.I('s_mul_i32 s%d, s%d, 4224' % (sA, sWAVE))
    g.I('v_mul_u32_u24 v%d, 528, v%d' % (vT0, vN))
    g.I('v_lshl_add_u32 v%d, v%d, 7, v%d' % (vT0, vJ, vT0))
    g.I('v_add_u32 v%d, s%d, v%d' % (vT0, sA, vT0))
    g.I('s_mov_b32 s%d, 0x00ff00ff' % sEX)
    g.I('s_mov_b32 s%d, 0x00ff00ff' % (sEX + 1))
    g.I('s_mov_b64 exec, s[%d:%d]' % (sEX, sEX + 1))
    for dd in range(8):
        g.I('ds_write_b128 v%d, %s offset:%d' % (vT0, vr(OA + 4 * dd), L_OW + dd * 16))
    g.I('s_mov_b64 exec, 0xff')
    g.I('s_lshl_b32 s%d, s%d, 6' % (sA, sWAVE))
    g.I('v_lshlrev_b32 v%d, 3, v%d' % (vT1, vLANE))
    g.I('v_add_u32 v%d, s%d, v%d' % (vT1, sA, vT1))
    g.I('ds_write_b64 v%d, %s offset:%d' % (vT1, vr(vM, 2), L_ML))
    g.I('s_mov_b64 exec, -1')
    g.I('s_waitcnt lgkmcnt(0)')
    g.I('s_barrier')
    stamp(g, 'b3')
    CO, CM = OA, OA + 16
    g.I('s_mul_i32 s%d, s%d, 528' % (sA, sWAVE))
    g.I('v_lshlrev_b32 v%d, 3, v%d' % (vT0, vLANE))
    g.I('v_add_u32 v%d, s%d, v%d' % (vT1, sA, vT0))
    g.I('s_lshl_b32 s%d, s%d, 3' % (sA, sWAVE))
    g.I('v_mov_b32 v%d, s%d' % (vT0, sA))
    for w in range(8):
        g.I('ds_read_b64 %s, v%d offset:%d' % (vr(CM + 2 * w, 2), vT0, L_ML + w * 64))
    for w in range(8):
        g.I('ds_read_b64 %s, v%d offset:%d' % (vr(CO + 2 * w, 2), vT1, L_OW + w * 4224))
    g.I('s_waitcnt lgkmcnt(0)')
    g.I('v_max3_f32 v%d, v%d, v%d, v%d' % (vM, CM, CM + 2, CM + 4))
    g.I('v_max3_f32 v%d, v%d, v%d, v%d' % (vM, vM, CM + 6, CM + 8))
    g.I('v_max3_f32 v%d, v%d, v%d, v%d' % (vM, vM, CM + 10, CM + 12))
    g.I('v_max_f32 v%d, v%d, v%d' % (vM, vM, CM + 14))
    for w in range(8):
        m = CM + 2 * w
        g.I('v_sub_f32 v%d, v%d, v%d' % (m, m, vM))
        g.I('v_mul_f32 v%d, s%d, v%d' % (m, sLOG2E, m))
        g.I('v_exp_f32 v%d, v%d' % (m, m))
    R0, R1 = PF, PF + 1
    for w in range(8):
        m = CM + 2 * w
        op = 'v_mul_f32' if w == 0 else 'v_fmac_f32'
        g.I('%s v%d, v%d, v%d' % (op, R0, m, CO + 2 * w))
        g.I('%s v%d, v%d, v%d' % (op, R1, m, CO + 2 * w + 1))
        g.I('%s v%d, v%d, v%d' % (op, vL, m, m + 1))
    g.I('v_lshrrev_b32 v%d, 3, v%d' % (vT0, vLANE))
    g.I('v_lshlrev_b32 v%d, 12, v%d' % (vT0, vT0))
    g.I('v_and_b32 v%d, 7, v%d' % (vT1, vLANE))
    g.I('v_lshl_add_u32 v%d, v%d, 3, v%d' % (vT0, vT1, vT0))
    g.I('s_lshl_b32 s%d, s%d, 18' % (sA, sG))
    g.I('s_lshl_b32 s%d, s%d, 15' % (sB, sWAVE))
    g.I('s_add_u32 s%d, s%d, s%d' % (sA, sA, sB))
    g.I('s_and_b32 s%d, s2, 63' % sC)
    g.I('s_lshl_b32 s%d, s%d, 6' % (sB, sC))
    g.I('s_add_u32 s%d, s%d, s%d' % (sA, sA, sB))
    g.I('s_add_u32 s%d, s%d, 0x%x' % (sA, sA, WS_AP))
    g.vmem('buffer_store_dwordx2 %s, v%d, %s, s%d offen sc1' % (vr(R0, 2), vT0, sq(SRD_WS), sA), 'ap')
    g.I('s_lshl_b32 s%d, s%d, 12' % (sA, sG))
    g.I('s_lshl_b32 s%d, s%d, 9' % (sB, sWAVE))
    g.I('s_add_u32 s%d, s%d, s%d' % (sA, sA, sB))
    g.I('s_lshl_b32 s%d, s%d, 3' % (sB, sC))
    g.I('s_add_u32 s%d, s%d, s%d' % (sA, sA, sB))
    g.I('s_add_u32 s%d, s%d, 0x%x' % (sA, sA, WS_ML))
    g.I('s_mov_b64 exec, 1')
    g.vmem('buffer_store_dwordx2 %s, v%d, %s, s%d offen sc1' % (vr(vM, 2), vZERO, sq(SRD_WS), sA), 'ml')
    g.I('s_mov_b64 exec, -1')
    stamp(g, 'ap_stored')
    if not w0 and not GL and P['DEL'] == 1 and not P['SKIP'] & 8:
        g.I('v_lshlrev_b32 v%d, 3, v%d' % (vT2, vJ))
        g.I('s_lshl_b32 s%d, s%d, 5' % (sB, sWAVE))
        g.I('v_add_u32 v%d, s%d, v%d' % (vT2, sB, vT2))
        g.I('ds_read_b64 %s, v%d offset:%d' % (vr(HFR, 2), vT2, L_HB - 32))
        g.I('s_waitcnt lgkmcnt(0)')
        g.vm_wait('wd')
        tile16g(g, WDR, HFR, HD, WDG)
        stamp(g, 'wd_done')
    if GL:
        WDR = VA + 48
        wo_loads(WOR, P['WT'] + 4)
        if not w0:
            wd_loads(WDR, P['WT'] + 4)
            g_tile(QF, KR, PT, QF + 8)
    MLr, AD = KR + 32, KR + 40
    g.I('s_lshl_b32 s%d, s%d, 9' % (sF, sH))
    g.I('s_add_u32 s%d, s%d, 0x%x' % (sF, sF, WS_ML))
    if w0:
        PR = PT
        g.I('v_lshlrev_b32 v%d, 3, v%d' % (vT3, vLANE))
        poll_valid(g, ['buffer_load_dwordx2 %s, v%d, %s, s%d offen sc1' % (vr(PR, 2), vT3, sq(SRD_WS), sF)],
                   range(PR, PR + 2), vT1, sleep=P['TSLEEP'], thr=P['THR'])
    stamp(g, 'pre_b5')
    g.I('s_barrier')
    loads = []
    g.I('v_lshlrev_b32 v%d, 3, v%d' % (vT0, vN))
    loads += ['buffer_load_dwordx2 %s, v%d, %s, s%d offen offset:%d sc1' % (vr(MLr + 2 * i, 2), vT0, sq(SRD_WS), sF, i * 128)
              for i in range(4)]
    g.I('v_lshlrev_b32 v%d, 6, v%d' % (vT2, vN))
    g.I('v_lshl_add_u32 v%d, v%d, 4, v%d' % (vT2, vJ, vT2))
    g.I('s_lshl_b32 s%d, s%d, 15' % (sD, sH))
    g.I('s_lshl_b32 s%d, s%d, 12' % (sB, sWAVE))
    g.I('s_add_u32 s%d, s%d, s%d' % (sD, sD, sB))
    g.I('s_add_u32 s%d, s%d, 0x%x' % (sD, sD, WS_AP))
    loads += ['buffer_load_dwordx4 %s, v%d, %s, s%d offen offset:%d sc1' % (vr(AD + 4 * i), vT2, sq(SRD_WS), sD, i * 1024)
              for i in range(4)]
    poll_valid(g, loads, range(MLr, MLr + 24), vT1)
    stamp(g, 'ml_ok')
    g.I('v_max3_f32 v%d, v%d, v%d, v%d' % (vM, MLr, MLr + 2, MLr + 4))
    g.I('v_max_f32 v%d, v%d, v%d' % (vM, vM, MLr + 6))
    row_allreduce(g, 'v_max_f32', [vM])
    for i in range(4):
        m = MLr + 2 * i
        g.I('v_sub_f32 v%d, v%d, v%d' % (m, m, vM))
        g.I('v_mul_f32 v%d, s%d, v%d' % (m, sLOG2E, m))
        g.I('v_exp_f32 v%d, v%d' % (m, m))
    OC = QF
    for i in range(4):
        m = MLr + 2 * i
        op = 'v_mul_f32' if i == 0 else 'v_fmac_f32'
        g.I('%s v%d, v%d, v%d' % (op, vL, m, m + 1))
        for c in range(4):
            g.I('%s v%d, v%d, v%d' % (op, OC + c, m, AD + 4 * i + c))
    row_allreduce(g, 'v_add_f32', [vL, OC, OC + 1, OC + 2, OC + 3])
    g.I('v_rcp_f32 v%d, v%d' % (vT0, vL))
    for c in range(4):
        x = OC + c
        g.I('v_mul_f32 v%d, v%d, v%d' % (vT1, x, vT0))
        g.I('v_fma_f32 v%d, -v%d, v%d, v%d' % (vT2, vT1, vL, x))
        g.I('v_fma_f32 v%d, v%d, v%d, v%d' % (x, vT2, vT0, vT1))
    OFR = QF + 4
    g.I('v_cvt_pk_bf16_f32 v%d, v%d, v%d' % (OFR, OC, OC + 1))
    g.I('v_cvt_pk_bf16_f32 v%d, v%d, v%d' % (OFR + 1, OC + 2, OC + 3))
    tile16g(g, WOR, OFR, OA, WOG)
    stamp(g, 'wo_done')
    if GL:
        if w0:
            PR = PT
            g.I('v_and_b32 v%d, 31, v%d' % (vT4, vLANE))
            g.I('s_mov_b32 s%d, 28672' % sT)
            g.I('v_mul_lo_u32 v%d, v%d, s%d' % (vT4, vT4, sT))
            g.I('v_lshrrev_b32 v%d, 5, v%d' % (vT5, vLANE))
            g.I('s_mov_b32 s%d, 14336' % sT)
            g.I('v_mul_lo_u32 v%d, v%d, s%d' % (vT5, vT5, sT))
            g.I('v_add_u32 v%d, v%d, v%d' % (vT4, vT4, vT5))
            g.I('s_mul_i32 s%d, s%d, 448' % (90, sH))
            g.I('s_add_u32 s%d, s%d, 0x%x' % (90, 90, WS_GP))
            poll_valid(g, ['buffer_load_dword v%d, v%d, %s, s90 offen sc1' % (PR, vT4, sq(SRD_WS)),
                           'buffer_load_dword v%d, v%d, %s, s90 offen offset:444 sc1' % (PR + 1, vT4, sq(SRD_WS))],
                       range(PR, PR + 2), vT1, sleep=P['TSLEEP'], thr=P['THR'])
        g.I('s_barrier')
        if not w0:
            HD = KR
            hl = h_load_list(HD)
            poll_valid(g, hl, range(HD, HD + 16), vT1)
            h_compute(HD, HFR)
            tile16g(g, WDR, HFR, HD, WDG)
            stamp(g, 'wd_done')
    F = VA
    for dd in range(8):
        if w0:
            g.I('v_mov_b32 v%d, 0' % (F + 8 + dd))
        else:
            g.I('v_mov_b32 v%d, v%d' % (F + 8 + dd, WDG + dd))
    g.I('s_lshl_b32 s%d, s%d, 10' % (sA, sWAVE))
    g.I('v_lshlrev_b32 v%d, 5, v%d' % (vT0, vN))
    g.I('v_add_u32 v%d, s%d, v%d' % (vT0, sA, vT0))
    g.I('s_mov_b64 exec, 0xffff')
    g.I('ds_write_b128 v%d, %s offset:%d' % (vT0, vr(F), L_FR))
    g.I('ds_write_b128 v%d, %s offset:%d' % (vT0, vr(F + 4), L_FR + 16))
    g.I('ds_write_b128 v%d, %s offset:%d' % (vT0, vr(F + 8), L_FR + 512))
    g.I('ds_write_b128 v%d, %s offset:%d' % (vT0, vr(F + 12), L_FR + 528))
    g.I('s_mov_b64 exec, -1')
    g.I('s_waitcnt lgkmcnt(0)')
    g.I('s_barrier')
    stamp(g, 'b4')
    if not w0:
        stamp_store(g)
        g.I('s_endpgm')
        return
    g.I('s_lshl_b32 s%d, s%d, 8' % (sF, sCB))
    g.I('s_lshl_b32 s%d, s%d, 3' % (sB, sH))
    g.I('s_add_u32 s%d, s%d, s%d' % (sF, sF, sB))
    XV = QF + 8
    g.vmem('buffer_load_dwordx2 %s, v%d, %s, s%d offen' % (vr(XV, 2), vZERO, sq(SRD_X), sF), 'xv')
    RD = KR
    for w in range(8):
        g.I('ds_read_b128 %s, v%d offset:%d' % (vr(RD + 4 * w), vVOFF, L_FR + w * 1024))
    g.I('s_waitcnt lgkmcnt(0)')
    for w in range(1, 8):
        for c in range(4):
            g.I('v_add_f32 v%d, v%d, v%d' % (RD + c, RD + c, RD + 4 * w + c))
    g.I('s_lshl_b32 s%d, s%d, 15' % (sD, sCB))
    g.I('s_add_u32 s%d, s%d, 0x%x' % (sD, sD, WS_FP))
    g.I('s_lshl_b32 s%d, s%d, 10' % (sB, sH))
    g.I('s_add_u32 s%d, s%d, s%d' % (sB, sD, sB))
    g.vmem('buffer_store_dwordx4 %s, v%d, %s, s%d offen sc1' % (vr(RD), vVOFF, sq(SRD_WS), sB), 'fp')
    g.I('v_and_b32 v%d, 31, v%d' % (vT0, vLANE))
    g.I('v_lshlrev_b32 v%d, 10, v%d' % (vT0, vT0))
    g.I('v_lshrrev_b32 v%d, 5, v%d' % (vT1, vLANE))
    g.I('v_lshl_add_u32 v%d, v%d, 9, v%d' % (vT0, vT1, vT0))
    g.I('s_lshl_b32 s%d, s%d, 4' % (sB, sH))
    g.I('s_add_u32 s%d, s%d, s%d' % (sD, sD, sB))
    FD = KR + 32
    poll_valid(g, ['buffer_load_dwordx4 %s, v%d, %s, s%d offen sc1' % (vr(FD), vT0, sq(SRD_WS), sD)], range(FD, FD + 4), vT1)
    row_allreduce(g, 'v_add_f32', [FD + c for c in range(4)])
    FE = FD + 4
    for c in range(4):
        g.I('v_mov_b32 v%d, v%d' % (FE + c, FD + c))
    for c in range(4):
        g.I('v_permlane16_swap_b32 v%d, v%d' % (FD + c, FE + c))
    for c in range(4):
        g.I('v_add_f32 v%d, v%d, v%d' % (FD + c, FD + c, FE + c))
    for c in range(4):
        g.I('v_mov_b32 v%d, v%d' % (FE + c, FD + c))
    for c in range(4):
        g.I('v_permlane32_swap_b32 v%d, v%d' % (FD + c, FE + c))
    XF = FD + 8
    for d in range(2):
        g.I('v_lshlrev_b32 v%d, 16, v%d' % (XF + 2 * d, XV + d))
        g.I('v_and_b32 v%d, 0xffff0000, v%d' % (XF + 2 * d + 1, XV + d))
    for c in range(0, 4, 2):
        bf_round2(g, FD + c, FD + c + 1, vT0)
        bf_round2(g, FE + c, FE + c + 1, vT0)
    for c in range(4):
        g.I('v_add_f32 v%d, v%d, v%d' % (FD + c, FD + c, XF + c))
    for c in range(0, 4, 2):
        bf_round2(g, FD + c, FD + c + 1, vT0)
    for c in range(4):
        g.I('v_add_f32 v%d, v%d, v%d' % (FD + c, FD + c, FE + c))
    g.I('v_cvt_pk_bf16_f32 v%d, v%d, v%d' % (XF, FD, FD + 1))
    g.I('v_cvt_pk_bf16_f32 v%d, v%d, v%d' % (XF + 1, FD + 2, FD + 3))
    g.I('s_mov_b64 exec, 1')
    g.I('buffer_store_dwordx2 %s, v%d, %s, s%d offen' % (vr(XF, 2), vZERO, sq(SRD_OUT), sF))
    stamp(g, 'end')
    stamp_store(g)
    g.I('s_endpgm')


def build():
    g = Gen()
    hdr = open('cdna_kernels/%s.s.ref' % NAME).read().split('\n')
    out = []
    for ln in hdr:
        if ln.startswith('; @launch'):
            out.append('; @launch grid=(256,1,1) block=(512,1,1) lds=%d' % LDS_BYTES)
        elif ln.startswith(';'):
            out.append(ln)
        else:
            break
    out += ['.amdgcn_target "amdgcn-amd-amdhsa--gfx950"', '.text', '.globl %s_kernel' % NAME, '.p2align 8',
            '.type %s_kernel,@function' % NAME, '%s_kernel:' % NAME]
    g.I('s_cmp_ge_u32 s2, 256')
    g.I('s_cbranch_scc1 L_end')
    g.I('s_load_dwordx16 s[8:23], s[0:1], 0')
    g.I('s_load_dwordx8 s[24:31], s[0:1], 64')
    g.I('s_and_b32 s%d, s2, 7' % sT)
    g.I('s_lshl_b32 s%d, s%d, 3' % (sT, sT))
    g.I('s_lshr_b32 s%d, s2, 3' % sT2)
    g.I('s_and_b32 s2, s%d, 7' % sT2)
    g.I('s_add_u32 s2, s2, s%d' % sT)
    g.I('s_lshr_b32 s%d, s%d, 3' % (sT2, sT2))
    g.I('s_lshl_b32 s%d, s%d, 6' % (sT2, sT2))
    g.I('s_add_u32 s2, s2, s%d' % sT2)
    g.I('v_lshrrev_b32 v1, 6, v0')
    g.I('v_and_b32 v0, 63, v0')
    g.I('v_readfirstlane_b32 s%d, v1' % sWAVE)
    g.I('v_and_b32 v%d, 15, v0' % vN)
    g.I('v_lshrrev_b32 v%d, 4, v0' % vJ)
    g.I('v_bfe_u32 v%d, v%d, 1, 1' % (vKOFF, vN))
    g.I('v_lshlrev_b32 v%d, 19, v%d' % (vKOFF, vKOFF))
    g.I('v_and_b32 v%d, 1, v%d' % (vT0, vN))
    g.I('v_lshl_add_u32 v%d, v%d, 6, v%d' % (vKOFF, vT0, vKOFF))
    g.I('v_lshrrev_b32 v%d, 2, v%d' % (vT0, vN))
    g.I('v_lshl_add_u32 v%d, v%d, 8, v%d' % (vKOFF, vT0, vKOFF))
    g.I('v_lshl_add_u32 v%d, v%d, 4, v%d' % (vKOFF, vJ, vKOFF))
    g.I('v_lshlrev_b32 v%d, 4, v0' % vVOFF)
    g.I('v_mov_b32 v%d, 0' % vZERO)
    g.I('s_lshr_b32 s%d, s2, 6' % sG)
    g.I('s_lshl_b32 s%d, s%d, 24' % (sKV, sG))
    g.I('s_and_b32 s%d, s2, 63' % sT)
    g.I('s_lshl_b32 s%d, s%d, 13' % (sT, sT))
    g.I('s_add_u32 s%d, s%d, s%d' % (sKV, sKV, sT))
    g.I('s_lshl_b32 s%d, s%d, 10' % (sT, sWAVE))
    g.I('s_add_u32 s%d, s%d, s%d' % (sKV, sKV, sT))
    g.I('s_lshr_b32 s%d, s2, 3' % sH)
    g.I('s_and_b32 s%d, s2, 7' % sCB)
    g.I('s_mov_b32 s%d, 0' % sCNT)
    g.I('s_mov_b32 s%d, 0x05040100' % sSEL0)
    g.I('s_mov_b32 s%d, 0x07060302' % sSEL1)
    g.I('s_mov_b32 s%d, %s' % (sSCALE, f32(128 ** -0.5)))
    g.I('s_mov_b32 s%d, %s' % (sLOG2E, f32(1.4426950408889634)))
    g.I('s_waitcnt lgkmcnt(0)')
    srd(g, SRD_K, 10, 1 << 26)
    srd(g, SRD_V, 12, 1 << 26)
    srd(g, SRD_X, 8, 2048)
    srd(g, SRD_WQ, 14, 1 << 23)
    srd(g, SRD_WO, 16, 1 << 23)
    g.I('s_cmp_lt_u32 s%d, 4' % sCB)
    g.I('s_cselect_b32 s%d, s20, s22' % SRD_GU)
    g.I('s_cselect_b32 s%d, s21, s23' % (SRD_GU + 1))
    g.I('s_and_b32 s%d, s%d, 0xffff' % (SRD_GU + 1, SRD_GU + 1))
    g.I('s_mov_b32 s%d, 0x%x' % (SRD_GU + 2, 1024 * 3584 * 2))
    g.I('s_mov_b32 s%d, 0x00020000' % (SRD_GU + 3))
    srd(g, SRD_WD, 24, 3584 * 1024 * 2)
    srd(g, SRD_OUT, 26, 2048)
    srd(g, SRD_DBG, 28, 256)
    srd(g, SRD_WS, 30, WS_SIZE)
    if P['STAMPS']:
        g.I('v_mov_b32 v%d, 0' % vST)
    stamp(g, 'entry')
    g.I('s_cmp_eq_u32 s%d, 0' % sWAVE)
    g.I('s_cbranch_scc1 L_wave0')
    g.fence()
    main_path(g, False)
    g.label('L_wave0')
    g.vm_reset()
    prologue_wave0(g)
    main_path(g, True)
    g.label('L_end')
    g.I('s_endpgm')
    out.append(g.text())
    out += ['.section .rodata,"a"', '.p2align 6', '.amdhsa_kernel %s_kernel' % NAME,
            '  .amdhsa_next_free_vgpr 256', '  .amdhsa_next_free_sgpr 102', '  .amdhsa_accum_offset 256',
            '  .amdhsa_group_segment_fixed_size 0', '  .amdhsa_kernarg_size 96', '  .amdhsa_user_sgpr_count 2',
            '  .amdhsa_user_sgpr_kernarg_segment_ptr 1', '  .amdhsa_system_sgpr_workgroup_id_x 1',
            '  .amdhsa_float_denorm_mode_32 3', '.end_amdhsa_kernel']
    return '\n'.join(out) + '\n'


if __name__ == '__main__':
    dst = sys.argv[1] if len(sys.argv) > 1 else 'cdna_kernels/%s.s' % NAME
    open(dst, 'w').write(build())
    print('wrote', dst)
    if P['STAMPS']:
        open(dst + '.stamps', 'w').write('\n'.join(STAMP_NAMES))
```

```python
import sys
import struct
from dsl import Gen

NAME = 'parallel_sum__gqa_block_cached__geglu_ffn__decode'

P = dict(
    W=4,
    W0=8,
    WP=16,
    WT=8,
    NT=' nt',
    SLEEP=1, QSLEEP=4, TSLEEP=4,
    KG=16,
    QPOS=6, QPOS0=8,
    TH=2,
    KP=16,
    THR=4,
    GL=0,
    STAMPS=0,
    SKIP=0,
    DEL=0,
    GD=1,
)
for a in sys.argv[2:]:
    k, v = a.split('=')
    P[k] = int(v) if v.lstrip('-').isdigit() else v


def f32(x):
    return '0x%08x' % struct.unpack('<I', struct.pack('<f', x))[0]


L_XN = 0
L_Q = 2048
L_FLAG = 4096
L_OW = 8192
L_ML = L_OW + 8 * 4224
L_FR = L_ML + 512
L_GB = L_FR + 8192
L_HB = L_GB + 4096
LDS_BYTES = L_HB + 256
L_CNT = L_FLAG + 4

WS_QP = 0
WS_AP = 0x100000
WS_ML = 0x200000
WS_GP = 0x300000
WS_FP = 0x400000
WS_FL = 0x470000
WS_ST = 0x480000
WS_SIZE = 0x500000

sWAVE, sKV, sT, sT2, sCNT = 3, 4, 5, 6, 7
SRD_K, SRD_V, SRD_WQ, SRD_WO, SRD_GU, SRD_WD, SRD_WS, SRD_X, SRD_OUT, SRD_DBG = 32, 36, 40, 44, 48, 52, 56, 60, 64, 68
sSEL0, sSEL1, sSCALE, sLOG2E = 72, 73, 74, 75
sH, sCB, sG = 76, 77, 78
sA, sB, sC, sD, sE, sF = 80, 81, 82, 83, 84, 85
sEX = 86
sN0, sN1 = 98, 99
sGB, sGP = 94, 95

vLANE, vN, vJ = 0, 2, 3
vKOFF, vVOFF = 4, 5
vT0, vT1, vT2, vT3, vT4, vT5 = 6, 7, 8, 9, 10, 11
vZERO, vST = 12, 13
vM, vL = 14, 15
QF, SA, VA, KR = 16, 32, 64, 128
OA, PT, PF = 192, 224, 240

SPIN_MAX = 200000
STAMP_NAMES = []


def srd(g, d, ptr, size):
    g.I('s_mov_b32 s%d, s%d' % (d, ptr))
    g.I('s_and_b32 s%d, s%d, 0xffff' % (d + 1, ptr + 1))
    g.I('s_mov_b32 s%d, 0x%x' % (d + 2, size))
    g.I('s_mov_b32 s%d, 0x00020000' % (d + 3))


def vr(a, n=4):
    return 'v[%d:%d]' % (a, a + n - 1)


def sq(d):
    return 's[%d:%d]' % (d, d + 3)


def row_allreduce(g, op, vs):
    for r in (1, 2, 4, 8):
        for v in vs:
            g.I('%s_dpp v%d, v%d, v%d row_ror:%d row_mask:0xf bank_mask:0xf' % (op, v, v, v, r))


def xrow_allreduce(g, op, v, t):
    g.I('v_mov_b32 v%d, v%d' % (t, v))
    g.I('v_permlane16_swap_b32 v%d, v%d' % (v, t))
    g.I('%s v%d, v%d, v%d' % (op, v, v, t))
    g.I('v_mov_b32 v%d, v%d' % (t, v))
    g.I('v_permlane32_swap_b32 v%d, v%d' % (v, t))
    g.I('%s v%d, v%d, v%d' % (op, v, v, t))


def bf_round(g, v, t):
    g.I('v_cvt_pk_bf16_f32 v%d, v%d, v%d' % (t, v, v))
    g.I('v_lshlrev_b32 v%d, 16, v%d' % (v, t))


def bf_round2(g, a, b, t):
    g.I('v_cvt_pk_bf16_f32 v%d, v%d, v%d' % (t, a, b))
    g.I('v_lshlrev_b32 v%d, 16, v%d' % (a, t))
    g.I('v_and_b32 v%d, 0xffff0000, v%d' % (b, t))


def tile32(g, R, frag, acc, first, frag_is_A=False, PT=PT):
    def perms(dd):
        t = PT + (dd & 3) * 4
        for q in range(4):
            g.I('v_perm_b32 v%d, v%d, v%d, s%d' % (t + q, R + (2 * q + 1) * 4 + (dd >> 1), R + (2 * q) * 4 + (dd >> 1),
                                                  sSEL1 if dd & 1 else sSEL0))
    perms(0)
    for dd in range(8):
        if dd < 7:
            perms(dd + 1)
        t = PT + (dd & 3) * 4
        c = '0' if first else vr(acc + 4 * dd)
        if frag_is_A:
            g.I('v_mfma_f32_16x16x32_bf16 %s, %s, %s, %s' % (vr(acc + 4 * dd), vr(frag), vr(t), c))
        else:
            g.I('v_mfma_f32_16x16x32_bf16 %s, %s, %s, %s' % (vr(acc + 4 * dd), vr(t), vr(frag), c))


def tile16g(g, R, frag, rot, out):
    def perms(dd):
        t = PT + (dd & 3) * 4
        for q in range(2):
            g.I('v_perm_b32 v%d, v%d, v%d, s%d' % (t + q, R + (2 * q + 1) * 4 + (dd >> 1), R + (2 * q) * 4 + (dd >> 1),
                                                  sSEL1 if dd & 1 else sSEL0))
    perms(0)
    perms(1)
    for dd in range(8):
        if dd < 6:
            perms(dd + 2)
        if dd >= 4:
            g.I('v_mov_b32 v%d, v%d' % (out + dd - 4, rot + 4 * (dd & 3)))
        t = PT + (dd & 3) * 4
        g.I('v_mfma_f32_16x16x16_bf16 %s, %s, %s, 0' % (vr(rot + 4 * (dd & 3)), vr(frag, 2), vr(t, 2)))
    for dd in range(4, 8):
        g.I('v_mov_b32 v%d, v%d' % (out + dd, rot + 4 * (dd & 3)))


def stamp(g, name):
    if not P['STAMPS']:
        return
    if name not in STAMP_NAMES:
        STAMP_NAMES.append(name)
    g.I('s_memrealtime s[88:89]')
    g.I('s_waitcnt lgkmcnt(0)')
    g.I('v_writelane_b32 v%d, s88, %d' % (vST, STAMP_NAMES.index(name)))


def stamp_store(g):
    if not P['STAMPS']:
        return
    g.I('s_mov_b64 exec, -1')
    g.I('s_lshl_b32 s88, s2, 11')
    g.I('s_lshl_b32 s89, s%d, 8' % sWAVE)
    g.I('s_add_u32 s88, s88, s89')
    g.I('s_add_u32 s88, s88, 0x%x' % WS_ST)
    g.I('v_lshlrev_b32 v1, 2, v0')
    g.I('s_nop 4')
    g.I('buffer_store_dword v%d, v1, %s, s88 offen' % (vST, sq(SRD_WS)))


def spin_guard(g, done_label):
    g.I('s_add_u32 s%d, s%d, 1' % (sCNT, sCNT))
    g.I('s_cmp_ge_u32 s%d, %d' % (sCNT, SPIN_MAX))
    g.I('s_cbranch_scc1 %s' % done_label)


def umax_tree(g, rs, tmp):
    rs = list(rs)
    g.I('v_max_u32 v%d, v%d, v%d' % (tmp, rs[0], rs[1]))
    i = 2
    while i < len(rs):
        if i + 1 < len(rs):
            g.I('v_max3_u32 v%d, v%d, v%d, v%d' % (tmp, tmp, rs[i], rs[i + 1]))
            i += 2
        else:
            g.I('v_max_u32 v%d, v%d, v%d' % (tmp, tmp, rs[i]))
            i += 1


def poll_valid(g, loads, regs, tmp, sleep=None, thr=0):
    lp = g.newlabel('L_poll')
    dn = g.newlabel('L_polld')
    g.label(lp)
    for t in loads:
        g.I(t)
    g.I('s_waitcnt vmcnt(0)')
    umax_tree(g, regs, tmp)
    g.I('v_cmp_eq_u32 vcc, -1, v%d' % tmp)
    if thr:
        g.I('s_nop 3')
        g.I('s_bcnt1_i32_b64 s%d, vcc' % sA)
        g.I('s_cmp_le_u32 s%d, %d' % (sA, thr))
        g.I('s_cbranch_scc1 %s' % dn)
    else:
        g.I('s_cbranch_vccz %s' % dn)
    spin_guard(g, dn)
    g.I('s_sleep %d' % (P['SLEEP'] if sleep is None else sleep))
    g.I('s_branch %s' % lp)
    g.label(dn)
    g.vm_reset()


def flag_poll(g, bases):
    if P['SKIP'] & 2:
        return
    lp = g.newlabel('L_fpoll')
    dn = g.newlabel('L_fpolld')
    g.label(lp)
    for i, sb in enumerate(bases):
        g.I('buffer_load_dwordx2 %s, v%d, %s, s%d offen sc1' % (vr(16 + 2 * i, 2), vT3, sq(SRD_WS), sb))
    g.I('s_waitcnt vmcnt(0)')
    for i in range(len(bases)):
        g.I('v_xor_b32 v%d, s%d, v%d' % (16 + 2 * i, sN0, 16 + 2 * i))
        g.I('v_xor_b32 v%d, s%d, v%d' % (17 + 2 * i, sN1, 17 + 2 * i))
    for i in range(1, 2 * len(bases)):
        g.I('v_or_b32 v16, v16, v%d' % (16 + i))
    g.I('v_cmp_ne_u32 vcc, 0, v16')
    g.I('s_cbranch_vccz %s' % dn)
    spin_guard(g, dn)
    g.I('s_sleep %d' % P['QSLEEP'])
    g.I('s_branch %s' % lp)
    g.label(dn)
    g.vm_done = len(g.vm)


def wait_flag(g, val, off=None):
    lp = g.newlabel('L_fl')
    dn = g.newlabel('L_fld')
    g.label(lp)
    g.I('ds_read_b32 v%d, v%d offset:%d' % (vT0, vZERO, L_FLAG if off is None else off))
    g.I('s_waitcnt lgkmcnt(0)')
    g.I('v_readfirstlane_b32 s%d, v%d' % (sA, vT0))
    g.I('s_nop 3')
    g.I('s_cmp_ge_u32 s%d, %d' % (sA, val))
    g.I('s_cbranch_scc1 %s' % dn)
    spin_guard(g, dn)
    g.I('s_sleep 1')
    g.I('s_branch %s' % lp)
    g.label(dn)


def kload(g, n, W):
    X = n >> 1
    g.I('s_add_u32 s%d, s%d, 0x%x' % (sT, sKV, X << 20))
    g.vmem('buffer_load_dwordx4 %s, v%d, %s, s%d offen offset:%d%s' % (vr(KR + n * 4), vKOFF, sq(SRD_K), sT, (n & 1) * 128, P['NT']),
           'k%d' % X, W)


def gd_loads(g, GR, win, b0=False):
    g.I('s_mov_b32 s%d, 57344' % sA)
    g.I('v_mul_lo_u32 v%d, v%d, s%d' % (vT2, vJ, sA))
    g.I('v_lshl_add_u32 v%d, v%d, 4, v%d' % (vT2, vN, vT2))
    for e in range(8):
        g.I('s_add_u32 s%d, s%d, %d' % (sT, sGB, e * 7168))
        g.vmem('buffer_load_dwordx4 %s, v%d, %s, s%d offen%s' % (vr(GR + 4 * e), vT2, sq(SRD_GU), sT, P['NT']), 'g', win)
        if b0 and e == min(win, 8) - 1:
            g.I('s_barrier')


def gd_tile(g, GR, frag, acc, tmp, gat):
    g.I('v_lshlrev_b32 v%d, 4, v%d' % (vT0, vJ))
    g.I('s_and_b32 s%d, s2, 3' % sA)
    g.I('s_lshl_b32 s%d, s%d, 9' % (sA, sA))
    g.I('s_lshl_b32 s%d, s%d, 6' % (sB, sWAVE))
    g.I('s_add_u32 s%d, s%d, s%d' % (sA, sA, sB))
    g.I('v_add_u32 v%d, s%d, v%d' % (vT0, sA, vT0))
    g.I('ds_read_b128 %s, v%d offset:%d' % (vr(frag), vT0, L_XN))
    g.I('s_waitcnt lgkmcnt(0)')
    if 'g' in g.vm:
        g.vm_wait('g')
    tile32(g, GR, frag, acc, True, frag_is_A=True, PT=tmp)
    for dd in range(8):
        g.I('v_mov_b32 v%d, v%d' % (gat + dd, acc + 4 * dd))
    g.I('s_lshl_b32 s%d, s%d, 9' % (sB, sWAVE))
    g.I('v_lshlrev_b32 v%d, 5, v%d' % (vT0, vN))
    g.I('v_add_u32 v%d, s%d, v%d' % (vT0, sB, vT0))
    g.I('s_mov_b64 exec, 0xffff')
    g.I('ds_write_b128 v%d, %s offset:%d' % (vT0, vr(gat), L_GB))
    g.I('ds_write_b128 v%d, %s offset:%d' % (vT0, vr(gat + 4), L_GB + 16))
    g.I('s_mov_b64 exec, 1')
    g.I('v_mov_b32 v%d, 1' % vT1)
    g.I('s_waitcnt lgkmcnt(0)')
    g.I('ds_add_u32 v%d, v%d offset:%d' % (vZERO, vT1, L_CNT))
    g.I('s_mov_b64 exec, -1')
    stamp(g, 'gu_done')


def prologue_wave0(g):
    orig = g.vmem
    ow = g.vm_wait
    def vm2(text, tag=None, window=None):
        if (tag == 'clr' and P['SKIP'] & 1) or (tag and tag.startswith('q') and tag != 'qp' and P['SKIP'] & 2) or (tag and tag.startswith('wq') and P['SKIP'] & 16):
            return
        orig(text, tag, window)
    def w2(tag):
        if tag not in g.vm:
            g.vm_wait_all()
            return
        ow(tag)
    g.vmem = vm2
    g.vm_wait = w2
    nt = P['NT']
    W0 = P['W0']
    g.I('v_lshlrev_b32 v%d, 5, v%d' % (vT0, vLANE))
    g.vmem('buffer_load_dwordx4 %s, v%d, %s, 0 offen' % (vr(16), vT0, sq(SRD_X)), 'x')
    g.vmem('buffer_load_dwordx4 %s, v%d, %s, 0 offen offset:16' % (vr(20), vT0, sq(SRD_X)), 'x')
    lb = g.newlabel('L_nonce')
    g.I('s_cmp_lg_u32 s2, 0')
    g.I('s_cbranch_scc1 %s' % lb)
    g.I('s_memrealtime s[%d:%d]' % (sN0, sN1))
    g.I('s_waitcnt lgkmcnt(0)')
    g.I('s_or_b32 s%d, s%d, 1' % (sN0, sN0))
    g.I('v_mov_b32 v28, s%d' % sN0)
    g.I('v_mov_b32 v29, s%d' % sN1)
    g.I('s_mov_b64 exec, 1')
    g.I('buffer_store_dwordx2 v[28:29], v%d, %s, 0 offen offset:8 sc1' % (vZERO, sq(SRD_DBG)))
    g.I('s_mov_b64 exec, -1')
    g.I('s_waitcnt vmcnt(0)')
    g.label(lb)
    g.vm_done = 0
    g.I('v_lshlrev_b32 v%d, 16, v%d' % (vT1, vJ))
    g.I('v_lshl_add_u32 v%d, v%d, 4, v%d' % (vT1, vN, vT1))
    g.I('s_lshl_b32 s%d, s%d, 20' % (sA, sCB))
    g.I('s_lshl_b32 s%d, s%d, 8' % (sB, sH))
    g.I('s_add_u32 s%d, s%d, s%d' % (sA, sA, sB))
    for T in range(4):
        for e in range(8):
            g.I('s_add_u32 s%d, s%d, 0x%x' % (sT, sA, (32 * T + e) * 8192))
            g.vmem('buffer_load_dwordx4 %s, v%d, %s, s%d offen%s' % (vr(KR + (T * 8 + e) * 4), vT1, sq(SRD_WQ), sT, nt),
                   'wq%d' % T, P['WP'])
    if P['GD']:
        gd_loads(g, VA + 32, P['WP'])
    for i in range(4):
        g.I('v_mov_b32 v%d, -1' % (24 + i))
    g.I('s_lshl_b32 s%d, s2, 12' % sA)
    g.I('s_add_u32 s%d, s%d, 0x%x' % (sA, sA, WS_AP))
    for i in range(4):
        g.vmem('buffer_store_dwordx4 %s, v%d, %s, s%d offen offset:%d sc1' % (vr(24), vVOFF, sq(SRD_WS), sA, i * 1024), 'clr')
    if P['GD']:
        g.I('s_mov_b32 exec_hi, 0')
        g.vmem('buffer_store_dwordx4 %s, v%d, %s, s%d offen sc1' % (vr(24), vVOFF, sq(SRD_WS), sGP), 'clr')
    else:
        g.I('s_mul_i32 s%d, s%d, 28672' % (sA, sH))
        g.I('s_mul_i32 s%d, s%d, 3584' % (sB, sCB))
        g.I('s_add_u32 s%d, s%d, s%d' % (sA, sA, sB))
        g.I('s_add_u32 s%d, s%d, 0x%x' % (sA, sA, WS_GP))
        for i in range(3):
            g.vmem('buffer_store_dwordx4 %s, v%d, %s, s%d offen offset:%d sc1' % (vr(24), vVOFF, sq(SRD_WS), sA, i * 1024), 'clr')
        g.I('s_mov_b32 exec_hi, 0')
        g.vmem('buffer_store_dwordx4 %s, v%d, %s, s%d offen offset:%d sc1' % (vr(24), vVOFF, sq(SRD_WS), sA, 3072), 'clr')
    g.I('s_mov_b64 exec, 0xf')
    g.I('s_lshl_b32 s%d, s2, 6' % sA)
    g.I('s_add_u32 s%d, s%d, 0x%x' % (sA, sA, WS_ML))
    g.vmem('buffer_store_dwordx4 %s, v%d, %s, s%d offen sc1' % (vr(24), vVOFF, sq(SRD_WS), sA), 'clr')
    g.I('s_mov_b64 exec, -1')
    g.I('s_lshl_b32 s%d, s2, 10' % sA)
    g.I('s_add_u32 s%d, s%d, 0x%x' % (sA, sA, WS_FP))
    g.vmem('buffer_store_dwordx4 %s, v%d, %s, s%d offen sc1' % (vr(24), vVOFF, sq(SRD_WS), sA), 'clr')
    g.I('ds_write_b32 v%d, v%d offset:%d' % (vZERO, vZERO, L_FLAG))
    g.I('ds_write_b32 v%d, v%d offset:%d' % (vZERO, vZERO, L_CNT))
    g.I('s_waitcnt lgkmcnt(0)')
    g.I('s_barrier')
    stamp(g, 'w0_issued')
    g.vm_wait('x')
    X = SA
    for d in range(8):
        g.I('v_lshlrev_b32 v%d, 16, v%d' % (X + 2 * d, 16 + d))
        g.I('v_and_b32 v%d, 0xffff0000, v%d' % (X + 2 * d + 1, 16 + d))
    S = 48
    g.I('v_add_f32 v%d, v%d, v%d' % (S, X, X + 1))
    for i in range(2, 16):
        g.I('v_add_f32 v%d, v%d, v%d' % (S, S, X + i))

    def wave_sum(v):
        row_allreduce(g, 'v_add_f32', [v])
        xrow_allreduce(g, 'v_add_f32', v, 49)
    wave_sum(S)
    MEAN, D, VAR, SD, RC = 50, 51, 52, 54, 55
    g.I('v_mul_f32 v%d, %s, v%d' % (MEAN, f32(1.0 / 1024), S))
    g.I('v_mov_b32 v%d, 0' % S)
    for i in range(16):
        g.I('v_sub_f32 v%d, v%d, v%d' % (D, X + i, MEAN))
        g.I('v_fmac_f32 v%d, v%d, v%d' % (S, D, D))
    wave_sum(S)
    g.I('v_mul_f32 v%d, %s, v%d' % (VAR, f32(1.0 / 1024), S))
    bf_round(g, MEAN, 53)
    bf_round(g, VAR, 53)
    g.I('v_add_f32 v%d, %s, v%d' % (VAR, f32(1e-5), VAR))
    bf_round(g, VAR, 53)
    g.I('v_sqrt_f32 v%d, v%d' % (SD, VAR))
    g.I('v_rcp_f32 v%d, v%d' % (55, SD))
    g.I('v_fma_f32 v%d, -v%d, v%d, v%d' % (56, SD, SD, VAR))
    g.I('v_mul_f32 v%d, 0.5, v%d' % (55, 55))
    g.I('v_fmac_f32 v%d, v%d, v%d' % (SD, 56, 55))
    bf_round(g, SD, 53)
    g.I('v_rcp_f32 v%d, v%d' % (RC, SD))
    for d in range(8):
        a, b = X + 2 * d, X + 2 * d + 1
        g.I('v_sub_f32 v%d, v%d, v%d' % (a, a, MEAN))
        g.I('v_sub_f32 v%d, v%d, v%d' % (b, b, MEAN))
        bf_round2(g, a, b, 53)
        for x in (a, b):
            g.I('v_mul_f32 v%d, v%d, v%d' % (56, x, RC))
            g.I('v_fma_f32 v%d, -v%d, v%d, v%d' % (57, 56, SD, x))
            g.I('v_fma_f32 v%d, v%d, v%d, v%d' % (x, 57, RC, 56))
        g.I('v_cvt_pk_bf16_f32 v%d, v%d, v%d' % (16 + d, a, b))
    g.I('ds_write_b128 v%d, %s offset:%d' % (vT0, vr(16), L_XN))
    g.I('ds_write_b128 v%d, %s offset:%d' % (vT0, vr(20), L_XN + 16))
    g.I('v_lshlrev_b32 v%d, 4, v%d' % (vT2, vJ))
    g.I('s_lshl_b32 s%d, s%d, 8' % (sA, sCB))
    g.I('v_add_u32 v%d, s%d, v%d' % (vT2, sA, vT2))
    g.I('s_waitcnt lgkmcnt(0)')
    g.vm_wait('clr')
    for T in range(4):
        g.I('ds_read_b128 %s, v%d offset:%d' % (vr(16 + 4 * T), vT2, L_XN + 64 * T))
    g.I('v_mov_b32 v%d, 1' % vT3)
    g.I('ds_write_b32 v%d, v%d offset:%d' % (vZERO, vT3, L_FLAG))
    g.I('s_waitcnt lgkmcnt(0)')
    ACC = SA
    for T in range(4):
        tile32(g, KR + T * 32, 16 + 4 * T, ACC, T == 0, frag_is_A=True, PT=VA)
    for dd in range(8):
        g.I('v_mov_b32 v%d, v%d' % (16 + dd, ACC + 4 * dd))
    stamp(g, 'w0_qproj')
    g.I('v_lshlrev_b32 v%d, 5, v%d' % (vT2, vN))
    g.I('s_lshl_b32 s%d, s%d, 15' % (sA, sG))
    g.I('s_lshl_b32 s%d, s%d, 12' % (sB, sCB))
    g.I('s_add_u32 s%d, s%d, s%d' % (sA, sA, sB))
    g.I('s_and_b32 s%d, s%d, 7' % (sB, sH))
    g.I('s_lshl_b32 s%d, s%d, 9' % (sB, sB))
    g.I('s_add_u32 s%d, s%d, s%d' % (sB, sA, sB))
    g.I('s_mov_b64 exec, 0xffff')
    g.vmem('buffer_store_dwordx4 %s, v%d, %s, s%d offen sc1' % (vr(16), vT2, sq(SRD_WS), sB), 'qp')
    g.vmem('buffer_store_dwordx4 %s, v%d, %s, s%d offen offset:16 sc1' % (vr(20), vT2, sq(SRD_WS), sB), 'qp')
    g.I('s_mov_b64 exec, -1')
    ok = g.newlabel('L_nok')
    lp = g.newlabel('L_npoll')
    g.label(lp)
    g.I('buffer_load_dwordx2 v[28:29], v%d, %s, 0 offen offset:8 sc1' % (vZERO, sq(SRD_DBG)))
    g.I('s_waitcnt vmcnt(0)')
    g.I('v_readfirstlane_b32 s%d, v28' % sN0)
    g.I('v_readfirstlane_b32 s%d, v29' % sN1)
    g.I('s_nop 3')
    g.I('s_cmp_lg_u32 s%d, 0' % sN0)
    g.I('s_cbranch_scc1 %s' % ok)
    spin_guard(g, ok)
    g.I('s_sleep 8')
    g.I('s_branch %s' % lp)
    g.label(ok)
    g.vm_reset()
    g.I('s_lshl_b32 s%d, s%d, 12' % (sF, sG))
    g.I('s_add_u32 s%d, s%d, 0x%x' % (sF, sF, WS_FL))
    g.I('s_and_b32 s%d, s2, 63' % sB)
    g.I('s_lshl_b32 s%d, s%d, 3' % (sB, sB))
    g.I('s_add_u32 s%d, s%d, s%d' % (sB, sB, sF))
    g.I('s_mov_b64 exec, 1')
    g.vmem('buffer_store_dwordx2 v[28:29], v%d, %s, s%d offen sc1' % (vZERO, sq(SRD_WS), sB), 'fl')
    g.I('s_mov_b64 exec, -1')
    stamp(g, 'w0_flag')
    if P['GD']:
        gd_tile(g, VA + 32, 16, SA, VA, 20)
    for n in range(0, P['KP']):
        kload(g, n, W0)
    g.I('v_lshlrev_b32 v%d, 3, v%d' % (vT3, vLANE))
    flag_poll(g, [sF])
    stamp(g, 'w0_polled')
    g.I('s_lshl_b32 s%d, s%d, 15' % (sA, sG))
    QA = SA
    for half in range(2):
        for k4 in range(4):
            ks = half * 4 + k4
            g.I('s_add_u32 s%d, s%d, 0x%x' % (sT, sA, WS_QP + ks * 4096))
            for i in range(4):
                g.vmem('buffer_load_dwordx4 %s, v%d, %s, s%d offen offset:%d sc1' % (vr(VA + (k4 * 4 + i) * 4), vVOFF, sq(SRD_WS), sT, i * 1024),
                       'q%d' % ks)
        for k4 in range(4):
            ks = half * 4 + k4
            g.vm_wait('q%d' % ks)
            for r in range(16):
                if ks == 0:
                    g.I('v_mov_b32 v%d, v%d' % (QA + r, VA + r))
                else:
                    g.I('v_add_f32 v%d, v%d, v%d' % (QA + r, QA + r, VA + k4 * 16 + r))
    g.I('v_lshlrev_b32 v%d, 3, v%d' % (vT2, vLANE))
    for i in range(4):
        g.I('v_cvt_pk_bf16_f32 v%d, v%d, v%d' % (16 + 2 * i, QA + 4 * i, QA + 4 * i + 1))
        g.I('v_cvt_pk_bf16_f32 v%d, v%d, v%d' % (17 + 2 * i, QA + 4 * i + 2, QA + 4 * i + 3))
        g.I('ds_write_b64 v%d, %s offset:%d' % (vT2, vr(16 + 2 * i, 2), L_Q + i * 512))
    g.I('v_mov_b32 v%d, 2' % vT4)
    g.I('s_waitcnt lgkmcnt(0)')
    g.I('ds_write_b32 v%d, v%d offset:%d' % (vZERO, vT4, L_FLAG))
    for i in range(4):
        g.I('s_mov_b32 s%d, 0x%x' % (90 + i, WS_FL + i * 4096))
    flag_poll(g, [90, 91, 92, 93])
    g.I('v_mov_b32 v%d, 3' % vT4)
    g.I('ds_write_b32 v%d, v%d offset:%d' % (vZERO, vT4, L_FLAG))
    if P['GD']:
        wait_flag(g, 8, L_CNT)
        for w in range(8):
            g.I('ds_read_b128 %s, v%d offset:%d' % (vr(VA + 4 * w), vVOFF, L_GB + w * 512))
        g.I('s_waitcnt lgkmcnt(0)')
        for w in range(1, 8):
            for c in range(4):
                g.I('v_add_f32 v%d, v%d, v%d' % (VA + c, VA + c, VA + 4 * w + c))
        g.I('s_mov_b32 exec_hi, 0')
        g.vmem('buffer_store_dwordx4 %s, v%d, %s, s%d offen sc1' % (vr(VA), vVOFF, sq(SRD_WS), sGP), 'gp')
        g.I('s_mov_b64 exec, -1')
        g.vm_wait('gp')
        stamp(g, 'w0_gp')
    elif P['DEL'] and not P['GL']:
        wait_flag(g, 7, L_CNT)
        for i in range(4):
            g.I('ds_read_b128 %s, v%d offset:%d' % (vr(16 + 4 * i), vVOFF, L_GB + i * 1024))
        g.I('s_mul_i32 s%d, s%d, 28672' % (sA, sH))
        g.I('s_mul_i32 s%d, s%d, 3584' % (sB, sCB))
        g.I('s_add_u32 s%d, s%d, s%d' % (sA, sA, sB))
        g.I('s_add_u32 s%d, s%d, 0x%x' % (sA, sA, WS_GP))
        g.I('s_waitcnt lgkmcnt(0)')
        for i in range(3):
            g.vmem('buffer_store_dwordx4 %s, v%d, %s, s%d offen offset:%d sc1' % (vr(16 + 4 * i), vVOFF, sq(SRD_WS), sA, i * 1024), 'gp')
        g.I('s_mov_b32 exec_hi, 0')
        g.vmem('buffer_store_dwordx4 %s, v%d, %s, s%d offen offset:%d sc1' % (vr(28), vVOFF, sq(SRD_WS), sA, 3072), 'gp')
        g.I('s_mov_b64 exec, -1')
        stamp(g, 'w0_gp')
    for n in range(P['KP'], 32):
        kload(g, n, W0)


def main_path(g, w0):
    W = P['W0'] if w0 else P['W']
    nt = P['NT']
    GL = P['GL']
    g.comment('---------------- main path (wave0=%s)' % w0)
    stamp(g, 'main_start')

    def vbase(T):
        return VA + 32 * T if T < 2 else KR + 32 * (T - 2)

    def vload(T, e):
        g.I('s_add_u32 s%d, s%d, 0x%x' % (sT2, sKV, (T * 8 + e) << 19))
        g.vmem('buffer_load_dwordx4 %s, v%d, %s, s%d offen%s' % (vr(vbase(T) + e * 4), vVOFF, sq(SRD_V), sT2, nt), 'v%d' % T, W)

    GR = VA

    def g_loads(win, b0=False):
        g.I('s_mov_b32 s%d, 57344' % sA)
        g.I('v_mul_lo_u32 v%d, v%d, s%d' % (vT2, vJ, sA))
        g.I('v_lshl_add_u32 v%d, v%d, 4, v%d' % (vT2, vN, vT2))
        g.I('s_mul_i32 s%d, s%d, %d' % (sA, sH, 32 * 7168))
        g.I('s_and_b32 s%d, s%d, 3' % (sB, sCB))
        g.I('s_mul_i32 s%d, s%d, 1792' % (sB, sB))
        g.I('s_add_u32 s%d, s%d, s%d' % (sA, sA, sB))
        g.I('s_lshl_b32 s%d, s%d, 8' % (sB, sWAVE))
        g.I('s_add_u32 s%d, s%d, s%d' % (sA, sA, sB))
        g.I('s_sub_u32 s%d, s%d, 256' % (sA, sA))
        for e in range(8):
            g.I('s_add_u32 s%d, s%d, %d' % (sT, sA, e * 7168))
            g.vmem('buffer_load_dwordx4 %s, v%d, %s, s%d offen%s' % (vr(GR + 4 * e), vT2, sq(SRD_GU), sT, nt), 'g', win)
            if b0 and e == min(win, 8) - 1:
                g.I('s_barrier')

    def g_tile(frag, acc, tmp, gat):
        g.I('v_lshlrev_b32 v%d, 4, v%d' % (vT0, vJ))
        g.I('s_lshl_b32 s%d, s%d, 6' % (sA, sH))
        g.I('v_add_u32 v%d, s%d, v%d' % (vT0, sA, vT0))
        g.I('ds_read_b128 %s, v%d offset:%d' % (vr(frag), vT0, L_XN))
        g.I('s_waitcnt lgkmcnt(0)')
        g.vm_wait('g')
        tile32(g, GR, frag, acc, True, frag_is_A=True, PT=tmp)
        for dd in range(8):
            g.I('v_mov_b32 v%d, v%d' % (gat + dd, acc + 4 * dd))
        if P['DEL'] and not GL:
            g.I('s_lshl_b32 s%d, s%d, 9' % (sB, sWAVE))
            g.I('v_lshlrev_b32 v%d, 5, v%d' % (vT0, vN))
            g.I('v_add_u32 v%d, s%d, v%d' % (vT0, sB, vT0))
            g.I('s_mov_b64 exec, 0xffff')
            g.I('ds_write_b128 v%d, %s offset:%d' % (vT0, vr(gat), L_GB - 512))
            g.I('ds_write_b128 v%d, %s offset:%d' % (vT0, vr(gat + 4), L_GB - 512 + 16))
            g.I('s_mov_b64 exec, 1')
            g.I('v_mov_b32 v%d, 1' % vT1)
            g.I('s_waitcnt lgkmcnt(0)')
            g.I('ds_add_u32 v%d, v%d offset:%d' % (vZERO, vT1, L_CNT))
            g.I('s_mov_b64 exec, -1')
            stamp(g, 'gu_done')
            return
        g.I('s_mul_i32 s%d, s%d, 28672' % (sA, sH))
        g.I('s_mul_i32 s%d, s%d, 3584' % (sB, sCB))
        g.I('s_add_u32 s%d, s%d, s%d' % (sA, sA, sB))
        g.I('s_lshl_b32 s%d, s%d, 9' % (sB, sWAVE))
        g.I('s_add_u32 s%d, s%d, s%d' % (sA, sA, sB))
        g.I('s_add_u32 s%d, s%d, 0x%x' % (sA, sA, WS_GP - 512))
        g.I('v_lshlrev_b32 v%d, 5, v%d' % (vT0, vN))
        g.I('s_mov_b64 exec, 0xffff')
        if not P['SKIP'] & 32:
            g.vmem('buffer_store_dwordx4 %s, v%d, %s, s%d offen sc1' % (vr(gat), vT0, sq(SRD_WS), sA), 'gp')
            g.vmem('buffer_store_dwordx4 %s, v%d, %s, s%d offen offset:16 sc1' % (vr(gat + 4), vT0, sq(SRD_WS), sA), 'gp')
        g.I('s_mov_b64 exec, -1')
        stamp(g, 'gu_done')

    def wd_loads(WDR, win):
        g.I('v_lshlrev_b32 v%d, 13, v%d' % (vT4, vJ))
        g.I('v_lshl_add_u32 v%d, v%d, 4, v%d' % (vT4, vN, vT4))
        g.I('s_mul_i32 s%d, s%d, 112' % (sA, sH))
        g.I('s_lshl_b32 s%d, s%d, 4' % (sB, sWAVE))
        g.I('s_add_u32 s%d, s%d, s%d' % (sA, sA, sB))
        g.I('s_sub_u32 s%d, s%d, 16' % (sE, sA))
        g.I('s_lshl_b32 s%d, s%d, 11' % (sA, sE))
        g.I('s_lshl_b32 s%d, s%d, 8' % (sB, sCB))
        g.I('s_add_u32 s%d, s%d, s%d' % (sA, sA, sB))
        for e in range(4):
            g.I('s_add_u32 s%d, s%d, %d' % (sT, sA, e * 2048))
            g.vmem('buffer_load_dwordx4 %s, v%d, %s, s%d offen%s' % (vr(WDR + 4 * e), vT4, sq(SRD_WD), sT, nt), 'wd', win)

    def h_load_list(HD):
        if P['GD']:
            g.I('v_and_b32 v%d, 3, v%d' % (vT5, vN))
            g.I('s_mov_b32 s%d, 28672' % sT)
            g.I('v_mul_lo_u32 v%d, v%d, s%d' % (vT5, vT5, sT))
            g.I('v_bfe_u32 v%d, v%d, 2, 1' % (vT0, vN))
            g.I('s_mov_b32 s%d, 14336' % sT)
            g.I('v_mul_lo_u32 v%d, v%d, s%d' % (vT0, vT0, sT))
            g.I('v_add_u32 v%d, v%d, v%d' % (vT5, vT5, vT0))
            g.I('v_lshl_add_u32 v%d, v%d, 4, v%d' % (vT5, vJ, vT5))
            g.I('s_lshl_b32 s%d, s%d, 2' % (90, sE))
            g.I('s_add_u32 s%d, s%d, 0x%x' % (90, 90, WS_GP))
            return ['buffer_load_dwordx4 %s, v%d, %s, s90 offen sc1' % (vr(HD), vT5, sq(SRD_WS))]
        g.I('s_mov_b32 s%d, 28672' % sT)
        g.I('v_mul_lo_u32 v%d, v%d, s%d' % (vT5, vN, sT))
        g.I('v_lshl_add_u32 v%d, v%d, 4, v%d' % (vT5, vJ, vT5))
        g.I('s_lshl_b32 s%d, s%d, 2' % (90, sE))
        g.I('s_add_u32 s%d, s%d, 0x%x' % (90, 90, WS_GP))
        g.I('s_add_u32 s%d, s%d, %d' % (91, 90, 16 * 28672))
        g.I('s_add_u32 s%d, s%d, %d' % (92, 90, 14336))
        g.I('s_add_u32 s%d, s%d, %d' % (93, 90, 14336 + 16 * 28672))
        return ['buffer_load_dwordx4 %s, v%d, %s, s%d offen sc1' % (vr(HD + 4 * i), vT5, sq(SRD_WS), 90 + i) for i in range(4)]

    def h_compute(HD, HFR):
        GG, UU = HD, HD + 8
        if P['GD']:
            for qp in ('[1,0,3,2]', '[2,3,0,1]'):
                for c in range(4):
                    g.I('v_add_f32_dpp v%d, v%d, v%d quad_perm:%s row_mask:0xf bank_mask:0xf' % (GG + c, GG + c, GG + c, qp))
            for c in range(4):
                g.I('v_mov_b32_dpp v%d, v%d row_ror:4 row_mask:0xf bank_mask:0xf' % (UU + c, GG + c))
        else:
            for c in range(4):
                g.I('v_add_f32 v%d, v%d, v%d' % (GG + c, GG + c, GG + 4 + c))
                g.I('v_add_f32 v%d, v%d, v%d' % (UU + c, UU + c, UU + 4 + c))
            row_allreduce(g, 'v_add_f32', [GG + c for c in range(4)] + [UU + c for c in range(4)])
        for c in range(0, 4, 2):
            bf_round2(g, GG + c, GG + c + 1, vT0)
            bf_round2(g, UU + c, UU + c + 1, vT0)
        k0, k1 = 0.7978845608028654, 0.044715
        c2 = -2.0 * k0 * 1.4426950408889634
        for c in range(4):
            x, t = GG + c, GG + 4 + c
            g.I('v_mul_f32 v%d, v%d, v%d' % (t, x, x))
            g.I('v_mul_f32 v%d, v%d, v%d' % (t, t, x))
            g.I('v_mul_f32 v%d, %s, v%d' % (t, f32(k1), t))
            g.I('v_add_f32 v%d, v%d, v%d' % (t, t, x))
            g.I('v_mul_f32 v%d, %s, v%d' % (t, f32(c2), t))
            g.I('v_exp_f32 v%d, v%d' % (t, t))
            g.I('v_add_f32 v%d, 1.0, v%d' % (t, t))
            g.I('v_rcp_f32 v%d, v%d' % (t, t))
            g.I('v_mul_f32 v%d, v%d, v%d' % (x, x, t))
        for c in range(0, 4, 2):
            bf_round2(g, GG + c, GG + c + 1, vT0)
        for c in range(4):
            g.I('v_mul_f32 v%d, v%d, v%d' % (GG + c, GG + c, UU + c))
        g.I('v_cvt_pk_bf16_f32 v%d, v%d, v%d' % (HFR, GG, GG + 1))
        g.I('v_cvt_pk_bf16_f32 v%d, v%d, v%d' % (HFR + 1, GG + 2, GG + 3))

    def wo_loads(WOR, win):
        g.I('v_lshlrev_b32 v%d, 11, v%d' % (vT3, vJ))
        g.I('v_lshl_add_u32 v%d, v%d, 4, v%d' % (vT3, vN, vT3))
        g.I('s_lshl_b32 s%d, s%d, 7' % (sA, sH))
        g.I('s_lshr_b32 s%d, s%d, 1' % (sB, sWAVE))
        g.I('s_lshl_b32 s%d, s%d, 5' % (sB, sB))
        g.I('s_add_u32 s%d, s%d, s%d' % (sA, sA, sB))
        g.I('s_and_b32 s%d, s%d, 1' % (sB, sWAVE))
        g.I('s_lshl_b32 s%d, s%d, 2' % (sB, sB))
        g.I('s_add_u32 s%d, s%d, s%d' % (sA, sA, sB))
        g.I('s_lshl_b32 s%d, s%d, 11' % (sA, sA))
        g.I('s_lshl_b32 s%d, s%d, 8' % (sB, sCB))
        g.I('s_add_u32 s%d, s%d, s%d' % (sA, sA, sB))
        for e in range(4):
            g.I('s_add_u32 s%d, s%d, %d' % (sT, sA, e * 16384))
            g.vmem('buffer_load_dwordx4 %s, v%d, %s, s%d offen%s' % (vr(WOR + 4 * e), vT3, sq(SRD_WO), sT, nt), 'wo', win)

    if not w0:
        if P['GD']:
            gd_loads(g, GR, W, b0=True)
        elif not GL and not P['SKIP'] & 4:
            g_loads(W, b0=True)
        for n in range(32):
            kload(g, n, W)
            if (GL or P['SKIP'] & 4) and n == W - 1:
                g.I('s_barrier')
            if not GL and n + 1 == P['KG'] and not P['SKIP'] & 4:
                wait_flag(g, 1)
                if P['GD']:
                    gd_tile(g, GR, QF, SA, VA + 32, QF + 8)
                else:
                    g_tile(QF, SA, VA + 32, QF + 8)
    pend = [(T, e) for T in range(4) for e in range(8)]

    def issue(nn):
        for _ in range(nn):
            if pend:
                T, e = pend.pop(0)
                vload(T, e)

    def issue_through(T):
        while pend and pend[0][0] <= T:
            issue(1)

    issue(P['QPOS0'] if w0 else P['QPOS'])
    stamp(g, 'kv_issued')
    if not w0:
        wait_flag(g, 2)
    g.I('v_and_b32 v%d, 7, v%d' % (vT0, vN))
    g.I('v_lshlrev_b32 v%d, 8, v%d' % (vT0, vT0))
    g.I('v_lshl_add_u32 v%d, v%d, 4, v%d' % (vT0, vJ, vT0))
    g.I('v_lshrrev_b32 v%d, 3, v%d' % (vT1, vN))
    g.I('v_lshl_add_u32 v%d, v%d, 6, v%d' % (vT0, vT1, vT0))
    for i in range(2):
        g.I('ds_read_b128 %s, v%d offset:%d' % (vr(QF + 4 * i), vT0, L_Q + i * 128))
    g.I('s_waitcnt lgkmcnt(0)')
    stamp(g, 'q_ready')

    def dreg(X):
        return QF + 8 if X == 0 else KR + (X - 1) * 8

    def adds(X):
        d = dreg(X)
        g.I('v_add_f32_dpp v%d, v%d, v%d row_ror:8 row_mask:0xf bank_mask:0xf' % (SA + 2 * X, d + 1, d))
        g.I('v_add_f32_dpp v%d, v%d, v%d row_ror:8 row_mask:0xf bank_mask:0xf' % (SA + 2 * X + 1, d + 3, d + 2))
    for X in range(16):
        g.vm_wait('k%d' % X)
        d = dreg(X)
        g.I('v_mfma_f32_16x16x32_bf16 %s, %s, %s, 0' % (vr(d), vr(KR + X * 8), vr(QF)))
        g.I('v_mfma_f32_16x16x32_bf16 %s, %s, %s, %s' % (vr(d), vr(KR + X * 8 + 4), vr(QF + 4), vr(d)))
        if X >= 3:
            adds(X - 3)
    for X in range(13, 16):
        adds(X)
    stamp(g, 'qk_done')
    for r in range(0, 32, 2):
        a, b = SA + r, SA + r + 1
        bf_round2(g, a, b, vT0)
        g.I('v_mul_f32 v%d, s%d, v%d' % (a, sSCALE, a))
        g.I('v_mul_f32 v%d, s%d, v%d' % (b, sSCALE, b))
        bf_round2(g, a, b, vT1)
        if r == 0:
            g.I('v_max_f32 v%d, v%d, v%d' % (vM, a, b))
        else:
            g.I('v_max3_f32 v%d, v%d, v%d, v%d' % (vM, vM, a, b))
        if r % 8 == 6:
            issue(1)
    xrow_allreduce(g, 'v_max_f32', vM, vT0)
    for r in range(32):
        a = SA + r
        g.I('v_sub_f32 v%d, v%d, v%d' % (a, a, vM))
        g.I('v_mul_f32 v%d, s%d, v%d' % (a, sLOG2E, a))
        g.I('v_exp_f32 v%d, v%d' % (a, a))
        if r % 8 == 7:
            issue(1)
    g.I('v_add_f32 v%d, v%d, v%d' % (vL, SA, SA + 1))
    for r in range(2, 32):
        g.I('v_add_f32 v%d, v%d, v%d' % (vL, vL, SA + r))
    for r in range(0, 32, 2):
        g.I('v_cvt_pk_bf16_f32 v%d, v%d, v%d' % (PF + r // 2, SA + r, SA + r + 1))
    xrow_allreduce(g, 'v_add_f32', vL, vT0)
    stamp(g, 'sm_done')
    WOR = VA + 32
    WDG = QF + 8
    WOG = VA
    HFR = PT + 2
    hloads = []
    if not w0 and not GL and not P['SKIP'] & 8:
        WDR, HD = SA, SA + 16
        if P['DEL'] == 1:
            wd_loads(WDR, W)
        else:
            wait_flag(g, 3)
            wd_loads(WDR, W)
            hloads = h_load_list(HD)
            for t in hloads:
                g.vmem(t, 'h', W)
    for T in range(4):
        issue_through(min(T + 1, 3))
        if GL and T == 3 and not w0:
            g_loads(P['WT'] + 4)
        g.vm_wait('v%d' % T)
        if not GL and T == P['TH'] and not w0 and not P['SKIP'] & 8 and P['DEL'] != 1:
            g.vm_wait('h')
            sv = (list(g.vm), g.vm_done)
            ok = g.newlabel('L_hok')
            nh = 4 * len(hloads)
            umax_tree(g, range(HD, HD + nh), vT1)
            g.I('v_cmp_eq_u32 vcc, -1, v%d' % vT1)
            g.I('s_cbranch_vccz %s' % ok)
            poll_valid(g, hloads, range(HD, HD + nh), vT1)
            g.label(ok)
            g.vm, g.vm_done = sv
            h_compute(HD, HFR)
            tile16g(g, WDR, HFR, HD, WDG)
            stamp(g, 'wd_done')
        if T == 3 and not GL:
            wo_loads(WOR, P['WT'])
        tile32(g, vbase(T), PF + 4 * T, OA, T == 0, frag_is_A=False)
    stamp(g, 'pv_done')
    if w0 and P['DEL'] == 1 and not GL:
        HB = VA - 32
        bases = [32, 48, 64, 80, 128, 144, 160]
        g.I('s_mov_b32 s%d, 28672' % sT)
        g.I('v_mul_lo_u32 v%d, v%d, s%d' % (vT5, vN, sT))
        g.I('v_lshl_add_u32 v%d, v%d, 4, v%d' % (vT5, vJ, vT5))
        g.I('s_mul_i32 s%d, s%d, 448' % (90, sH))
        g.I('s_add_u32 s%d, s%d, 0x%x' % (90, 90, WS_GP))
        g.I('s_add_u32 s%d, s%d, %d' % (91, 90, 16 * 28672))
        g.I('s_add_u32 s%d, s%d, %d' % (92, 90, 14336))
        g.I('s_add_u32 s%d, s%d, %d' % (93, 90, 14336 + 16 * 28672))
        hl = []
        regs = []
        for wq_ in range(7):
            hl += ['buffer_load_dwordx4 %s, v%d, %s, s%d offen offset:%d sc1' % (vr(bases[wq_] + 4 * i), vT5, sq(SRD_WS), 90 + i, wq_ * 64)
                   for i in range(4)]
            regs += list(range(bases[wq_], bases[wq_] + 16))
        poll_valid(g, hl, regs, vT1)
        g.I('v_lshlrev_b32 v%d, 3, v%d' % (vT2, vJ))
        g.I('s_mov_b32 s%d, 0x00010001' % sEX)
        g.I('s_mov_b32 s%d, 0x00010001' % (sEX + 1))
        for wq_ in range(7):
            h_compute(bases[wq_], HFR)
            g.I('s_mov_b64 exec, s[%d:%d]' % (sEX, sEX + 1))
            g.I('ds_write_b64 v%d, %s offset:%d' % (vT2, vr(HFR, 2), L_HB + wq_ * 32))
            g.I('s_mov_b64 exec, -1')
        g.I('v_mov_b32 v%d, 4' % vT4)
        g.I('s_waitcnt lgkmcnt(0)')
        g.I('ds_write_b32 v%d, v%d offset:%d' % (vZERO, vT4, L_FLAG))
        stamp(g, 'w0_h')
    g.I('s_mul_i32 s%d, s%d, 4224' % (sA, sWAVE))
    g.I('v_mul_u32_u24 v%d, 528, v%d' % (vT0, vN))
    g.I('v_lshl_add_u32 v%d, v%d, 7, v%d' % (vT0, vJ, vT0))
    g.I('v_add_u32 v%d, s%d, v%d' % (vT0, sA, vT0))
    g.I('s_mov_b32 s%d, 0x00ff00ff' % sEX)
    g.I('s_mov_b32 s%d, 0x00ff00ff' % (sEX + 1))
    g.I('s_mov_b64 exec, s[%d:%d]' % (sEX, sEX + 1))
    for dd in range(8):
        g.I('ds_write_b128 v%d, %s offset:%d' % (vT0, vr(OA + 4 * dd), L_OW + dd * 16))
    g.I('s_mov_b64 exec, 0xff')
    g.I('s_lshl_b32 s%d, s%d, 6' % (sA, sWAVE))
    g.I('v_lshlrev_b32 v%d, 3, v%d' % (vT1, vLANE))
    g.I('v_add_u32 v%d, s%d, v%d' % (vT1, sA, vT1))
    g.I('ds_write_b64 v%d, %s offset:%d' % (vT1, vr(vM, 2), L_ML))
    g.I('s_mov_b64 exec, -1')
    g.I('s_waitcnt lgkmcnt(0)')
    g.I('s_barrier')
    stamp(g, 'b3')
    CO, CM = OA, OA + 16
    g.I('s_mul_i32 s%d, s%d, 528' % (sA, sWAVE))
    g.I('v_lshlrev_b32 v%d, 3, v%d' % (vT0, vLANE))
    g.I('v_add_u32 v%d, s%d, v%d' % (vT1, sA, vT0))
    g.I('s_lshl_b32 s%d, s%d, 3' % (sA, sWAVE))
    g.I('v_mov_b32 v%d, s%d' % (vT0, sA))
    for w in range(8):
        g.I('ds_read_b64 %s, v%d offset:%d' % (vr(CM + 2 * w, 2), vT0, L_ML + w * 64))
    for w in range(8):
        g.I('ds_read_b64 %s, v%d offset:%d' % (vr(CO + 2 * w, 2), vT1, L_OW + w * 4224))
    g.I('s_waitcnt lgkmcnt(0)')
    g.I('v_max3_f32 v%d, v%d, v%d, v%d' % (vM, CM, CM + 2, CM + 4))
    g.I('v_max3_f32 v%d, v%d, v%d, v%d' % (vM, vM, CM + 6, CM + 8))
    g.I('v_max3_f32 v%d, v%d, v%d, v%d' % (vM, vM, CM + 10, CM + 12))
    g.I('v_max_f32 v%d, v%d, v%d' % (vM, vM, CM + 14))
    for w in range(8):
        m = CM + 2 * w
        g.I('v_sub_f32 v%d, v%d, v%d' % (m, m, vM))
        g.I('v_mul_f32 v%d, s%d, v%d' % (m, sLOG2E, m))
        g.I('v_exp_f32 v%d, v%d' % (m, m))
    R0, R1 = PF, PF + 1
    for w in range(8):
        m = CM + 2 * w
        op = 'v_mul_f32' if w == 0 else 'v_fmac_f32'
        g.I('%s v%d, v%d, v%d' % (op, R0, m, CO + 2 * w))
        g.I('%s v%d, v%d, v%d' % (op, R1, m, CO + 2 * w + 1))
        g.I('%s v%d, v%d, v%d' % (op, vL, m, m + 1))
    g.I('v_lshrrev_b32 v%d, 3, v%d' % (vT0, vLANE))
    g.I('v_lshlrev_b32 v%d, 12, v%d' % (vT0, vT0))
    g.I('v_and_b32 v%d, 7, v%d' % (vT1, vLANE))
    g.I('v_lshl_add_u32 v%d, v%d, 3, v%d' % (vT0, vT1, vT0))
    g.I('s_lshl_b32 s%d, s%d, 18' % (sA, sG))
    g.I('s_lshl_b32 s%d, s%d, 15' % (sB, sWAVE))
    g.I('s_add_u32 s%d, s%d, s%d' % (sA, sA, sB))
    g.I('s_and_b32 s%d, s2, 63' % sC)
    g.I('s_lshl_b32 s%d, s%d, 6' % (sB, sC))
    g.I('s_add_u32 s%d, s%d, s%d' % (sA, sA, sB))
    g.I('s_add_u32 s%d, s%d, 0x%x' % (sA, sA, WS_AP))
    g.vmem('buffer_store_dwordx2 %s, v%d, %s, s%d offen sc1' % (vr(R0, 2), vT0, sq(SRD_WS), sA), 'ap')
    g.I('s_lshl_b32 s%d, s%d, 12' % (sA, sG))
    g.I('s_lshl_b32 s%d, s%d, 9' % (sB, sWAVE))
    g.I('s_add_u32 s%d, s%d, s%d' % (sA, sA, sB))
    g.I('s_lshl_b32 s%d, s%d, 3' % (sB, sC))
    g.I('s_add_u32 s%d, s%d, s%d' % (sA, sA, sB))
    g.I('s_add_u32 s%d, s%d, 0x%x' % (sA, sA, WS_ML))
    g.I('s_mov_b64 exec, 1')
    g.vmem('buffer_store_dwordx2 %s, v%d, %s, s%d offen sc1' % (vr(vM, 2), vZERO, sq(SRD_WS), sA), 'ml')
    g.I('s_mov_b64 exec, -1')
    stamp(g, 'ap_stored')
    if not w0 and not GL and P['DEL'] == 1 and not P['SKIP'] & 8:
        g.I('v_lshlrev_b32 v%d, 3, v%d' % (vT2, vJ))
        g.I('s_lshl_b32 s%d, s%d, 5' % (sB, sWAVE))
        g.I('v_add_u32 v%d, s%d, v%d' % (vT2, sB, vT2))
        g.I('ds_read_b64 %s, v%d offset:%d' % (vr(HFR, 2), vT2, L_HB - 32))
        g.I('s_waitcnt lgkmcnt(0)')
        g.vm_wait('wd')
        tile16g(g, WDR, HFR, HD, WDG)
        stamp(g, 'wd_done')
    if GL:
        WDR = VA + 48
        wo_loads(WOR, P['WT'] + 4)
        if not w0:
            wd_loads(WDR, P['WT'] + 4)
            g_tile(QF, KR, PT, QF + 8)
    MLr, AD = KR + 32, KR + 40
    g.I('s_lshl_b32 s%d, s%d, 9' % (sF, sH))
    g.I('s_add_u32 s%d, s%d, 0x%x' % (sF, sF, WS_ML))
    if w0:
        PR = PT
        g.I('v_lshlrev_b32 v%d, 3, v%d' % (vT3, vLANE))
        poll_valid(g, ['buffer_load_dwordx2 %s, v%d, %s, s%d offen sc1' % (vr(PR, 2), vT3, sq(SRD_WS), sF)],
                   range(PR, PR + 2), vT1, sleep=P['TSLEEP'], thr=P['THR'])
    stamp(g, 'pre_b5')
    g.I('s_barrier')
    loads = []
    g.I('v_lshlrev_b32 v%d, 3, v%d' % (vT0, vN))
    loads += ['buffer_load_dwordx2 %s, v%d, %s, s%d offen offset:%d sc1' % (vr(MLr + 2 * i, 2), vT0, sq(SRD_WS), sF, i * 128)
              for i in range(4)]
    g.I('v_lshlrev_b32 v%d, 6, v%d' % (vT2, vN))
    g.I('v_lshl_add_u32 v%d, v%d, 4, v%d' % (vT2, vJ, vT2))
    g.I('s_lshl_b32 s%d, s%d, 15' % (sD, sH))
    g.I('s_lshl_b32 s%d, s%d, 12' % (sB, sWAVE))
    g.I('s_add_u32 s%d, s%d, s%d' % (sD, sD, sB))
    g.I('s_add_u32 s%d, s%d, 0x%x' % (sD, sD, WS_AP))
    loads += ['buffer_load_dwordx4 %s, v%d, %s, s%d offen offset:%d sc1' % (vr(AD + 4 * i), vT2, sq(SRD_WS), sD, i * 1024)
              for i in range(4)]
    poll_valid(g, loads, range(MLr, MLr + 24), vT1)
    stamp(g, 'ml_ok')
    g.I('v_max3_f32 v%d, v%d, v%d, v%d' % (vM, MLr, MLr + 2, MLr + 4))
    g.I('v_max_f32 v%d, v%d, v%d' % (vM, vM, MLr + 6))
    row_allreduce(g, 'v_max_f32', [vM])
    for i in range(4):
        m = MLr + 2 * i
        g.I('v_sub_f32 v%d, v%d, v%d' % (m, m, vM))
        g.I('v_mul_f32 v%d, s%d, v%d' % (m, sLOG2E, m))
        g.I('v_exp_f32 v%d, v%d' % (m, m))
    OC = QF
    for i in range(4):
        m = MLr + 2 * i
        op = 'v_mul_f32' if i == 0 else 'v_fmac_f32'
        g.I('%s v%d, v%d, v%d' % (op, vL, m, m + 1))
        for c in range(4):
            g.I('%s v%d, v%d, v%d' % (op, OC + c, m, AD + 4 * i + c))
    row_allreduce(g, 'v_add_f32', [vL, OC, OC + 1, OC + 2, OC + 3])
    g.I('v_rcp_f32 v%d, v%d' % (vT0, vL))
    for c in range(4):
        x = OC + c
        g.I('v_mul_f32 v%d, v%d, v%d' % (vT1, x, vT0))
        g.I('v_fma_f32 v%d, -v%d, v%d, v%d' % (vT2, vT1, vL, x))
        g.I('v_fma_f32 v%d, v%d, v%d, v%d' % (x, vT2, vT0, vT1))
    OFR = QF + 4
    g.I('v_cvt_pk_bf16_f32 v%d, v%d, v%d' % (OFR, OC, OC + 1))
    g.I('v_cvt_pk_bf16_f32 v%d, v%d, v%d' % (OFR + 1, OC + 2, OC + 3))
    tile16g(g, WOR, OFR, OA, WOG)
    stamp(g, 'wo_done')
    if GL:
        if w0:
            PR = PT
            g.I('v_and_b32 v%d, 31, v%d' % (vT4, vLANE))
            g.I('s_mov_b32 s%d, 28672' % sT)
            g.I('v_mul_lo_u32 v%d, v%d, s%d' % (vT4, vT4, sT))
            g.I('v_lshrrev_b32 v%d, 5, v%d' % (vT5, vLANE))
            g.I('s_mov_b32 s%d, 14336' % sT)
            g.I('v_mul_lo_u32 v%d, v%d, s%d' % (vT5, vT5, sT))
            g.I('v_add_u32 v%d, v%d, v%d' % (vT4, vT4, vT5))
            g.I('s_mul_i32 s%d, s%d, 448' % (90, sH))
            g.I('s_add_u32 s%d, s%d, 0x%x' % (90, 90, WS_GP))
            poll_valid(g, ['buffer_load_dword v%d, v%d, %s, s90 offen sc1' % (PR, vT4, sq(SRD_WS)),
                           'buffer_load_dword v%d, v%d, %s, s90 offen offset:444 sc1' % (PR + 1, vT4, sq(SRD_WS))],
                       range(PR, PR + 2), vT1, sleep=P['TSLEEP'], thr=P['THR'])
        g.I('s_barrier')
        if not w0:
            HD = KR
            hl = h_load_list(HD)
            poll_valid(g, hl, range(HD, HD + 16), vT1)
            h_compute(HD, HFR)
            tile16g(g, WDR, HFR, HD, WDG)
            stamp(g, 'wd_done')
    F = VA
    for dd in range(8):
        if w0:
            g.I('v_mov_b32 v%d, 0' % (F + 8 + dd))
        else:
            g.I('v_mov_b32 v%d, v%d' % (F + 8 + dd, WDG + dd))
    g.I('s_lshl_b32 s%d, s%d, 10' % (sA, sWAVE))
    g.I('v_lshlrev_b32 v%d, 5, v%d' % (vT0, vN))
    g.I('v_add_u32 v%d, s%d, v%d' % (vT0, sA, vT0))
    g.I('s_mov_b64 exec, 0xffff')
    g.I('ds_write_b128 v%d, %s offset:%d' % (vT0, vr(F), L_FR))
    g.I('ds_write_b128 v%d, %s offset:%d' % (vT0, vr(F + 4), L_FR + 16))
    g.I('ds_write_b128 v%d, %s offset:%d' % (vT0, vr(F + 8), L_FR + 512))
    g.I('ds_write_b128 v%d, %s offset:%d' % (vT0, vr(F + 12), L_FR + 528))
    g.I('s_mov_b64 exec, -1')
    g.I('s_waitcnt lgkmcnt(0)')
    g.I('s_barrier')
    stamp(g, 'b4')
    if not w0:
        stamp_store(g)
        g.I('s_endpgm')
        return
    g.I('s_lshl_b32 s%d, s%d, 8' % (sF, sCB))
    g.I('s_lshl_b32 s%d, s%d, 3' % (sB, sH))
    g.I('s_add_u32 s%d, s%d, s%d' % (sF, sF, sB))
    XV = QF + 8
    g.vmem('buffer_load_dwordx2 %s, v%d, %s, s%d offen' % (vr(XV, 2), vZERO, sq(SRD_X), sF), 'xv')
    RD = KR
    for w in range(8):
        g.I('ds_read_b128 %s, v%d offset:%d' % (vr(RD + 4 * w), vVOFF, L_FR + w * 1024))
    g.I('s_waitcnt lgkmcnt(0)')
    for w in range(1, 8):
        for c in range(4):
            g.I('v_add_f32 v%d, v%d, v%d' % (RD + c, RD + c, RD + 4 * w + c))
    g.I('s_lshl_b32 s%d, s%d, 15' % (sD, sCB))
    g.I('s_add_u32 s%d, s%d, 0x%x' % (sD, sD, WS_FP))
    g.I('s_lshl_b32 s%d, s%d, 10' % (sB, sH))
    g.I('s_add_u32 s%d, s%d, s%d' % (sB, sD, sB))
    g.vmem('buffer_store_dwordx4 %s, v%d, %s, s%d offen sc1' % (vr(RD), vVOFF, sq(SRD_WS), sB), 'fp')
    g.I('v_and_b32 v%d, 31, v%d' % (vT0, vLANE))
    g.I('v_lshlrev_b32 v%d, 10, v%d' % (vT0, vT0))
    g.I('v_lshrrev_b32 v%d, 5, v%d' % (vT1, vLANE))
    g.I('v_lshl_add_u32 v%d, v%d, 9, v%d' % (vT0, vT1, vT0))
    g.I('s_lshl_b32 s%d, s%d, 4' % (sB, sH))
    g.I('s_add_u32 s%d, s%d, s%d' % (sD, sD, sB))
    FD = KR + 32
    poll_valid(g, ['buffer_load_dwordx4 %s, v%d, %s, s%d offen sc1' % (vr(FD), vT0, sq(SRD_WS), sD)], range(FD, FD + 4), vT1)
    row_allreduce(g, 'v_add_f32', [FD + c for c in range(4)])
    FE = FD + 4
    for c in range(4):
        g.I('v_mov_b32 v%d, v%d' % (FE + c, FD + c))
    for c in range(4):
        g.I('v_permlane16_swap_b32 v%d, v%d' % (FD + c, FE + c))
    for c in range(4):
        g.I('v_add_f32 v%d, v%d, v%d' % (FD + c, FD + c, FE + c))
    for c in range(4):
        g.I('v_mov_b32 v%d, v%d' % (FE + c, FD + c))
    for c in range(4):
        g.I('v_permlane32_swap_b32 v%d, v%d' % (FD + c, FE + c))
    XF = FD + 8
    for d in range(2):
        g.I('v_lshlrev_b32 v%d, 16, v%d' % (XF + 2 * d, XV + d))
        g.I('v_and_b32 v%d, 0xffff0000, v%d' % (XF + 2 * d + 1, XV + d))
    for c in range(0, 4, 2):
        bf_round2(g, FD + c, FD + c + 1, vT0)
        bf_round2(g, FE + c, FE + c + 1, vT0)
    for c in range(4):
        g.I('v_add_f32 v%d, v%d, v%d' % (FD + c, FD + c, XF + c))
    for c in range(0, 4, 2):
        bf_round2(g, FD + c, FD + c + 1, vT0)
    for c in range(4):
        g.I('v_add_f32 v%d, v%d, v%d' % (FD + c, FD + c, FE + c))
    g.I('v_cvt_pk_bf16_f32 v%d, v%d, v%d' % (XF, FD, FD + 1))
    g.I('v_cvt_pk_bf16_f32 v%d, v%d, v%d' % (XF + 1, FD + 2, FD + 3))
    g.I('s_mov_b64 exec, 1')
    g.I('buffer_store_dwordx2 %s, v%d, %s, s%d offen' % (vr(XF, 2), vZERO, sq(SRD_OUT), sF))
    stamp(g, 'end')
    stamp_store(g)
    g.I('s_endpgm')


def build():
    g = Gen()
    hdr = open('cdna_kernels/%s.s.ref' % NAME).read().split('\n')
    out = []
    for ln in hdr:
        if ln.startswith('; @launch'):
            out.append('; @launch grid=(256,1,1) block=(512,1,1) lds=%d' % LDS_BYTES)
        elif ln.startswith(';'):
            out.append(ln)
        else:
            break
    out += ['.amdgcn_target "amdgcn-amd-amdhsa--gfx950"', '.text', '.globl %s_kernel' % NAME, '.p2align 8',
            '.type %s_kernel,@function' % NAME, '%s_kernel:' % NAME]
    g.I('s_cmp_ge_u32 s2, 256')
    g.I('s_cbranch_scc1 L_end')
    g.I('s_load_dwordx16 s[8:23], s[0:1], 0')
    g.I('s_load_dwordx8 s[24:31], s[0:1], 64')
    g.I('s_and_b32 s%d, s2, 7' % sT)
    g.I('s_lshl_b32 s%d, s%d, 3' % (sT, sT))
    g.I('s_lshr_b32 s%d, s2, 3' % sT2)
    g.I('s_and_b32 s2, s%d, 7' % sT2)
    g.I('s_add_u32 s2, s2, s%d' % sT)
    g.I('s_lshr_b32 s%d, s%d, 3' % (sT2, sT2))
    g.I('s_lshl_b32 s%d, s%d, 6' % (sT2, sT2))
    g.I('s_add_u32 s2, s2, s%d' % sT2)
    g.I('v_lshrrev_b32 v1, 6, v0')
    g.I('v_and_b32 v0, 63, v0')
    g.I('v_readfirstlane_b32 s%d, v1' % sWAVE)
    g.I('v_and_b32 v%d, 15, v0' % vN)
    g.I('v_lshrrev_b32 v%d, 4, v0' % vJ)
    g.I('v_bfe_u32 v%d, v%d, 1, 1' % (vKOFF, vN))
    g.I('v_lshlrev_b32 v%d, 19, v%d' % (vKOFF, vKOFF))
    g.I('v_and_b32 v%d, 1, v%d' % (vT0, vN))
    g.I('v_lshl_add_u32 v%d, v%d, 6, v%d' % (vKOFF, vT0, vKOFF))
    g.I('v_lshrrev_b32 v%d, 2, v%d' % (vT0, vN))
    g.I('v_lshl_add_u32 v%d, v%d, 8, v%d' % (vKOFF, vT0, vKOFF))
    g.I('v_lshl_add_u32 v%d, v%d, 4, v%d' % (vKOFF, vJ, vKOFF))
    g.I('v_lshlrev_b32 v%d, 4, v0' % vVOFF)
    g.I('v_mov_b32 v%d, 0' % vZERO)
    g.I('s_lshr_b32 s%d, s2, 6' % sG)
    g.I('s_lshl_b32 s%d, s%d, 24' % (sKV, sG))
    g.I('s_and_b32 s%d, s2, 63' % sT)
    g.I('s_lshl_b32 s%d, s%d, 13' % (sT, sT))
    g.I('s_add_u32 s%d, s%d, s%d' % (sKV, sKV, sT))
    g.I('s_lshl_b32 s%d, s%d, 10' % (sT, sWAVE))
    g.I('s_add_u32 s%d, s%d, s%d' % (sKV, sKV, sT))
    g.I('s_lshr_b32 s%d, s2, 3' % sH)
    g.I('s_and_b32 s%d, s2, 7' % sCB)
    g.I('s_mov_b32 s%d, 0' % sCNT)
    g.I('s_mov_b32 s%d, 0x05040100' % sSEL0)
    g.I('s_mov_b32 s%d, 0x07060302' % sSEL1)
    g.I('s_mov_b32 s%d, %s' % (sSCALE, f32(128 ** -0.5)))
    g.I('s_mov_b32 s%d, %s' % (sLOG2E, f32(1.4426950408889634)))
    g.I('s_waitcnt lgkmcnt(0)')
    srd(g, SRD_K, 10, 1 << 26)
    srd(g, SRD_V, 12, 1 << 26)
    srd(g, SRD_X, 8, 2048)
    srd(g, SRD_WQ, 14, 1 << 23)
    srd(g, SRD_WO, 16, 1 << 23)
    if P['GD']:
        g.I('s_lshr_b32 s%d, s2, 2' % sA)
        g.I('s_and_b32 s%d, s2, 3' % sB)
        g.I('s_mul_i32 s%d, s%d, 28672' % (sGP, sB))
        g.I('s_lshl_b32 s%d, s%d, 9' % (sC, sA))
        g.I('s_add_u32 s%d, s%d, s%d' % (sGP, sGP, sC))
        g.I('s_add_u32 s%d, s%d, 0x%x' % (sGP, sGP, WS_GP))
        g.I('s_mul_i32 s%d, s%d, %d' % (sGB, sB, 256 * 7168))
        g.I('s_mul_i32 s%d, s%d, %d' % (sC, sWAVE, 32 * 7168))
        g.I('s_add_u32 s%d, s%d, s%d' % (sGB, sGB, sC))
        g.I('s_sub_u32 s%d, s%d, 28' % (sC, sA))
        g.I('s_cmp_lt_u32 s%d, 28' % sA)
        g.I('s_cselect_b32 s%d, s%d, s%d' % (sC, sA, sC))
        g.I('s_lshl_b32 s%d, s%d, 8' % (sC, sC))
        g.I('s_add_u32 s%d, s%d, s%d' % (sGB, sGB, sC))
        g.I('s_cmp_lt_u32 s2, 224')
        g.I('s_cselect_b32 s%d, s%d, 0x7f000000' % (sGB, sGB))
        g.I('s_cselect_b32 s%d, s%d, 0x7f000000' % (sGP, sGP))
        g.I('s_cmp_lt_u32 s%d, 28' % sA)
    else:
        g.I('s_cmp_lt_u32 s%d, 4' % sCB)
    g.I('s_cselect_b32 s%d, s20, s22' % SRD_GU)
    g.I('s_cselect_b32 s%d, s21, s23' % (SRD_GU + 1))
    g.I('s_and_b32 s%d, s%d, 0xffff' % (SRD_GU + 1, SRD_GU + 1))
    g.I('s_mov_b32 s%d, 0x%x' % (SRD_GU + 2, 1024 * 3584 * 2))
    g.I('s_mov_b32 s%d, 0x00020000' % (SRD_GU + 3))
    srd(g, SRD_WD, 24, 3584 * 1024 * 2)
    srd(g, SRD_OUT, 26, 2048)
    srd(g, SRD_DBG, 28, 256)
    srd(g, SRD_WS, 30, WS_SIZE)
    if P['STAMPS']:
        g.I('v_mov_b32 v%d, 0' % vST)
    stamp(g, 'entry')
    g.I('s_cmp_eq_u32 s%d, 0' % sWAVE)
    g.I('s_cbranch_scc1 L_wave0')
    g.fence()
    main_path(g, False)
    g.label('L_wave0')
    g.vm_reset()
    prologue_wave0(g)
    main_path(g, True)
    g.label('L_end')
    g.I('s_endpgm')
    out.append(g.text())
    out += ['.section .rodata,"a"', '.p2align 6', '.amdhsa_kernel %s_kernel' % NAME,
            '  .amdhsa_next_free_vgpr 256', '  .amdhsa_next_free_sgpr 102', '  .amdhsa_accum_offset 256',
            '  .amdhsa_group_segment_fixed_size 0', '  .amdhsa_kernarg_size 96', '  .amdhsa_user_sgpr_count 2',
            '  .amdhsa_user_sgpr_kernarg_segment_ptr 1', '  .amdhsa_system_sgpr_workgroup_id_x 1',
            '  .amdhsa_float_denorm_mode_32 3', '.end_amdhsa_kernel']
    return '\n'.join(out) + '\n'


if __name__ == '__main__':
    dst = sys.argv[1] if len(sys.argv) > 1 else 'cdna_kernels/%s.s' % NAME
    open(dst, 'w').write(build())
    print('wrote', dst)
    if P['STAMPS']:
        open(dst + '.stamps', 'w').write('\n'.join(STAMP_NAMES))
```

```python
import sys
import struct
from dsl import Gen

NAME = 'parallel_sum__gqa_block_cached__geglu_ffn__decode'

P = dict(
    W=4,
    W0=8,
    WP=16,
    WT=8,
    NT=' nt',
    SLEEP=1, QSLEEP=4, TSLEEP=4,
    KG=16,
    QPOS=6, QPOS0=8,
    TH=2,
    KP=16,
    THR=4,
    GL=0,
    STAMPS=0,
    SKIP=0,
    DEL=0,
    GD=1,
    FT=1,
)
for a in sys.argv[2:]:
    k, v = a.split('=')
    P[k] = int(v) if v.lstrip('-').isdigit() else v


def f32(x):
    return '0x%08x' % struct.unpack('<I', struct.pack('<f', x))[0]


L_XN = 0
L_Q = 2048
L_FLAG = 4096
L_OW = 8192
L_ML = L_OW + 8 * 4224
L_FR = L_ML + 512
L_GB = L_FR + 8192
L_HB = L_GB + 4096
LDS_BYTES = L_HB + 256
L_CNT = L_FLAG + 4

WS_QP = 0
WS_AP = 0x100000
WS_ML = 0x200000
WS_GP = 0x300000
WS_FP = 0x400000
WS_FL = 0x470000
WS_ST = 0x480000
WS_SIZE = 0x500000

sWAVE, sKV, sT, sT2, sCNT = 3, 4, 5, 6, 7
SRD_K, SRD_V, SRD_WQ, SRD_WO, SRD_GU, SRD_WD, SRD_WS, SRD_X, SRD_OUT, SRD_DBG = 32, 36, 40, 44, 48, 52, 56, 60, 64, 68
sSEL0, sSEL1, sSCALE, sLOG2E = 72, 73, 74, 75
sH, sCB, sG = 76, 77, 78
sA, sB, sC, sD, sE, sF = 80, 81, 82, 83, 84, 85
sEX = 86
sN0, sN1 = 98, 99
sGB, sGP = 94, 95

vLANE, vN, vJ = 0, 2, 3
vKOFF, vVOFF = 4, 5
vT0, vT1, vT2, vT3, vT4, vT5 = 6, 7, 8, 9, 10, 11
vZERO, vST = 12, 13
vM, vL = 14, 15
QF, SA, VA, KR = 16, 32, 64, 128
OA, PT, PF = 192, 224, 240

SPIN_MAX = 200000
STAMP_NAMES = []


def srd(g, d, ptr, size):
    g.I('s_mov_b32 s%d, s%d' % (d, ptr))
    g.I('s_and_b32 s%d, s%d, 0xffff' % (d + 1, ptr + 1))
    g.I('s_mov_b32 s%d, 0x%x' % (d + 2, size))
    g.I('s_mov_b32 s%d, 0x00020000' % (d + 3))


def vr(a, n=4):
    return 'v[%d:%d]' % (a, a + n - 1)


def sq(d):
    return 's[%d:%d]' % (d, d + 3)


def row_allreduce(g, op, vs):
    for r in (1, 2, 4, 8):
        for v in vs:
            g.I('%s_dpp v%d, v%d, v%d row_ror:%d row_mask:0xf bank_mask:0xf' % (op, v, v, v, r))


def xrow_allreduce(g, op, v, t):
    g.I('v_mov_b32 v%d, v%d' % (t, v))
    g.I('v_permlane16_swap_b32 v%d, v%d' % (v, t))
    g.I('%s v%d, v%d, v%d' % (op, v, v, t))
    g.I('v_mov_b32 v%d, v%d' % (t, v))
    g.I('v_permlane32_swap_b32 v%d, v%d' % (v, t))
    g.I('%s v%d, v%d, v%d' % (op, v, v, t))


def bf_round(g, v, t):
    g.I('v_cvt_pk_bf16_f32 v%d, v%d, v%d' % (t, v, v))
    g.I('v_lshlrev_b32 v%d, 16, v%d' % (v, t))


def bf_round2(g, a, b, t):
    g.I('v_cvt_pk_bf16_f32 v%d, v%d, v%d' % (t, a, b))
    g.I('v_lshlrev_b32 v%d, 16, v%d' % (a, t))
    g.I('v_and_b32 v%d, 0xffff0000, v%d' % (b, t))


def tile32(g, R, frag, acc, first, frag_is_A=False, PT=PT):
    def perms(dd):
        t = PT + (dd & 3) * 4
        for q in range(4):
            g.I('v_perm_b32 v%d, v%d, v%d, s%d' % (t + q, R + (2 * q + 1) * 4 + (dd >> 1), R + (2 * q) * 4 + (dd >> 1),
                                                  sSEL1 if dd & 1 else sSEL0))
    perms(0)
    for dd in range(8):
        if dd < 7:
            perms(dd + 1)
        t = PT + (dd & 3) * 4
        c = '0' if first else vr(acc + 4 * dd)
        if frag_is_A:
            g.I('v_mfma_f32_16x16x32_bf16 %s, %s, %s, %s' % (vr(acc + 4 * dd), vr(frag), vr(t), c))
        else:
            g.I('v_mfma_f32_16x16x32_bf16 %s, %s, %s, %s' % (vr(acc + 4 * dd), vr(t), vr(frag), c))


def tile16g(g, R, frag, rot, out):
    def perms(dd):
        t = PT + (dd & 3) * 4
        for q in range(2):
            g.I('v_perm_b32 v%d, v%d, v%d, s%d' % (t + q, R + (2 * q + 1) * 4 + (dd >> 1), R + (2 * q) * 4 + (dd >> 1),
                                                  sSEL1 if dd & 1 else sSEL0))
    perms(0)
    perms(1)
    for dd in range(8):
        if dd < 6:
            perms(dd + 2)
        if dd >= 4:
            g.I('v_mov_b32 v%d, v%d' % (out + dd - 4, rot + 4 * (dd & 3)))
        t = PT + (dd & 3) * 4
        g.I('v_mfma_f32_16x16x16_bf16 %s, %s, %s, 0' % (vr(rot + 4 * (dd & 3)), vr(frag, 2), vr(t, 2)))
    for dd in range(4, 8):
        g.I('v_mov_b32 v%d, v%d' % (out + dd, rot + 4 * (dd & 3)))


def stamp(g, name):
    if not P['STAMPS']:
        return
    if name not in STAMP_NAMES:
        STAMP_NAMES.append(name)
    g.I('s_memrealtime s[88:89]')
    g.I('s_waitcnt lgkmcnt(0)')
    g.I('v_writelane_b32 v%d, s88, %d' % (vST, STAMP_NAMES.index(name)))


def stamp_store(g):
    if not P['STAMPS']:
        return
    g.I('s_mov_b64 exec, -1')
    g.I('s_lshl_b32 s88, s2, 11')
    g.I('s_lshl_b32 s89, s%d, 8' % sWAVE)
    g.I('s_add_u32 s88, s88, s89')
    g.I('s_add_u32 s88, s88, 0x%x' % WS_ST)
    g.I('v_lshlrev_b32 v1, 2, v0')
    g.I('s_nop 4')
    g.I('buffer_store_dword v%d, v1, %s, s88 offen' % (vST, sq(SRD_WS)))


def spin_guard(g, done_label):
    g.I('s_add_u32 s%d, s%d, 1' % (sCNT, sCNT))
    g.I('s_cmp_ge_u32 s%d, %d' % (sCNT, SPIN_MAX))
    g.I('s_cbranch_scc1 %s' % done_label)


def umax_tree(g, rs, tmp):
    rs = list(rs)
    g.I('v_max_u32 v%d, v%d, v%d' % (tmp, rs[0], rs[1]))
    i = 2
    while i < len(rs):
        if i + 1 < len(rs):
            g.I('v_max3_u32 v%d, v%d, v%d, v%d' % (tmp, tmp, rs[i], rs[i + 1]))
            i += 2
        else:
            g.I('v_max_u32 v%d, v%d, v%d' % (tmp, tmp, rs[i]))
            i += 1


def poll_valid(g, loads, regs, tmp, sleep=None, thr=0):
    lp = g.newlabel('L_poll')
    dn = g.newlabel('L_polld')
    g.label(lp)
    for t in loads:
        g.I(t)
    g.I('s_waitcnt vmcnt(0)')
    umax_tree(g, regs, tmp)
    g.I('v_cmp_eq_u32 vcc, -1, v%d' % tmp)
    if thr:
        g.I('s_nop 3')
        g.I('s_bcnt1_i32_b64 s%d, vcc' % sA)
        g.I('s_cmp_le_u32 s%d, %d' % (sA, thr))
        g.I('s_cbranch_scc1 %s' % dn)
    else:
        g.I('s_cbranch_vccz %s' % dn)
    spin_guard(g, dn)
    g.I('s_sleep %d' % (P['SLEEP'] if sleep is None else sleep))
    g.I('s_branch %s' % lp)
    g.label(dn)
    g.vm_reset()


def flag_poll(g, bases):
    if P['SKIP'] & 2:
        return
    lp = g.newlabel('L_fpoll')
    dn = g.newlabel('L_fpolld')
    g.label(lp)
    for i, sb in enumerate(bases):
        g.I('buffer_load_dwordx2 %s, v%d, %s, s%d offen sc1' % (vr(16 + 2 * i, 2), vT3, sq(SRD_WS), sb))
    g.I('s_waitcnt vmcnt(0)')
    for i in range(len(bases)):
        g.I('v_xor_b32 v%d, s%d, v%d' % (16 + 2 * i, sN0, 16 + 2 * i))
        g.I('v_xor_b32 v%d, s%d, v%d' % (17 + 2 * i, sN1, 17 + 2 * i))
    for i in range(1, 2 * len(bases)):
        g.I('v_or_b32 v16, v16, v%d' % (16 + i))
    g.I('v_cmp_ne_u32 vcc, 0, v16')
    g.I('s_cbranch_vccz %s' % dn)
    spin_guard(g, dn)
    g.I('s_sleep %d' % P['QSLEEP'])
    g.I('s_branch %s' % lp)
    g.label(dn)
    g.vm_done = len(g.vm)


def wait_flag(g, val, off=None):
    lp = g.newlabel('L_fl')
    dn = g.newlabel('L_fld')
    g.label(lp)
    g.I('ds_read_b32 v%d, v%d offset:%d' % (vT0, vZERO, L_FLAG if off is None else off))
    g.I('s_waitcnt lgkmcnt(0)')
    g.I('v_readfirstlane_b32 s%d, v%d' % (sA, vT0))
    g.I('s_nop 3')
    g.I('s_cmp_ge_u32 s%d, %d' % (sA, val))
    g.I('s_cbranch_scc1 %s' % dn)
    spin_guard(g, dn)
    g.I('s_sleep 1')
    g.I('s_branch %s' % lp)
    g.label(dn)


def kload(g, n, W):
    X = n >> 1
    g.I('s_add_u32 s%d, s%d, 0x%x' % (sT, sKV, X << 20))
    g.vmem('buffer_load_dwordx4 %s, v%d, %s, s%d offen offset:%d%s' % (vr(KR + n * 4), vKOFF, sq(SRD_K), sT, (n & 1) * 128, P['NT']),
           'k%d' % X, W)


def gd_loads(g, GR, win, b0=False):
    g.I('s_mov_b32 s%d, 57344' % sA)
    g.I('v_mul_lo_u32 v%d, v%d, s%d' % (vT2, vJ, sA))
    g.I('v_lshl_add_u32 v%d, v%d, 4, v%d' % (vT2, vN, vT2))
    for e in range(8):
        g.I('s_add_u32 s%d, s%d, %d' % (sT, sGB, e * 7168))
        g.vmem('buffer_load_dwordx4 %s, v%d, %s, s%d offen%s' % (vr(GR + 4 * e), vT2, sq(SRD_GU), sT, P['NT']), 'g', win)
        if b0 and e == min(win, 8) - 1:
            g.I('s_barrier')


def gd_tile(g, GR, frag, acc, tmp, gat):
    g.I('v_lshlrev_b32 v%d, 4, v%d' % (vT0, vJ))
    g.I('s_and_b32 s%d, s2, 3' % sA)
    g.I('s_lshl_b32 s%d, s%d, 9' % (sA, sA))
    g.I('s_lshl_b32 s%d, s%d, 6' % (sB, sWAVE))
    g.I('s_add_u32 s%d, s%d, s%d' % (sA, sA, sB))
    g.I('v_add_u32 v%d, s%d, v%d' % (vT0, sA, vT0))
    g.I('ds_read_b128 %s, v%d offset:%d' % (vr(frag), vT0, L_XN))
    g.I('s_waitcnt lgkmcnt(0)')
    if 'g' in g.vm:
        g.vm_wait('g')
    tile32(g, GR, frag, acc, True, frag_is_A=True, PT=tmp)
    for dd in range(8):
        g.I('v_mov_b32 v%d, v%d' % (gat + dd, acc + 4 * dd))
    g.I('s_lshl_b32 s%d, s%d, 9' % (sB, sWAVE))
    g.I('v_lshlrev_b32 v%d, 5, v%d' % (vT0, vN))
    g.I('v_add_u32 v%d, s%d, v%d' % (vT0, sB, vT0))
    g.I('s_mov_b64 exec, 0xffff')
    g.I('ds_write_b128 v%d, %s offset:%d' % (vT0, vr(gat), L_GB))
    g.I('ds_write_b128 v%d, %s offset:%d' % (vT0, vr(gat + 4), L_GB + 16))
    g.I('s_mov_b64 exec, 1')
    g.I('v_mov_b32 v%d, 1' % vT1)
    g.I('s_waitcnt lgkmcnt(0)')
    g.I('ds_add_u32 v%d, v%d offset:%d' % (vZERO, vT1, L_CNT))
    g.I('s_mov_b64 exec, -1')
    stamp(g, 'gu_done')


def prologue_wave0(g):
    orig = g.vmem
    ow = g.vm_wait
    def vm2(text, tag=None, window=None):
        if (tag == 'clr' and P['SKIP'] & 1) or (tag and tag.startswith('q') and tag != 'qp' and P['SKIP'] & 2) or (tag and tag.startswith('wq') and P['SKIP'] & 16):
            return
        orig(text, tag, window)
    def w2(tag):
        if tag not in g.vm:
            g.vm_wait_all()
            return
        ow(tag)
    g.vmem = vm2
    g.vm_wait = w2
    nt = P['NT']
    W0 = P['W0']
    g.I('v_lshlrev_b32 v%d, 5, v%d' % (vT0, vLANE))
    g.vmem('buffer_load_dwordx4 %s, v%d, %s, 0 offen' % (vr(16), vT0, sq(SRD_X)), 'x')
    g.vmem('buffer_load_dwordx4 %s, v%d, %s, 0 offen offset:16' % (vr(20), vT0, sq(SRD_X)), 'x')
    lb = g.newlabel('L_nonce')
    g.I('s_cmp_lg_u32 s2, 0')
    g.I('s_cbranch_scc1 %s' % lb)
    g.I('s_memrealtime s[%d:%d]' % (sN0, sN1))
    g.I('s_waitcnt lgkmcnt(0)')
    g.I('s_or_b32 s%d, s%d, 1' % (sN0, sN0))
    g.I('v_mov_b32 v28, s%d' % sN0)
    g.I('v_mov_b32 v29, s%d' % sN1)
    g.I('s_mov_b64 exec, 1')
    g.I('buffer_store_dwordx2 v[28:29], v%d, %s, 0 offen offset:8 sc1' % (vZERO, sq(SRD_DBG)))
    g.I('s_mov_b64 exec, -1')
    g.I('s_waitcnt vmcnt(0)')
    g.label(lb)
    g.vm_done = 0
    g.I('v_lshlrev_b32 v%d, 16, v%d' % (vT1, vJ))
    g.I('v_lshl_add_u32 v%d, v%d, 4, v%d' % (vT1, vN, vT1))
    g.I('s_lshl_b32 s%d, s%d, 20' % (sA, sCB))
    g.I('s_lshl_b32 s%d, s%d, 8' % (sB, sH))
    g.I('s_add_u32 s%d, s%d, s%d' % (sA, sA, sB))
    for T in range(4):
        for e in range(8):
            g.I('s_add_u32 s%d, s%d, 0x%x' % (sT, sA, (32 * T + e) * 8192))
            g.vmem('buffer_load_dwordx4 %s, v%d, %s, s%d offen%s' % (vr(KR + (T * 8 + e) * 4), vT1, sq(SRD_WQ), sT, nt),
                   'wq%d' % T, P['WP'])
    if P['GD']:
        gd_loads(g, VA + 32, P['WP'])
    for i in range(4):
        g.I('v_mov_b32 v%d, -1' % (24 + i))
    g.I('s_lshl_b32 s%d, s2, 12' % sA)
    g.I('s_add_u32 s%d, s%d, 0x%x' % (sA, sA, WS_AP))
    for i in range(4):
        g.vmem('buffer_store_dwordx4 %s, v%d, %s, s%d offen offset:%d sc1' % (vr(24), vVOFF, sq(SRD_WS), sA, i * 1024), 'clr')
    if P['GD']:
        g.I('s_mov_b32 exec_hi, 0')
        g.vmem('buffer_store_dwordx4 %s, v%d, %s, s%d offen sc1' % (vr(24), vVOFF, sq(SRD_WS), sGP), 'clr')
    else:
        g.I('s_mul_i32 s%d, s%d, 28672' % (sA, sH))
        g.I('s_mul_i32 s%d, s%d, 3584' % (sB, sCB))
        g.I('s_add_u32 s%d, s%d, s%d' % (sA, sA, sB))
        g.I('s_add_u32 s%d, s%d, 0x%x' % (sA, sA, WS_GP))
        for i in range(3):
            g.vmem('buffer_store_dwordx4 %s, v%d, %s, s%d offen offset:%d sc1' % (vr(24), vVOFF, sq(SRD_WS), sA, i * 1024), 'clr')
        g.I('s_mov_b32 exec_hi, 0')
        g.vmem('buffer_store_dwordx4 %s, v%d, %s, s%d offen offset:%d sc1' % (vr(24), vVOFF, sq(SRD_WS), sA, 3072), 'clr')
    g.I('s_mov_b64 exec, 0xf')
    g.I('s_lshl_b32 s%d, s2, 6' % sA)
    g.I('s_add_u32 s%d, s%d, 0x%x' % (sA, sA, WS_ML))
    g.vmem('buffer_store_dwordx4 %s, v%d, %s, s%d offen sc1' % (vr(24), vVOFF, sq(SRD_WS), sA), 'clr')
    g.I('s_mov_b64 exec, -1')
    g.I('s_lshl_b32 s%d, s2, 10' % sA)
    g.I('s_add_u32 s%d, s%d, 0x%x' % (sA, sA, WS_FP))
    g.vmem('buffer_store_dwordx4 %s, v%d, %s, s%d offen sc1' % (vr(24), vVOFF, sq(SRD_WS), sA), 'clr')
    g.I('ds_write_b32 v%d, v%d offset:%d' % (vZERO, vZERO, L_FLAG))
    g.I('ds_write_b32 v%d, v%d offset:%d' % (vZERO, vZERO, L_CNT))
    g.I('s_waitcnt lgkmcnt(0)')
    g.I('s_barrier')
    stamp(g, 'w0_issued')
    g.vm_wait('x')
    X = SA
    for d in range(8):
        g.I('v_lshlrev_b32 v%d, 16, v%d' % (X + 2 * d, 16 + d))
        g.I('v_and_b32 v%d, 0xffff0000, v%d' % (X + 2 * d + 1, 16 + d))
    S = 48
    g.I('v_add_f32 v%d, v%d, v%d' % (S, X, X + 1))
    for i in range(2, 16):
        g.I('v_add_f32 v%d, v%d, v%d' % (S, S, X + i))

    def wave_sum(v):
        row_allreduce(g, 'v_add_f32', [v])
        xrow_allreduce(g, 'v_add_f32', v, 49)
    wave_sum(S)
    MEAN, D, VAR, SD, RC = 50, 51, 52, 54, 55
    g.I('v_mul_f32 v%d, %s, v%d' % (MEAN, f32(1.0 / 1024), S))
    g.I('v_mov_b32 v%d, 0' % S)
    for i in range(16):
        g.I('v_sub_f32 v%d, v%d, v%d' % (D, X + i, MEAN))
        g.I('v_fmac_f32 v%d, v%d, v%d' % (S, D, D))
    wave_sum(S)
    g.I('v_mul_f32 v%d, %s, v%d' % (VAR, f32(1.0 / 1024), S))
    bf_round(g, MEAN, 53)
    bf_round(g, VAR, 53)
    g.I('v_add_f32 v%d, %s, v%d' % (VAR, f32(1e-5), VAR))
    bf_round(g, VAR, 53)
    g.I('v_sqrt_f32 v%d, v%d' % (SD, VAR))
    g.I('v_rcp_f32 v%d, v%d' % (55, SD))
    g.I('v_fma_f32 v%d, -v%d, v%d, v%d' % (56, SD, SD, VAR))
    g.I('v_mul_f32 v%d, 0.5, v%d' % (55, 55))
    g.I('v_fmac_f32 v%d, v%d, v%d' % (SD, 56, 55))
    bf_round(g, SD, 53)
    g.I('v_rcp_f32 v%d, v%d' % (RC, SD))
    for d in range(8):
        a, b = X + 2 * d, X + 2 * d + 1
        g.I('v_sub_f32 v%d, v%d, v%d' % (a, a, MEAN))
        g.I('v_sub_f32 v%d, v%d, v%d' % (b, b, MEAN))
        bf_round2(g, a, b, 53)
        for x in (a, b):
            g.I('v_mul_f32 v%d, v%d, v%d' % (56, x, RC))
            g.I('v_fma_f32 v%d, -v%d, v%d, v%d' % (57, 56, SD, x))
            g.I('v_fma_f32 v%d, v%d, v%d, v%d' % (x, 57, RC, 56))
        g.I('v_cvt_pk_bf16_f32 v%d, v%d, v%d' % (16 + d, a, b))
    g.I('ds_write_b128 v%d, %s offset:%d' % (vT0, vr(16), L_XN))
    g.I('ds_write_b128 v%d, %s offset:%d' % (vT0, vr(20), L_XN + 16))
    g.I('v_lshlrev_b32 v%d, 4, v%d' % (vT2, vJ))
    g.I('s_lshl_b32 s%d, s%d, 8' % (sA, sCB))
    g.I('v_add_u32 v%d, s%d, v%d' % (vT2, sA, vT2))
    g.I('s_waitcnt lgkmcnt(0)')
    g.vm_wait('clr')
    for T in range(4):
        g.I('ds_read_b128 %s, v%d offset:%d' % (vr(16 + 4 * T), vT2, L_XN + 64 * T))
    g.I('v_mov_b32 v%d, 1' % vT3)
    g.I('ds_write_b32 v%d, v%d offset:%d' % (vZERO, vT3, L_FLAG))
    g.I('s_waitcnt lgkmcnt(0)')
    ACC = SA
    for T in range(4):
        tile32(g, KR + T * 32, 16 + 4 * T, ACC, T == 0, frag_is_A=True, PT=VA)
    for dd in range(8):
        g.I('v_mov_b32 v%d, v%d' % (16 + dd, ACC + 4 * dd))
    stamp(g, 'w0_qproj')
    g.I('v_lshlrev_b32 v%d, 5, v%d' % (vT2, vN))
    g.I('s_lshl_b32 s%d, s%d, 15' % (sA, sG))
    g.I('s_lshl_b32 s%d, s%d, 12' % (sB, sCB))
    g.I('s_add_u32 s%d, s%d, s%d' % (sA, sA, sB))
    g.I('s_and_b32 s%d, s%d, 7' % (sB, sH))
    g.I('s_lshl_b32 s%d, s%d, 9' % (sB, sB))
    g.I('s_add_u32 s%d, s%d, s%d' % (sB, sA, sB))
    g.I('s_mov_b64 exec, 0xffff')
    g.vmem('buffer_store_dwordx4 %s, v%d, %s, s%d offen sc1' % (vr(16), vT2, sq(SRD_WS), sB), 'qp')
    g.vmem('buffer_store_dwordx4 %s, v%d, %s, s%d offen offset:16 sc1' % (vr(20), vT2, sq(SRD_WS), sB), 'qp')
    g.I('s_mov_b64 exec, -1')
    ok = g.newlabel('L_nok')
    lp = g.newlabel('L_npoll')
    g.label(lp)
    g.I('buffer_load_dwordx2 v[28:29], v%d, %s, 0 offen offset:8 sc1' % (vZERO, sq(SRD_DBG)))
    g.I('s_waitcnt vmcnt(0)')
    g.I('v_readfirstlane_b32 s%d, v28' % sN0)
    g.I('v_readfirstlane_b32 s%d, v29' % sN1)
    g.I('s_nop 3')
    g.I('s_cmp_lg_u32 s%d, 0' % sN0)
    g.I('s_cbranch_scc1 %s' % ok)
    spin_guard(g, ok)
    g.I('s_sleep 8')
    g.I('s_branch %s' % lp)
    g.label(ok)
    g.vm_reset()
    g.I('s_lshl_b32 s%d, s%d, 12' % (sF, sG))
    g.I('s_add_u32 s%d, s%d, 0x%x' % (sF, sF, WS_FL))
    g.I('s_and_b32 s%d, s2, 63' % sB)
    g.I('s_lshl_b32 s%d, s%d, 3' % (sB, sB))
    g.I('s_add_u32 s%d, s%d, s%d' % (sB, sB, sF))
    g.I('s_mov_b64 exec, 1')
    g.vmem('buffer_store_dwordx2 v[28:29], v%d, %s, s%d offen sc1' % (vZERO, sq(SRD_WS), sB), 'fl')
    g.I('s_mov_b64 exec, -1')
    stamp(g, 'w0_flag')
    if P['GD']:
        gd_tile(g, VA + 32, 16, SA, VA, 20)
    for n in range(0, P['KP']):
        kload(g, n, W0)
    g.I('v_lshlrev_b32 v%d, 3, v%d' % (vT3, vLANE))
    flag_poll(g, [sF])
    stamp(g, 'w0_polled')
    g.I('s_lshl_b32 s%d, s%d, 15' % (sA, sG))
    QA = SA
    for half in range(2):
        for k4 in range(4):
            ks = half * 4 + k4
            g.I('s_add_u32 s%d, s%d, 0x%x' % (sT, sA, WS_QP + ks * 4096))
            for i in range(4):
                g.vmem('buffer_load_dwordx4 %s, v%d, %s, s%d offen offset:%d sc1' % (vr(VA + (k4 * 4 + i) * 4), vVOFF, sq(SRD_WS), sT, i * 1024),
                       'q%d' % ks)
        for k4 in range(4):
            ks = half * 4 + k4
            g.vm_wait('q%d' % ks)
            for r in range(16):
                if ks == 0:
                    g.I('v_mov_b32 v%d, v%d' % (QA + r, VA + r))
                else:
                    g.I('v_add_f32 v%d, v%d, v%d' % (QA + r, QA + r, VA + k4 * 16 + r))
    g.I('v_lshlrev_b32 v%d, 3, v%d' % (vT2, vLANE))
    for i in range(4):
        g.I('v_cvt_pk_bf16_f32 v%d, v%d, v%d' % (16 + 2 * i, QA + 4 * i, QA + 4 * i + 1))
        g.I('v_cvt_pk_bf16_f32 v%d, v%d, v%d' % (17 + 2 * i, QA + 4 * i + 2, QA + 4 * i + 3))
        g.I('ds_write_b64 v%d, %s offset:%d' % (vT2, vr(16 + 2 * i, 2), L_Q + i * 512))
    g.I('v_mov_b32 v%d, 2' % vT4)
    g.I('s_waitcnt lgkmcnt(0)')
    g.I('ds_write_b32 v%d, v%d offset:%d' % (vZERO, vT4, L_FLAG))
    for i in range(4):
        g.I('s_mov_b32 s%d, 0x%x' % (90 + i, WS_FL + i * 4096))
    flag_poll(g, [90, 91, 92, 93])
    g.I('v_mov_b32 v%d, 3' % vT4)
    g.I('ds_write_b32 v%d, v%d offset:%d' % (vZERO, vT4, L_FLAG))
    if P['GD']:
        wait_flag(g, 8, L_CNT)
        for w in range(8):
            g.I('ds_read_b128 %s, v%d offset:%d' % (vr(VA + 4 * w), vVOFF, L_GB + w * 512))
        g.I('s_waitcnt lgkmcnt(0)')
        for w in range(1, 8):
            for c in range(4):
                g.I('v_add_f32 v%d, v%d, v%d' % (VA + c, VA + c, VA + 4 * w + c))
        g.I('s_mov_b32 exec_hi, 0')
        g.vmem('buffer_store_dwordx4 %s, v%d, %s, s%d offen sc1' % (vr(VA), vVOFF, sq(SRD_WS), sGP), 'gp')
        g.I('s_mov_b64 exec, -1')
        g.vm_wait('gp')
        stamp(g, 'w0_gp')
    elif P['DEL'] and not P['GL']:
        wait_flag(g, 7, L_CNT)
        for i in range(4):
            g.I('ds_read_b128 %s, v%d offset:%d' % (vr(16 + 4 * i), vVOFF, L_GB + i * 1024))
        g.I('s_mul_i32 s%d, s%d, 28672' % (sA, sH))
        g.I('s_mul_i32 s%d, s%d, 3584' % (sB, sCB))
        g.I('s_add_u32 s%d, s%d, s%d' % (sA, sA, sB))
        g.I('s_add_u32 s%d, s%d, 0x%x' % (sA, sA, WS_GP))
        g.I('s_waitcnt lgkmcnt(0)')
        for i in range(3):
            g.vmem('buffer_store_dwordx4 %s, v%d, %s, s%d offen offset:%d sc1' % (vr(16 + 4 * i), vVOFF, sq(SRD_WS), sA, i * 1024), 'gp')
        g.I('s_mov_b32 exec_hi, 0')
        g.vmem('buffer_store_dwordx4 %s, v%d, %s, s%d offen offset:%d sc1' % (vr(28), vVOFF, sq(SRD_WS), sA, 3072), 'gp')
        g.I('s_mov_b64 exec, -1')
        stamp(g, 'w0_gp')
    for n in range(P['KP'], 32):
        kload(g, n, W0)


def main_path(g, w0):
    W = P['W0'] if w0 else P['W']
    nt = P['NT']
    GL = P['GL']
    g.comment('---------------- main path (wave0=%s)' % w0)
    stamp(g, 'main_start')

    def vbase(T):
        return VA + 32 * T if T < 2 else KR + 32 * (T - 2)

    def vload(T, e):
        g.I('s_add_u32 s%d, s%d, 0x%x' % (sT2, sKV, (T * 8 + e) << 19))
        g.vmem('buffer_load_dwordx4 %s, v%d, %s, s%d offen%s' % (vr(vbase(T) + e * 4), vVOFF, sq(SRD_V), sT2, nt), 'v%d' % T, W)

    GR = VA

    def g_loads(win, b0=False):
        g.I('s_mov_b32 s%d, 57344' % sA)
        g.I('v_mul_lo_u32 v%d, v%d, s%d' % (vT2, vJ, sA))
        g.I('v_lshl_add_u32 v%d, v%d, 4, v%d' % (vT2, vN, vT2))
        g.I('s_mul_i32 s%d, s%d, %d' % (sA, sH, 32 * 7168))
        g.I('s_and_b32 s%d, s%d, 3' % (sB, sCB))
        g.I('s_mul_i32 s%d, s%d, 1792' % (sB, sB))
        g.I('s_add_u32 s%d, s%d, s%d' % (sA, sA, sB))
        g.I('s_lshl_b32 s%d, s%d, 8' % (sB, sWAVE))
        g.I('s_add_u32 s%d, s%d, s%d' % (sA, sA, sB))
        g.I('s_sub_u32 s%d, s%d, 256' % (sA, sA))
        for e in range(8):
            g.I('s_add_u32 s%d, s%d, %d' % (sT, sA, e * 7168))
            g.vmem('buffer_load_dwordx4 %s, v%d, %s, s%d offen%s' % (vr(GR + 4 * e), vT2, sq(SRD_GU), sT, nt), 'g', win)
            if b0 and e == min(win, 8) - 1:
                g.I('s_barrier')

    def g_tile(frag, acc, tmp, gat):
        g.I('v_lshlrev_b32 v%d, 4, v%d' % (vT0, vJ))
        g.I('s_lshl_b32 s%d, s%d, 6' % (sA, sH))
        g.I('v_add_u32 v%d, s%d, v%d' % (vT0, sA, vT0))
        g.I('ds_read_b128 %s, v%d offset:%d' % (vr(frag), vT0, L_XN))
        g.I('s_waitcnt lgkmcnt(0)')
        g.vm_wait('g')
        tile32(g, GR, frag, acc, True, frag_is_A=True, PT=tmp)
        for dd in range(8):
            g.I('v_mov_b32 v%d, v%d' % (gat + dd, acc + 4 * dd))
        if P['DEL'] and not GL:
            g.I('s_lshl_b32 s%d, s%d, 9' % (sB, sWAVE))
            g.I('v_lshlrev_b32 v%d, 5, v%d' % (vT0, vN))
            g.I('v_add_u32 v%d, s%d, v%d' % (vT0, sB, vT0))
            g.I('s_mov_b64 exec, 0xffff')
            g.I('ds_write_b128 v%d, %s offset:%d' % (vT0, vr(gat), L_GB - 512))
            g.I('ds_write_b128 v%d, %s offset:%d' % (vT0, vr(gat + 4), L_GB - 512 + 16))
            g.I('s_mov_b64 exec, 1')
            g.I('v_mov_b32 v%d, 1' % vT1)
            g.I('s_waitcnt lgkmcnt(0)')
            g.I('ds_add_u32 v%d, v%d offset:%d' % (vZERO, vT1, L_CNT))
            g.I('s_mov_b64 exec, -1')
            stamp(g, 'gu_done')
            return
        g.I('s_mul_i32 s%d, s%d, 28672' % (sA, sH))
        g.I('s_mul_i32 s%d, s%d, 3584' % (sB, sCB))
        g.I('s_add_u32 s%d, s%d, s%d' % (sA, sA, sB))
        g.I('s_lshl_b32 s%d, s%d, 9' % (sB, sWAVE))
        g.I('s_add_u32 s%d, s%d, s%d' % (sA, sA, sB))
        g.I('s_add_u32 s%d, s%d, 0x%x' % (sA, sA, WS_GP - 512))
        g.I('v_lshlrev_b32 v%d, 5, v%d' % (vT0, vN))
        g.I('s_mov_b64 exec, 0xffff')
        if not P['SKIP'] & 32:
            g.vmem('buffer_store_dwordx4 %s, v%d, %s, s%d offen sc1' % (vr(gat), vT0, sq(SRD_WS), sA), 'gp')
            g.vmem('buffer_store_dwordx4 %s, v%d, %s, s%d offen offset:16 sc1' % (vr(gat + 4), vT0, sq(SRD_WS), sA), 'gp')
        g.I('s_mov_b64 exec, -1')
        stamp(g, 'gu_done')

    def wd_loads(WDR, win):
        g.I('v_lshlrev_b32 v%d, 13, v%d' % (vT4, vJ))
        g.I('v_lshl_add_u32 v%d, v%d, 4, v%d' % (vT4, vN, vT4))
        g.I('s_mul_i32 s%d, s%d, 112' % (sA, sH))
        g.I('s_lshl_b32 s%d, s%d, 4' % (sB, sWAVE))
        g.I('s_add_u32 s%d, s%d, s%d' % (sA, sA, sB))
        g.I('s_sub_u32 s%d, s%d, 16' % (sE, sA))
        g.I('s_lshl_b32 s%d, s%d, 11' % (sA, sE))
        g.I('s_lshl_b32 s%d, s%d, 8' % (sB, sCB))
        g.I('s_add_u32 s%d, s%d, s%d' % (sA, sA, sB))
        for e in range(4):
            g.I('s_add_u32 s%d, s%d, %d' % (sT, sA, e * 2048))
            g.vmem('buffer_load_dwordx4 %s, v%d, %s, s%d offen%s' % (vr(WDR + 4 * e), vT4, sq(SRD_WD), sT, nt), 'wd', win)

    def h_load_list(HD):
        if P['GD']:
            g.I('v_and_b32 v%d, 3, v%d' % (vT5, vN))
            g.I('s_mov_b32 s%d, 28672' % sT)
            g.I('v_mul_lo_u32 v%d, v%d, s%d' % (vT5, vT5, sT))
            g.I('v_bfe_u32 v%d, v%d, 2, 1' % (vT0, vN))
            g.I('s_mov_b32 s%d, 14336' % sT)
            g.I('v_mul_lo_u32 v%d, v%d, s%d' % (vT0, vT0, sT))
            g.I('v_add_u32 v%d, v%d, v%d' % (vT5, vT5, vT0))
            g.I('v_lshl_add_u32 v%d, v%d, 4, v%d' % (vT5, vJ, vT5))
            g.I('s_lshl_b32 s%d, s%d, 2' % (90, sE))
            g.I('s_add_u32 s%d, s%d, 0x%x' % (90, 90, WS_GP))
            return ['buffer_load_dwordx4 %s, v%d, %s, s90 offen sc1' % (vr(HD), vT5, sq(SRD_WS))]
        g.I('s_mov_b32 s%d, 28672' % sT)
        g.I('v_mul_lo_u32 v%d, v%d, s%d' % (vT5, vN, sT))
        g.I('v_lshl_add_u32 v%d, v%d, 4, v%d' % (vT5, vJ, vT5))
        g.I('s_lshl_b32 s%d, s%d, 2' % (90, sE))
        g.I('s_add_u32 s%d, s%d, 0x%x' % (90, 90, WS_GP))
        g.I('s_add_u32 s%d, s%d, %d' % (91, 90, 16 * 28672))
        g.I('s_add_u32 s%d, s%d, %d' % (92, 90, 14336))
        g.I('s_add_u32 s%d, s%d, %d' % (93, 90, 14336 + 16 * 28672))
        return ['buffer_load_dwordx4 %s, v%d, %s, s%d offen sc1' % (vr(HD + 4 * i), vT5, sq(SRD_WS), 90 + i) for i in range(4)]

    def h_compute(HD, HFR):
        GG, UU = HD, HD + 8
        if P['GD']:
            for qp in ('[1,0,3,2]', '[2,3,0,1]'):
                for c in range(4):
                    g.I('v_add_f32_dpp v%d, v%d, v%d quad_perm:%s row_mask:0xf bank_mask:0xf' % (GG + c, GG + c, GG + c, qp))
            for c in range(4):
                g.I('v_mov_b32_dpp v%d, v%d row_ror:4 row_mask:0xf bank_mask:0xf' % (UU + c, GG + c))
        else:
            for c in range(4):
                g.I('v_add_f32 v%d, v%d, v%d' % (GG + c, GG + c, GG + 4 + c))
                g.I('v_add_f32 v%d, v%d, v%d' % (UU + c, UU + c, UU + 4 + c))
            row_allreduce(g, 'v_add_f32', [GG + c for c in range(4)] + [UU + c for c in range(4)])
        for c in range(0, 4, 2):
            bf_round2(g, GG + c, GG + c + 1, vT0)
            bf_round2(g, UU + c, UU + c + 1, vT0)
        k0, k1 = 0.7978845608028654, 0.044715
        c2 = -2.0 * k0 * 1.4426950408889634
        for c in range(4):
            x, t = GG + c, GG + 4 + c
            g.I('v_mul_f32 v%d, v%d, v%d' % (t, x, x))
            g.I('v_mul_f32 v%d, v%d, v%d' % (t, t, x))
            g.I('v_mul_f32 v%d, %s, v%d' % (t, f32(k1), t))
            g.I('v_add_f32 v%d, v%d, v%d' % (t, t, x))
            g.I('v_mul_f32 v%d, %s, v%d' % (t, f32(c2), t))
            g.I('v_exp_f32 v%d, v%d' % (t, t))
            g.I('v_add_f32 v%d, 1.0, v%d' % (t, t))
            g.I('v_rcp_f32 v%d, v%d' % (t, t))
            g.I('v_mul_f32 v%d, v%d, v%d' % (x, x, t))
        for c in range(0, 4, 2):
            bf_round2(g, GG + c, GG + c + 1, vT0)
        for c in range(4):
            g.I('v_mul_f32 v%d, v%d, v%d' % (GG + c, GG + c, UU + c))
        g.I('v_cvt_pk_bf16_f32 v%d, v%d, v%d' % (HFR, GG, GG + 1))
        g.I('v_cvt_pk_bf16_f32 v%d, v%d, v%d' % (HFR + 1, GG + 2, GG + 3))

    def wo_loads(WOR, win):
        g.I('v_lshlrev_b32 v%d, 11, v%d' % (vT3, vJ))
        g.I('v_lshl_add_u32 v%d, v%d, 4, v%d' % (vT3, vN, vT3))
        g.I('s_lshl_b32 s%d, s%d, 7' % (sA, sH))
        g.I('s_lshr_b32 s%d, s%d, 1' % (sB, sWAVE))
        g.I('s_lshl_b32 s%d, s%d, 5' % (sB, sB))
        g.I('s_add_u32 s%d, s%d, s%d' % (sA, sA, sB))
        g.I('s_and_b32 s%d, s%d, 1' % (sB, sWAVE))
        g.I('s_lshl_b32 s%d, s%d, 2' % (sB, sB))
        g.I('s_add_u32 s%d, s%d, s%d' % (sA, sA, sB))
        g.I('s_lshl_b32 s%d, s%d, 11' % (sA, sA))
        g.I('s_lshl_b32 s%d, s%d, 8' % (sB, sCB))
        g.I('s_add_u32 s%d, s%d, s%d' % (sA, sA, sB))
        for e in range(4):
            g.I('s_add_u32 s%d, s%d, %d' % (sT, sA, e * 16384))
            g.vmem('buffer_load_dwordx4 %s, v%d, %s, s%d offen%s' % (vr(WOR + 4 * e), vT3, sq(SRD_WO), sT, nt), 'wo', win)

    if not w0:
        if P['GD']:
            gd_loads(g, GR, W, b0=True)
        elif not GL and not P['SKIP'] & 4:
            g_loads(W, b0=True)
        for n in range(32):
            kload(g, n, W)
            if (GL or P['SKIP'] & 4) and n == W - 1:
                g.I('s_barrier')
            if not GL and n + 1 == P['KG'] and not P['SKIP'] & 4:
                wait_flag(g, 1)
                if P['GD']:
                    gd_tile(g, GR, QF, SA, VA + 32, QF + 8)
                else:
                    g_tile(QF, SA, VA + 32, QF + 8)
    pend = [(T, e) for T in range(4) for e in range(8)]

    def issue(nn):
        for _ in range(nn):
            if pend:
                T, e = pend.pop(0)
                vload(T, e)

    def issue_through(T):
        while pend and pend[0][0] <= T:
            issue(1)

    issue(P['QPOS0'] if w0 else P['QPOS'])
    stamp(g, 'kv_issued')
    if not w0:
        wait_flag(g, 2)
    g.I('v_and_b32 v%d, 7, v%d' % (vT0, vN))
    g.I('v_lshlrev_b32 v%d, 8, v%d' % (vT0, vT0))
    g.I('v_lshl_add_u32 v%d, v%d, 4, v%d' % (vT0, vJ, vT0))
    g.I('v_lshrrev_b32 v%d, 3, v%d' % (vT1, vN))
    g.I('v_lshl_add_u32 v%d, v%d, 6, v%d' % (vT0, vT1, vT0))
    for i in range(2):
        g.I('ds_read_b128 %s, v%d offset:%d' % (vr(QF + 4 * i), vT0, L_Q + i * 128))
    g.I('s_waitcnt lgkmcnt(0)')
    stamp(g, 'q_ready')

    def dreg(X):
        return QF + 8 if X == 0 else KR + (X - 1) * 8

    def adds(X):
        d = dreg(X)
        g.I('v_add_f32_dpp v%d, v%d, v%d row_ror:8 row_mask:0xf bank_mask:0xf' % (SA + 2 * X, d + 1, d))
        g.I('v_add_f32_dpp v%d, v%d, v%d row_ror:8 row_mask:0xf bank_mask:0xf' % (SA + 2 * X + 1, d + 3, d + 2))
    for X in range(16):
        g.vm_wait('k%d' % X)
        d = dreg(X)
        g.I('v_mfma_f32_16x16x32_bf16 %s, %s, %s, 0' % (vr(d), vr(KR + X * 8), vr(QF)))
        g.I('v_mfma_f32_16x16x32_bf16 %s, %s, %s, %s' % (vr(d), vr(KR + X * 8 + 4), vr(QF + 4), vr(d)))
        if X >= 3:
            adds(X - 3)
    for X in range(13, 16):
        adds(X)
    stamp(g, 'qk_done')
    for r in range(0, 32, 2):
        a, b = SA + r, SA + r + 1
        bf_round2(g, a, b, vT0)
        g.I('v_mul_f32 v%d, s%d, v%d' % (a, sSCALE, a))
        g.I('v_mul_f32 v%d, s%d, v%d' % (b, sSCALE, b))
        bf_round2(g, a, b, vT1)
        if r == 0:
            g.I('v_max_f32 v%d, v%d, v%d' % (vM, a, b))
        else:
            g.I('v_max3_f32 v%d, v%d, v%d, v%d' % (vM, vM, a, b))
        if r % 8 == 6:
            issue(1)
    xrow_allreduce(g, 'v_max_f32', vM, vT0)
    for r in range(32):
        a = SA + r
        g.I('v_sub_f32 v%d, v%d, v%d' % (a, a, vM))
        g.I('v_mul_f32 v%d, s%d, v%d' % (a, sLOG2E, a))
        g.I('v_exp_f32 v%d, v%d' % (a, a))
        if r % 8 == 7:
            issue(1)
    g.I('v_add_f32 v%d, v%d, v%d' % (vL, SA, SA + 1))
    for r in range(2, 32):
        g.I('v_add_f32 v%d, v%d, v%d' % (vL, vL, SA + r))
    for r in range(0, 32, 2):
        g.I('v_cvt_pk_bf16_f32 v%d, v%d, v%d' % (PF + r // 2, SA + r, SA + r + 1))
    xrow_allreduce(g, 'v_add_f32', vL, vT0)
    stamp(g, 'sm_done')
    WOR = VA + 32
    WDG = QF + 8
    WOG = VA
    HFR = PT + 2
    hloads = []
    if not w0 and not GL and not P['SKIP'] & 8:
        WDR, HD = SA, SA + 16
        if P['DEL'] == 1:
            wd_loads(WDR, W)
        else:
            wait_flag(g, 3)
            wd_loads(WDR, W)
            hloads = h_load_list(HD)
            for t in hloads:
                g.vmem(t, 'h', W)
    for T in range(4):
        issue_through(min(T + 1, 3))
        if GL and T == 3 and not w0:
            g_loads(P['WT'] + 4)
        g.vm_wait('v%d' % T)
        if not GL and T == P['TH'] and not w0 and not P['SKIP'] & 8 and P['DEL'] != 1:
            g.vm_wait('h')
            sv = (list(g.vm), g.vm_done)
            ok = g.newlabel('L_hok')
            nh = 4 * len(hloads)
            umax_tree(g, range(HD, HD + nh), vT1)
            g.I('v_cmp_eq_u32 vcc, -1, v%d' % vT1)
            g.I('s_cbranch_vccz %s' % ok)
            poll_valid(g, hloads, range(HD, HD + nh), vT1)
            g.label(ok)
            g.vm, g.vm_done = sv
            h_compute(HD, HFR)
            tile16g(g, WDR, HFR, HD, WDG)
            stamp(g, 'wd_done')
        if T == 3 and not GL:
            wo_loads(WOR, P['WT'])
        tile32(g, vbase(T), PF + 4 * T, OA, T == 0, frag_is_A=False)
    stamp(g, 'pv_done')
    if w0 and P['DEL'] == 1 and not GL:
        HB = VA - 32
        bases = [32, 48, 64, 80, 128, 144, 160]
        g.I('s_mov_b32 s%d, 28672' % sT)
        g.I('v_mul_lo_u32 v%d, v%d, s%d' % (vT5, vN, sT))
        g.I('v_lshl_add_u32 v%d, v%d, 4, v%d' % (vT5, vJ, vT5))
        g.I('s_mul_i32 s%d, s%d, 448' % (90, sH))
        g.I('s_add_u32 s%d, s%d, 0x%x' % (90, 90, WS_GP))
        g.I('s_add_u32 s%d, s%d, %d' % (91, 90, 16 * 28672))
        g.I('s_add_u32 s%d, s%d, %d' % (92, 90, 14336))
        g.I('s_add_u32 s%d, s%d, %d' % (93, 90, 14336 + 16 * 28672))
        hl = []
        regs = []
        for wq_ in range(7):
            hl += ['buffer_load_dwordx4 %s, v%d, %s, s%d offen offset:%d sc1' % (vr(bases[wq_] + 4 * i), vT5, sq(SRD_WS), 90 + i, wq_ * 64)
                   for i in range(4)]
            regs += list(range(bases[wq_], bases[wq_] + 16))
        poll_valid(g, hl, regs, vT1)
        g.I('v_lshlrev_b32 v%d, 3, v%d' % (vT2, vJ))
        g.I('s_mov_b32 s%d, 0x00010001' % sEX)
        g.I('s_mov_b32 s%d, 0x00010001' % (sEX + 1))
        for wq_ in range(7):
            h_compute(bases[wq_], HFR)
            g.I('s_mov_b64 exec, s[%d:%d]' % (sEX, sEX + 1))
            g.I('ds_write_b64 v%d, %s offset:%d' % (vT2, vr(HFR, 2), L_HB + wq_ * 32))
            g.I('s_mov_b64 exec, -1')
        g.I('v_mov_b32 v%d, 4' % vT4)
        g.I('s_waitcnt lgkmcnt(0)')
        g.I('ds_write_b32 v%d, v%d offset:%d' % (vZERO, vT4, L_FLAG))
        stamp(g, 'w0_h')
    g.I('s_mul_i32 s%d, s%d, 4224' % (sA, sWAVE))
    g.I('v_mul_u32_u24 v%d, 528, v%d' % (vT0, vN))
    g.I('v_lshl_add_u32 v%d, v%d, 7, v%d' % (vT0, vJ, vT0))
    g.I('v_add_u32 v%d, s%d, v%d' % (vT0, sA, vT0))
    g.I('s_mov_b32 s%d, 0x00ff00ff' % sEX)
    g.I('s_mov_b32 s%d, 0x00ff00ff' % (sEX + 1))
    g.I('s_mov_b64 exec, s[%d:%d]' % (sEX, sEX + 1))
    for dd in range(8):
        g.I('ds_write_b128 v%d, %s offset:%d' % (vT0, vr(OA + 4 * dd), L_OW + dd * 16))
    g.I('s_mov_b64 exec, 0xff')
    g.I('s_lshl_b32 s%d, s%d, 6' % (sA, sWAVE))
    g.I('v_lshlrev_b32 v%d, 3, v%d' % (vT1, vLANE))
    g.I('v_add_u32 v%d, s%d, v%d' % (vT1, sA, vT1))
    g.I('ds_write_b64 v%d, %s offset:%d' % (vT1, vr(vM, 2), L_ML))
    g.I('s_mov_b64 exec, -1')
    g.I('s_waitcnt lgkmcnt(0)')
    g.I('s_barrier')
    stamp(g, 'b3')
    CO, CM = OA, OA + 16
    g.I('s_mul_i32 s%d, s%d, 528' % (sA, sWAVE))
    g.I('v_lshlrev_b32 v%d, 3, v%d' % (vT0, vLANE))
    g.I('v_add_u32 v%d, s%d, v%d' % (vT1, sA, vT0))
    g.I('s_lshl_b32 s%d, s%d, 3' % (sA, sWAVE))
    g.I('v_mov_b32 v%d, s%d' % (vT0, sA))
    for w in range(8):
        g.I('ds_read_b64 %s, v%d offset:%d' % (vr(CM + 2 * w, 2), vT0, L_ML + w * 64))
    for w in range(8):
        g.I('ds_read_b64 %s, v%d offset:%d' % (vr(CO + 2 * w, 2), vT1, L_OW + w * 4224))
    g.I('s_waitcnt lgkmcnt(0)')
    g.I('v_max3_f32 v%d, v%d, v%d, v%d' % (vM, CM, CM + 2, CM + 4))
    g.I('v_max3_f32 v%d, v%d, v%d, v%d' % (vM, vM, CM + 6, CM + 8))
    g.I('v_max3_f32 v%d, v%d, v%d, v%d' % (vM, vM, CM + 10, CM + 12))
    g.I('v_max_f32 v%d, v%d, v%d' % (vM, vM, CM + 14))
    for w in range(8):
        m = CM + 2 * w
        g.I('v_sub_f32 v%d, v%d, v%d' % (m, m, vM))
        g.I('v_mul_f32 v%d, s%d, v%d' % (m, sLOG2E, m))
        g.I('v_exp_f32 v%d, v%d' % (m, m))
    R0, R1 = PF, PF + 1
    for w in range(8):
        m = CM + 2 * w
        op = 'v_mul_f32' if w == 0 else 'v_fmac_f32'
        g.I('%s v%d, v%d, v%d' % (op, R0, m, CO + 2 * w))
        g.I('%s v%d, v%d, v%d' % (op, R1, m, CO + 2 * w + 1))
        g.I('%s v%d, v%d, v%d' % (op, vL, m, m + 1))
    g.I('v_lshrrev_b32 v%d, 3, v%d' % (vT0, vLANE))
    g.I('v_lshlrev_b32 v%d, 12, v%d' % (vT0, vT0))
    g.I('v_and_b32 v%d, 7, v%d' % (vT1, vLANE))
    g.I('v_lshl_add_u32 v%d, v%d, 3, v%d' % (vT0, vT1, vT0))
    g.I('s_lshl_b32 s%d, s%d, 18' % (sA, sG))
    g.I('s_lshl_b32 s%d, s%d, 15' % (sB, sWAVE))
    g.I('s_add_u32 s%d, s%d, s%d' % (sA, sA, sB))
    g.I('s_and_b32 s%d, s2, 63' % sC)
    g.I('s_lshl_b32 s%d, s%d, 6' % (sB, sC))
    g.I('s_add_u32 s%d, s%d, s%d' % (sA, sA, sB))
    g.I('s_add_u32 s%d, s%d, 0x%x' % (sA, sA, WS_AP))
    g.vmem('buffer_store_dwordx2 %s, v%d, %s, s%d offen sc1' % (vr(R0, 2), vT0, sq(SRD_WS), sA), 'ap')
    g.I('s_lshl_b32 s%d, s%d, 12' % (sA, sG))
    g.I('s_lshl_b32 s%d, s%d, 9' % (sB, sWAVE))
    g.I('s_add_u32 s%d, s%d, s%d' % (sA, sA, sB))
    g.I('s_lshl_b32 s%d, s%d, 3' % (sB, sC))
    g.I('s_add_u32 s%d, s%d, s%d' % (sA, sA, sB))
    g.I('s_add_u32 s%d, s%d, 0x%x' % (sA, sA, WS_ML))
    g.I('s_mov_b64 exec, 1')
    g.vmem('buffer_store_dwordx2 %s, v%d, %s, s%d offen sc1' % (vr(vM, 2), vZERO, sq(SRD_WS), sA), 'ml')
    g.I('s_mov_b64 exec, -1')
    stamp(g, 'ap_stored')
    if not w0 and not GL and P['DEL'] == 1 and not P['SKIP'] & 8:
        g.I('v_lshlrev_b32 v%d, 3, v%d' % (vT2, vJ))
        g.I('s_lshl_b32 s%d, s%d, 5' % (sB, sWAVE))
        g.I('v_add_u32 v%d, s%d, v%d' % (vT2, sB, vT2))
        g.I('ds_read_b64 %s, v%d offset:%d' % (vr(HFR, 2), vT2, L_HB - 32))
        g.I('s_waitcnt lgkmcnt(0)')
        g.vm_wait('wd')
        tile16g(g, WDR, HFR, HD, WDG)
        stamp(g, 'wd_done')
    if GL:
        WDR = VA + 48
        wo_loads(WOR, P['WT'] + 4)
        if not w0:
            wd_loads(WDR, P['WT'] + 4)
            g_tile(QF, KR, PT, QF + 8)
    MLr, AD = KR + 32, KR + 40
    g.I('s_lshl_b32 s%d, s%d, 9' % (sF, sH))
    g.I('s_add_u32 s%d, s%d, 0x%x' % (sF, sF, WS_ML))
    if w0:
        PR = PT
        g.I('v_lshlrev_b32 v%d, 3, v%d' % (vT3, vLANE))
        poll_valid(g, ['buffer_load_dwordx2 %s, v%d, %s, s%d offen sc1' % (vr(PR, 2), vT3, sq(SRD_WS), sF)],
                   range(PR, PR + 2), vT1, sleep=P['TSLEEP'], thr=P['THR'])
    stamp(g, 'pre_b5')
    g.I('s_barrier')
    loads = []
    g.I('v_lshlrev_b32 v%d, 3, v%d' % (vT0, vN))
    loads += ['buffer_load_dwordx2 %s, v%d, %s, s%d offen offset:%d sc1' % (vr(MLr + 2 * i, 2), vT0, sq(SRD_WS), sF, i * 128)
              for i in range(4)]
    g.I('v_lshlrev_b32 v%d, 6, v%d' % (vT2, vN))
    g.I('v_lshl_add_u32 v%d, v%d, 4, v%d' % (vT2, vJ, vT2))
    g.I('s_lshl_b32 s%d, s%d, 15' % (sD, sH))
    g.I('s_lshl_b32 s%d, s%d, 12' % (sB, sWAVE))
    g.I('s_add_u32 s%d, s%d, s%d' % (sD, sD, sB))
    g.I('s_add_u32 s%d, s%d, 0x%x' % (sD, sD, WS_AP))
    loads += ['buffer_load_dwordx4 %s, v%d, %s, s%d offen offset:%d sc1' % (vr(AD + 4 * i), vT2, sq(SRD_WS), sD, i * 1024)
              for i in range(4)]
    poll_valid(g, loads, range(MLr, MLr + 24), vT1)
    stamp(g, 'ml_ok')
    g.I('v_max3_f32 v%d, v%d, v%d, v%d' % (vM, MLr, MLr + 2, MLr + 4))
    g.I('v_max_f32 v%d, v%d, v%d' % (vM, vM, MLr + 6))
    row_allreduce(g, 'v_max_f32', [vM])
    for i in range(4):
        m = MLr + 2 * i
        g.I('v_sub_f32 v%d, v%d, v%d' % (m, m, vM))
        g.I('v_mul_f32 v%d, s%d, v%d' % (m, sLOG2E, m))
        g.I('v_exp_f32 v%d, v%d' % (m, m))
    OC = QF
    for i in range(4):
        m = MLr + 2 * i
        op = 'v_mul_f32' if i == 0 else 'v_fmac_f32'
        g.I('%s v%d, v%d, v%d' % (op, vL, m, m + 1))
        for c in range(4):
            g.I('%s v%d, v%d, v%d' % (op, OC + c, m, AD + 4 * i + c))
    row_allreduce(g, 'v_add_f32', [vL, OC, OC + 1, OC + 2, OC + 3])
    g.I('v_rcp_f32 v%d, v%d' % (vT0, vL))
    for c in range(4):
        x = OC + c
        g.I('v_mul_f32 v%d, v%d, v%d' % (vT1, x, vT0))
        g.I('v_fma_f32 v%d, -v%d, v%d, v%d' % (vT2, vT1, vL, x))
        g.I('v_fma_f32 v%d, v%d, v%d, v%d' % (x, vT2, vT0, vT1))
    OFR = QF + 4
    g.I('v_cvt_pk_bf16_f32 v%d, v%d, v%d' % (OFR, OC, OC + 1))
    g.I('v_cvt_pk_bf16_f32 v%d, v%d, v%d' % (OFR + 1, OC + 2, OC + 3))
    tile16g(g, WOR, OFR, OA, WOG)
    stamp(g, 'wo_done')
    if GL:
        if w0:
            PR = PT
            g.I('v_and_b32 v%d, 31, v%d' % (vT4, vLANE))
            g.I('s_mov_b32 s%d, 28672' % sT)
            g.I('v_mul_lo_u32 v%d, v%d, s%d' % (vT4, vT4, sT))
            g.I('v_lshrrev_b32 v%d, 5, v%d' % (vT5, vLANE))
            g.I('s_mov_b32 s%d, 14336' % sT)
            g.I('v_mul_lo_u32 v%d, v%d, s%d' % (vT5, vT5, sT))
            g.I('v_add_u32 v%d, v%d, v%d' % (vT4, vT4, vT5))
            g.I('s_mul_i32 s%d, s%d, 448' % (90, sH))
            g.I('s_add_u32 s%d, s%d, 0x%x' % (90, 90, WS_GP))
            poll_valid(g, ['buffer_load_dword v%d, v%d, %s, s90 offen sc1' % (PR, vT4, sq(SRD_WS)),
                           'buffer_load_dword v%d, v%d, %s, s90 offen offset:444 sc1' % (PR + 1, vT4, sq(SRD_WS))],
                       range(PR, PR + 2), vT1, sleep=P['TSLEEP'], thr=P['THR'])
        g.I('s_barrier')
        if not w0:
            HD = KR
            hl = h_load_list(HD)
            poll_valid(g, hl, range(HD, HD + 16), vT1)
            h_compute(HD, HFR)
            tile16g(g, WDR, HFR, HD, WDG)
            stamp(g, 'wd_done')
    F = VA
    for dd in range(8):
        if w0:
            g.I('v_mov_b32 v%d, 0' % (F + 8 + dd))
        else:
            g.I('v_mov_b32 v%d, v%d' % (F + 8 + dd, WDG + dd))
    g.I('s_lshl_b32 s%d, s%d, 10' % (sA, sWAVE))
    g.I('v_lshlrev_b32 v%d, 5, v%d' % (vT0, vN))
    g.I('v_add_u32 v%d, s%d, v%d' % (vT0, sA, vT0))
    g.I('s_mov_b64 exec, 0xffff')
    g.I('ds_write_b128 v%d, %s offset:%d' % (vT0, vr(F), L_FR))
    g.I('ds_write_b128 v%d, %s offset:%d' % (vT0, vr(F + 4), L_FR + 16))
    g.I('ds_write_b128 v%d, %s offset:%d' % (vT0, vr(F + 8), L_FR + 512))
    g.I('ds_write_b128 v%d, %s offset:%d' % (vT0, vr(F + 12), L_FR + 528))
    g.I('s_mov_b64 exec, -1')
    g.I('s_waitcnt lgkmcnt(0)')
    g.I('s_barrier')
    stamp(g, 'b4')
    if not w0:
        stamp_store(g)
        g.I('s_endpgm')
        return
    g.I('s_lshl_b32 s%d, s%d, 8' % (sF, sCB))
    g.I('s_lshl_b32 s%d, s%d, 3' % (sB, sH))
    g.I('s_add_u32 s%d, s%d, s%d' % (sF, sF, sB))
    XV = QF + 8
    g.vmem('buffer_load_dwordx2 %s, v%d, %s, s%d offen' % (vr(XV, 2), vZERO, sq(SRD_X), sF), 'xv')
    RD = KR
    for w in range(8):
        g.I('ds_read_b128 %s, v%d offset:%d' % (vr(RD + 4 * w), vVOFF, L_FR + w * 1024))
    g.I('s_waitcnt lgkmcnt(0)')
    for w in range(1, 8):
        for c in range(4):
            g.I('v_add_f32 v%d, v%d, v%d' % (RD + c, RD + c, RD + 4 * w + c))
    if P['FT']:
        g.I('s_lshl_b32 s%d, s%d, 15' % (sD, sCB))
        g.I('s_add_u32 s%d, s%d, 0x%x' % (sD, sD, WS_FP))
        g.I('v_and_b32 v%d, 31, v%d' % (vT0, vLANE))
        g.I('v_lshlrev_b32 v%d, 10, v%d' % (vT0, vT0))
        g.I('v_lshrrev_b32 v%d, 5, v%d' % (vT1, vLANE))
        g.I('v_lshl_add_u32 v%d, v%d, 9, v%d' % (vT0, vT1, vT0))
        g.I('s_lshl_b32 s%d, s%d, 4' % (sB, sH))
        g.I('s_add_u32 s%d, s%d, s%d' % (sB, sD, sB))
        g.vmem('buffer_store_dwordx4 %s, v%d, %s, s%d offen sc1' % (vr(RD), vT0, sq(SRD_WS), sB), 'fp')
        g.I('s_lshl_b32 s%d, s%d, 10' % (sB, sH))
        g.I('s_add_u32 s%d, s%d, s%d' % (sD, sD, sB))
        g.I('v_mov_b32 v%d, v%d' % (vT0, vVOFF))
    else:
        g.I('s_lshl_b32 s%d, s%d, 15' % (sD, sCB))
        g.I('s_add_u32 s%d, s%d, 0x%x' % (sD, sD, WS_FP))
        g.I('s_lshl_b32 s%d, s%d, 10' % (sB, sH))
        g.I('s_add_u32 s%d, s%d, s%d' % (sB, sD, sB))
        g.vmem('buffer_store_dwordx4 %s, v%d, %s, s%d offen sc1' % (vr(RD), vVOFF, sq(SRD_WS), sB), 'fp')
        g.I('v_and_b32 v%d, 31, v%d' % (vT0, vLANE))
        g.I('v_lshlrev_b32 v%d, 10, v%d' % (vT0, vT0))
        g.I('v_lshrrev_b32 v%d, 5, v%d' % (vT1, vLANE))
        g.I('v_lshl_add_u32 v%d, v%d, 9, v%d' % (vT0, vT1, vT0))
        g.I('s_lshl_b32 s%d, s%d, 4' % (sB, sH))
        g.I('s_add_u32 s%d, s%d, s%d' % (sD, sD, sB))
    FD = KR + 32
    poll_valid(g, ['buffer_load_dwordx4 %s, v%d, %s, s%d offen sc1' % (vr(FD), vT0, sq(SRD_WS), sD)], range(FD, FD + 4), vT1)
    row_allreduce(g, 'v_add_f32', [FD + c for c in range(4)])
    FE = FD + 4
    for c in range(4):
        g.I('v_mov_b32 v%d, v%d' % (FE + c, FD + c))
    for c in range(4):
        g.I('v_permlane16_swap_b32 v%d, v%d' % (FD + c, FE + c))
    for c in range(4):
        g.I('v_add_f32 v%d, v%d, v%d' % (FD + c, FD + c, FE + c))
    for c in range(4):
        g.I('v_mov_b32 v%d, v%d' % (FE + c, FD + c))
    for c in range(4):
        g.I('v_permlane32_swap_b32 v%d, v%d' % (FD + c, FE + c))
    XF = FD + 8
    for d in range(2):
        g.I('v_lshlrev_b32 v%d, 16, v%d' % (XF + 2 * d, XV + d))
        g.I('v_and_b32 v%d, 0xffff0000, v%d' % (XF + 2 * d + 1, XV + d))
    for c in range(0, 4, 2):
        bf_round2(g, FD + c, FD + c + 1, vT0)
        bf_round2(g, FE + c, FE + c + 1, vT0)
    for c in range(4):
        g.I('v_add_f32 v%d, v%d, v%d' % (FD + c, FD + c, XF + c))
    for c in range(0, 4, 2):
        bf_round2(g, FD + c, FD + c + 1, vT0)
    for c in range(4):
        g.I('v_add_f32 v%d, v%d, v%d' % (FD + c, FD + c, FE + c))
    g.I('v_cvt_pk_bf16_f32 v%d, v%d, v%d' % (XF, FD, FD + 1))
    g.I('v_cvt_pk_bf16_f32 v%d, v%d, v%d' % (XF + 1, FD + 2, FD + 3))
    g.I('s_mov_b64 exec, 1')
    g.I('buffer_store_dwordx2 %s, v%d, %s, s%d offen' % (vr(XF, 2), vZERO, sq(SRD_OUT), sF))
    stamp(g, 'end')
    stamp_store(g)
    g.I('s_endpgm')


def build():
    g = Gen()
    hdr = open('cdna_kernels/%s.s.ref' % NAME).read().split('\n')
    out = []
    for ln in hdr:
        if ln.startswith('; @launch'):
            out.append('; @launch grid=(256,1,1) block=(512,1,1) lds=%d' % LDS_BYTES)
        elif ln.startswith(';'):
            out.append(ln)
        else:
            break
    out += ['.amdgcn_target "amdgcn-amd-amdhsa--gfx950"', '.text', '.globl %s_kernel' % NAME, '.p2align 8',
            '.type %s_kernel,@function' % NAME, '%s_kernel:' % NAME]
    g.I('s_cmp_ge_u32 s2, 256')
    g.I('s_cbranch_scc1 L_end')
    g.I('s_load_dwordx16 s[8:23], s[0:1], 0')
    g.I('s_load_dwordx8 s[24:31], s[0:1], 64')
    g.I('s_and_b32 s%d, s2, 7' % sT)
    g.I('s_lshl_b32 s%d, s%d, 3' % (sT, sT))
    g.I('s_lshr_b32 s%d, s2, 3' % sT2)
    g.I('s_and_b32 s2, s%d, 7' % sT2)
    g.I('s_add_u32 s2, s2, s%d' % sT)
    g.I('s_lshr_b32 s%d, s%d, 3' % (sT2, sT2))
    g.I('s_lshl_b32 s%d, s%d, 6' % (sT2, sT2))
    g.I('s_add_u32 s2, s2, s%d' % sT2)
    g.I('v_lshrrev_b32 v1, 6, v0')
    g.I('v_and_b32 v0, 63, v0')
    g.I('v_readfirstlane_b32 s%d, v1' % sWAVE)
    g.I('v_and_b32 v%d, 15, v0' % vN)
    g.I('v_lshrrev_b32 v%d, 4, v0' % vJ)
    g.I('v_bfe_u32 v%d, v%d, 1, 1' % (vKOFF, vN))
    g.I('v_lshlrev_b32 v%d, 19, v%d' % (vKOFF, vKOFF))
    g.I('v_and_b32 v%d, 1, v%d' % (vT0, vN))
    g.I('v_lshl_add_u32 v%d, v%d, 6, v%d' % (vKOFF, vT0, vKOFF))
    g.I('v_lshrrev_b32 v%d, 2, v%d' % (vT0, vN))
    g.I('v_lshl_add_u32 v%d, v%d, 8, v%d' % (vKOFF, vT0, vKOFF))
    g.I('v_lshl_add_u32 v%d, v%d, 4, v%d' % (vKOFF, vJ, vKOFF))
    g.I('v_lshlrev_b32 v%d, 4, v0' % vVOFF)
    g.I('v_mov_b32 v%d, 0' % vZERO)
    g.I('s_lshr_b32 s%d, s2, 6' % sG)
    g.I('s_lshl_b32 s%d, s%d, 24' % (sKV, sG))
    g.I('s_and_b32 s%d, s2, 63' % sT)
    g.I('s_lshl_b32 s%d, s%d, 13' % (sT, sT))
    g.I('s_add_u32 s%d, s%d, s%d' % (sKV, sKV, sT))
    g.I('s_lshl_b32 s%d, s%d, 10' % (sT, sWAVE))
    g.I('s_add_u32 s%d, s%d, s%d' % (sKV, sKV, sT))
    g.I('s_lshr_b32 s%d, s2, 3' % sH)
    g.I('s_and_b32 s%d, s2, 7' % sCB)
    g.I('s_mov_b32 s%d, 0' % sCNT)
    g.I('s_mov_b32 s%d, 0x05040100' % sSEL0)
    g.I('s_mov_b32 s%d, 0x07060302' % sSEL1)
    g.I('s_mov_b32 s%d, %s' % (sSCALE, f32(128 ** -0.5)))
    g.I('s_mov_b32 s%d, %s' % (sLOG2E, f32(1.4426950408889634)))
    g.I('s_waitcnt lgkmcnt(0)')
    srd(g, SRD_K, 10, 1 << 26)
    srd(g, SRD_V, 12, 1 << 26)
    srd(g, SRD_X, 8, 2048)
    srd(g, SRD_WQ, 14, 1 << 23)
    srd(g, SRD_WO, 16, 1 << 23)
    if P['GD']:
        g.I('s_lshr_b32 s%d, s2, 2' % sA)
        g.I('s_and_b32 s%d, s2, 3' % sB)
        g.I('s_mul_i32 s%d, s%d, 28672' % (sGP, sB))
        g.I('s_lshl_b32 s%d, s%d, 9' % (sC, sA))
        g.I('s_add_u32 s%d, s%d, s%d' % (sGP, sGP, sC))
        g.I('s_add_u32 s%d, s%d, 0x%x' % (sGP, sGP, WS_GP))
        g.I('s_mul_i32 s%d, s%d, %d' % (sGB, sB, 256 * 7168))
        g.I('s_mul_i32 s%d, s%d, %d' % (sC, sWAVE, 32 * 7168))
        g.I('s_add_u32 s%d, s%d, s%d' % (sGB, sGB, sC))
        g.I('s_sub_u32 s%d, s%d, 28' % (sC, sA))
        g.I('s_cmp_lt_u32 s%d, 28' % sA)
        g.I('s_cselect_b32 s%d, s%d, s%d' % (sC, sA, sC))
        g.I('s_lshl_b32 s%d, s%d, 8' % (sC, sC))
        g.I('s_add_u32 s%d, s%d, s%d' % (sGB, sGB, sC))
        g.I('s_cmp_lt_u32 s2, 224')
        g.I('s_cselect_b32 s%d, s%d, 0x7f000000' % (sGB, sGB))
        g.I('s_cselect_b32 s%d, s%d, 0x7f000000' % (sGP, sGP))
        g.I('s_cmp_lt_u32 s%d, 28' % sA)
    else:
        g.I('s_cmp_lt_u32 s%d, 4' % sCB)
    g.I('s_cselect_b32 s%d, s20, s22' % SRD_GU)
    g.I('s_cselect_b32 s%d, s21, s23' % (SRD_GU + 1))
    g.I('s_and_b32 s%d, s%d, 0xffff' % (SRD_GU + 1, SRD_GU + 1))
    g.I('s_mov_b32 s%d, 0x%x' % (SRD_GU + 2, 1024 * 3584 * 2))
    g.I('s_mov_b32 s%d, 0x00020000' % (SRD_GU + 3))
    srd(g, SRD_WD, 24, 3584 * 1024 * 2)
    srd(g, SRD_OUT, 26, 2048)
    srd(g, SRD_DBG, 28, 256)
    srd(g, SRD_WS, 30, WS_SIZE)
    if P['STAMPS']:
        g.I('v_mov_b32 v%d, 0' % vST)
    stamp(g, 'entry')
    g.I('s_cmp_eq_u32 s%d, 0' % sWAVE)
    g.I('s_cbranch_scc1 L_wave0')
    g.fence()
    main_path(g, False)
    g.label('L_wave0')
    g.vm_reset()
    prologue_wave0(g)
    main_path(g, True)
    g.label('L_end')
    g.I('s_endpgm')
    out.append(g.text())
    out += ['.section .rodata,"a"', '.p2align 6', '.amdhsa_kernel %s_kernel' % NAME,
            '  .amdhsa_next_free_vgpr 256', '  .amdhsa_next_free_sgpr 102', '  .amdhsa_accum_offset 256',
            '  .amdhsa_group_segment_fixed_size 0', '  .amdhsa_kernarg_size 96', '  .amdhsa_user_sgpr_count 2',
            '  .amdhsa_user_sgpr_kernarg_segment_ptr 1', '  .amdhsa_system_sgpr_workgroup_id_x 1',
            '  .amdhsa_float_denorm_mode_32 3', '.end_amdhsa_kernel']
    return '\n'.join(out) + '\n'


if __name__ == '__main__':
    dst = sys.argv[1] if len(sys.argv) > 1 else 'cdna_kernels/%s.s' % NAME
    open(dst, 'w').write(build())
    print('wrote', dst)
    if P['STAMPS']:
        open(dst + '.stamps', 'w').write('\n'.join(STAMP_NAMES))
```
